```python
import torch

def _softmax(x, axis=-1):
    return torch.softmax(x, dim=axis)
def _gelu(x):
    return torch.nn.functional.gelu(x, approximate="tanh")
def _silu(x):
    return torch.nn.functional.silu(x)
def _sigmoid(x):
    return torch.sigmoid(x)
def _layernorm(x, axis=-1, eps=1e-5):
    m = x.mean(dim=axis, keepdim=True)
    v = x.var(dim=axis, keepdim=True, unbiased=False)
    return (x - m) / torch.sqrt(v + eps)
def _scatter_add(tgt, idx, src, axis=0):
    return tgt.clone().index_add_(axis, idx, src)
def _segment_sum(src, seg, n):
    out = torch.zeros((n,) + src.shape[1:], dtype=src.dtype)
    return out.index_add_(0, seg, src)
def _pad(x, pw):
    flat = tuple(v for pair in reversed(pw) for v in pair)
    return torch.nn.functional.pad(x, flat)

kernel_name = 'standalone__cross_network_dcn__recsys'

def setup_inputs():

    _w = (lambda a: (lambda t: t.to(torch.bfloat16) if t.is_floating_point() else t)(torch.as_tensor(a)))
    B, F, D, L = 16384, 100, 16, 3
    Din = min(F * D, 1024)
    return {
        "x0": _w((lambda *s: torch.randn(*s, dtype=torch.bfloat16) * 0.05)(B, Din)),
        "ws": _w((lambda *s: torch.randn(*s, dtype=torch.bfloat16) * 0.8)(L, Din, Din) * (Din ** -0.5)),
        "bs": _w((lambda *s: torch.randn(*s, dtype=torch.bfloat16) * 3.2)(L, Din) * 0.01),
    }

def reference(x0, ws, bs):
    x = x0
    L = ws.shape[0]
    for l in range(L):
        proj = torch.einsum('bd,de->be', x, ws[l]) + bs[l]
        x = x0 * proj + x
    return x
```

```python
import sys
out = sys.argv[1]
P = dict(CAP=2, DLEAD=2, DSPREAD=8, STAMPS=0, XSC="sc1", SSC="sc1", POLL_M=64, BIAS_S=11, NOSYNC=0, XDSPREAD=8,
         DOFF=2, NODMA=0, NOBAR=0, NOW=0, NOJIT=0, NOST=0, DEEP=1, XCHK=192, STOFF=5, STSPREAD=20, RAMP=4, XSMALL=0, NOOUT=0, XSTR=131072+1024, CPF=0)
for kv in sys.argv[2:]:
    k, v = kv.split("=")
    P[k] = v.replace("+", " ").replace("none", "") if k in ("XSC", "SSC") else int(v)
CAP = P["CAP"]

KN = "standalone__cross_network_dcn__recsys_kernel"
PK = "dcn_pack_kernel"
WP_OFF = 0x100000
FLAG_OFF = 0x800000
X_OFF = P.get("XOFF", 0x1000000)
L = []
def e(s): L.append(s)

def pack_kernel():
    e(f".globl {PK}"); e(".p2align 8"); e(f".type {PK},@function"); e(f"{PK}:")
    e("s_cmp_ge_u32 s2, 192"); e("s_cbranch_scc1 LP_end")
    e("s_load_dwordx2 s[4:5], s[0:1], 8")
    e("s_load_dwordx2 s[6:7], s[0:1], 40")
    e("v_lshrrev_b32 v1, 6, v0")
    e("v_and_b32 v2, 63, v0")
    e("v_readfirstlane_b32 s20, v1")
    e("v_and_b32 v3, 15, v2")
    e("v_lshrrev_b32 v4, 4, v2")
    e("v_lshlrev_b32 v5, 14, v4")
    e("v_lshl_add_u32 v5, v3, 4, v5")
    e("v_lshrrev_b32 v6, 2, v3"); e("v_lshlrev_b32 v6, 11, v6")
    e("v_lshl_add_u32 v6, v4, 8, v6")
    e("v_and_b32 v7, 3, v3"); e("v_lshl_add_u32 v6, v7, 6, v6")
    e("v_lshl_add_u32 v6, v1, 13, v6")
    e("v_lshlrev_b32 v7, 4, v2")
    e("v_lshl_add_u32 v8, v1, 13, v7")
    e("s_lshl_b32 s21, s2, 2"); e("s_add_u32 s21, s21, s20")
    e("s_lshr_b32 s22, s21, 8")
    e("s_and_b32 s23, s21, 255")
    e("s_lshr_b32 s24, s23, 3")
    e("s_and_b32 s25, s23, 7")
    e("s_lshl_b32 s26, s22, 21"); e("s_lshl_b32 s27, s24, 16"); e("s_add_u32 s26, s26, s27")
    e("s_lshl_b32 s27, s25, 8"); e("s_add_u32 s26, s26, s27")
    e("s_add_u32 s27, s26, 4096"); e("s_add_u32 s28, s26, 8192"); e("s_add_u32 s29, s26, 12288")
    e("s_waitcnt lgkmcnt(0)")
    e("s_mov_b32 s8, s4"); e("s_and_b32 s9, s5, 0xffff"); e("s_mov_b32 s10, 0x600000"); e("s_mov_b32 s11, 0x20000")
    e("s_mov_b32 s12, s6"); e("s_and_b32 s13, s7, 0xffff"); e("s_mov_b32 s14, 0x10000000"); e("s_mov_b32 s15, 0x20000")
    for t in range(8):
        e(f"buffer_load_dwordx4 v[{16+4*t}:{19+4*t}], v5, s[8:11], s{26+t//2} offen offset:{(t%2)*2048}")
    e("s_lshr_b32 s30, s24, 2"); e("s_and_b32 s31, s24, 3"); e("s_lshr_b32 s32, s25, 2")
    e("s_lshl_b32 s33, s32, 2"); e("s_xor_b32 s33, s30, s33")
    e("s_and_b32 s43, s33, 3")
    e("s_and_b32 s44, s25, 3"); e("s_xor_b32 s35, s43, s44")
    e("s_and_b32 s34, s33, 4"); e("s_or_b32 s34, s34, s31")
    e("s_cmp_lg_u32 s22, 0"); e("s_cbranch_scc1 LP_map")
    e("s_xor_b32 s34, s34, 4")
    e("s_cmp_lt_u32 s33, 4"); e("s_cbranch_scc1 LP_map")
    e("s_mov_b32 s34, s43"); e("s_mov_b32 s35, s31")
    e("LP_map:")
    e("s_mul_i32 s36, s25, 3"); e("s_add_u32 s36, s36, s22"); e("s_lshl_b32 s36, s36, 3"); e("s_add_u32 s36, s36, s34")
    e("s_lshl_b32 s36, s36, 15")
    e("s_lshr_b32 s37, s35, 1"); e("s_lshl_b32 s37, s37, 14"); e("s_add_u32 s36, s36, s37")
    e("s_and_b32 s37, s35, 1"); e("s_lshl_b32 s37, s37, 10"); e("s_add_u32 s36, s36, s37")
    e(f"s_add_u32 s36, s36, {WP_OFF}")
    e("s_add_u32 s37, s36, 4096"); e("s_add_u32 s38, s36, 8192"); e("s_add_u32 s39, s36, 12288")
    e("s_mov_b32 s40, 0x05040100"); e("s_mov_b32 s41, 0x07060302")
    e("s_cmp_ge_u32 s21, 32"); e("s_cbranch_scc1 LP_nf")
    e("v_mov_b32 v12, 0"); e("v_mov_b32 v13, 0"); e("v_mov_b32 v14, 0"); e("v_mov_b32 v15, 0")
    e("s_lshl_b32 s42, s21, 10"); e(f"s_add_u32 s42, s42, {FLAG_OFF}")
    e("buffer_store_dwordx4 v[12:15], v7, s[12:15], s42 offen")
    e("LP_nf:")
    e("s_waitcnt vmcnt(0)")
    for a8 in range(8):
        for p in range(4):
            s0 = 16 + 4 * (2 * p + 1) + a8 // 2
            s1 = 16 + 4 * (2 * p) + a8 // 2
            e(f"v_perm_b32 v{48+4*a8+p}, v{s0}, v{s1}, s{40 + a8 % 2}")
        e(f"ds_write_b128 v6, v[{48+4*a8}:{51+4*a8}] offset:{(a8//4)*1024 + (a8%4)*16}")
    e("s_waitcnt lgkmcnt(0)")
    for a in range(8):
        e(f"ds_read_b128 v[{16+4*a}:{19+4*a}], v8 offset:{a*1024}")
    for a in range(8):
        e(f"s_waitcnt lgkmcnt({7-a})")
        e(f"buffer_store_dwordx4 v[{16+4*a}:{19+4*a}], v7, s[12:15], s{36+a//2} offen offset:{(a%2)*2048}")
    e("LP_end:")
    e("s_endpgm")

class Ctr:
    def __init__(s, name, mx): s.name, s.mx, s.n, s.done = name, mx, 0, 0
    def issue(s):
        s.n += 1
        return s.n - 1
    def need(s, idx):
        if idx is None or idx < s.done: return None
        N = min(s.n - 1 - idx, s.mx)
        s.done = max(s.done, s.n - N)
        return N
VM = Ctr("vmcnt", 63); LG = Ctr("lgkmcnt", 15)
def wait(vm=None, lg=None):
    a = VM.need(vm); b = LG.need(lg)
    parts = []
    if a is not None: parts.append(f"vmcnt({a})")
    if b is not None: parts.append(f"lgkmcnt({b})")
    if parts:
        e("s_waitcnt " + " ".join(parts)); return 1
    return 0
def wait_lg_all():
    e("s_waitcnt lgkmcnt(0)"); LG.done = LG.n

vL0, vK, vXR, vW0, vW1, vLX, vP, vB = 0, 1, 5, 6, 7, 8, 9, 10
T = 12
def acc(a, bt):
    if a < 7:
        b = 32 + (a * 8 + bt) * 4
        return ("v", b)
    return ("a", 224 + bt * 4)
def rng(k, b, n=4): return f"{k}[{b}:{b+n-1}]"
def x0r(j, bt): return (j * 8 + bt) * 4
def breg(c, bt): return 96 + (c * 8 + bt) * 4
SX0, SOUT, SWS, SBS = "s[12:15]", "s[16:19]", "s[20:23]", "s[24:27]"
sW, sHF, sWOFF, sW2048, sW8192, sMASK, sTMP, sFLAG, sPFLAG, sBOFF, sSPIN, sTMP2 = 28, 29, 30, 31, 32, 33, 34, 35, 36, 37, 38, 39
sXO = 40
sXOWN = 48
sXOTH = 50
sXST = 52
sXLD = 56
sSTAMP = 60
nstamp = [0]
def stamp():
    if P["STAMPS"]:
        e(f"s_memtime s[{sSTAMP+2*nstamp[0]}:{sSTAMP+2*nstamp[0]+1}]"); nstamp[0] += 1
M = lambda l, s, rp=0, bt=0, sub=0: l * 2048 + s * 128 + rp * 32 + bt * 4 + sub
NM = 3 * 2048

def bop(l, s, c, bt):
    if P['DEEP'] < 2 and l == 0 and c == 0 and s in (8, 10, 12): return x0r((s - 8) // 2, bt)
    return breg(c, bt)

def main_kernel():
    e(f".globl {KN}"); e(".p2align 8"); e(f".type {KN},@function"); e(f"{KN}:")
    e("s_cmp_ge_u32 s2, 256"); e("s_cbranch_scc1 L_end")
    e("s_load_dwordx2 s[4:5], s[0:1], 0")
    e("s_load_dwordx4 s[8:11], s[0:1], 16")
    e("s_load_dwordx2 s[6:7], s[0:1], 40")
    stamp()
    e("v_lshrrev_b32 v12, 6, v0")
    e("v_and_b32 v13, 63, v0")
    e(f"v_readfirstlane_b32 s{sW}, v12")
    e(f"v_lshlrev_b32 v{vL0}, 4, v13")
    for k in range(4): e(f"v_add_u32 v{vK+k}, {k*8192}, v{vL0}")
    e(f"v_lshl_add_u32 v{vW0}, v12, 13, v{vL0}")
    e(f"v_add_u32 v{vW1}, 0x10000, v{vW0}")
    e(f"v_add_u32 v{vLX}, 0x20000, v{vW0}")
    e("v_and_b32 v14, 15, v13"); e("v_lshrrev_b32 v15, 4, v13")
    e(f"v_lshlrev_b32 v{vB}, 4, v15")
    e(f"v_lshl_add_u32 v{vXR}, v14, 11, v{vB}")
    e("s_and_b32 s3, s2, 7"); e(f"s_lshr_b32 s{sTMP}, s2, 4"); e(f"s_lshl_b32 s{sTMP}, s{sTMP}, 3"); e(f"s_or_b32 s3, s3, s{sTMP}")
    e(f"s_lshr_b32 s{sHF}, s2, 3"); e(f"s_and_b32 s{sHF}, s{sHF}, 1")
    e(f"s_lshl_b32 s{sW2048}, s{sW}, 11"); e(f"s_lshl_b32 s{sW8192}, s{sW}, 13")
    e(f"s_mov_b32 s{sMASK}, 0xffff0000")
    e("s_lshl_b32 s3, s3, 18")
    e(f"s_lshl_b32 s{sTMP2}, s{sHF}, 2"); e(f"s_add_u32 s{sTMP2}, s{sTMP2}, s{sW}")
    e(f"s_lshl_b32 s{sBOFF}, s{sTMP2}, 8")
    e(f"s_lshl_b32 s{sTMP}, s{sW}, 16"); e(f"s_add_u32 s{sTMP}, s{sTMP}, s3")
    e(f"s_lshl_b32 s{sXOWN}, s{sHF}, 10"); e(f"s_xor_b32 s{sXOTH}, s{sXOWN}, 1024")
    e(f"s_add_u32 s{sXOWN}, s{sXOWN}, s{sTMP}"); e(f"s_add_u32 s{sXOTH}, s{sXOTH}, s{sTMP}")
    e(f"s_add_u32 s{sXOWN+1}, s{sXOWN}, 32768"); e(f"s_add_u32 s{sXOTH+1}, s{sXOTH}, 32768")
    e(f"s_mul_i32 s{sWOFF}, s{sTMP2}, {3*8*32768}"); e(f"s_add_u32 s{sWOFF}, s{sWOFF}, {WP_OFF}")
    e("s_waitcnt lgkmcnt(0)")
    for (s, ptr, n) in ((24, 8, 6144), (12, 4, 0x2000000), (20, 6, 0x10000000), (16, 10, 0x2000000)):
        e(f"s_mov_b32 s{s}, s{ptr}"); e(f"s_and_b32 s{s+1}, s{ptr+1}, 0xffff"); e(f"s_mov_b32 s{s+2}, {hex(n)}"); e(f"s_mov_b32 s{s+3}, 0x20000")

    def bias_load(l, j):
        e(f"buffer_load_dwordx4 {rng('v', T+4*j)}, v{vB}, {SBS}, s{sBOFF} offen offset:{(l*2048 + j*64) % 4096}")
        return VM.issue()
    wtag = {}; wslot = {}
    wload_n = [0]
    pool = [(("a", 160 + 4 * i), NM) for i in range(16)]
    if P["DEEP"]:
        for j in (2, 1, 0):
            if P["DEEP"] >= 2 and j >= P["DEEP"] - 1: continue
            pool += [(("a", x0r(j, bt)), M(0, 7 + 2 * j, 3) if P["DEEP"] < 2 else NM) for bt in range(8)]
    def last_use(f): return 32 * (f // 4) + 28 + f % 4
    def wload():
        f = wload_n[0]
        if f >= 3 * 256: return 0
        while pool and pool[0][1] <= last_use(f): pool.pop(0)
        if not pool: return 0
        sl = pool.pop(0)
        wslot[f] = sl
        wload_n[0] += 1
        if P['NOW'] and f >= 16:
            wtag[f] = None; return 0
        k = f % 4
        e(f"buffer_load_dwordx4 {rng(*sl[0])}, v{vL0}, {SWS}, s{sWOFF} offen offset:{k*1024}")
        wtag[f] = VM.issue()
        n = 1
        if k == 3:
            e(f"s_add_u32 s{sWOFF}, s{sWOFF}, 4096"); n += 1
        return n
    def x0_io(ph, ksl): return ph * 256 + ksl * 64 if ph < 4 else ksl * 256 + (ph - 4) * 64
    def dma_x0_m0(ph, ksl, i):
        e(f"s_add_u32 m0, s{sW2048}, {(ph % 4)*32768 + ksl*8192 + i*1024 - x0_io(ph, ksl)}")
    def dma_x0_ld(ph, ksl, i):
        so = (sXOTH if ph < 4 else sXOWN) + i
        e(f"buffer_load_dwordx4 v{vXR}, {SX0}, s{so} offen offset:{x0_io(ph, ksl)} lds")
        return VM.issue()
    blk_tag = {}
    blk_lg = {}
    st_tag = {}

    btags = [bias_load(0, j) for j in range(4)]
    def dma_now(ph, js):
        t = None
        for i in range(2):
            for j in js:
                dma_x0_m0(ph, j, i); e("s_nop 0"); t = dma_x0_ld(ph, j, i)
        return t
    t_b0a = dma_now(0, (0, 1))
    for _ in range(4): wload()
    t_b0b = dma_now(0, (2, 3))
    for _ in range(12): wload()
    for ph in range(1, P["DLEAD"]):
        blk_tag[(0, ph)] = dma_now(ph, (0, 1, 2, 3))
    def code_touch(q):
        if q > 11: return 0
        e(f"s_add_u32 s96, s92, L_q{q}-L_pc"); e("s_addc_u32 s97, s93, 0")
        e("s_load_dword s98, s[96:97], 0")
        return 3
    if P["CPF"]:
        e("s_getpc_b64 s[92:93]")
        e("L_pc:")
        e(f"s_lshr_b32 s94, s2, 3"); e(f"s_lshl_b32 s94, s94, 2"); e(f"s_add_u32 s94, s94, s{sW}")
        e(f"s_lshl_b32 s94, s94, 7")
        e("s_add_u32 s92, s92, s94"); e("s_addc_u32 s93, s93, 0")
        for q in range(P["CPF"]): code_touch(q)
    e(f"s_add_u32 s{sXO}, s3, s{sBOFF}")
    for bt in range(1, 8): e(f"s_add_u32 s{sXO+bt}, s{sXO}, {bt*32768}")
    e(f"s_lshl_b32 s{sFLAG}, s2, 7"); e(f"s_add_u32 s{sFLAG}, s{sFLAG}, {FLAG_OFF}")
    e(f"s_xor_b32 s{sPFLAG}, s{sFLAG}, {8*128}")
    e(f"s_mul_i32 s{sXST}, s2, {P['XSTR']}"); e(f"s_add_u32 s{sXST}, s{sXST}, {X_OFF}")
    e(f"s_xor_b32 s{sXLD}, s2, 8"); e(f"s_mul_i32 s{sXLD}, s{sXLD}, {P['XSTR']}"); e(f"s_add_u32 s{sXLD}, s{sXLD}, {X_OFF}")
    e(f"s_add_u32 s{sXLD}, s{sXLD}, s{sW8192}")
    for k in range(1, 4): e(f"s_add_u32 s{sXST+k}, s{sXST}, {(k//2)*32768 + (k%2)*4096}")
    UB = T + 16
    for j in range(4):
        wait(vm=btags[j])
        for h in range(2):
            for d in range(2):
                e(f"v_lshlrev_b32 v{UB+2*d}, 16, v{T+4*j+2*h+d}")
                e(f"v_and_b32 v{UB+2*d+1}, s{sMASK}, v{T+4*j+2*h+d}")
            for r in range(4): e(f"v_add_f32 v{UB+r}, 1.0, v{UB+r}")
            for bt in range(8):
                k, b = acc(2 * j + h, bt)
                for r in range(4):
                    e(f"v_mov_b32 v{b+r}, v{UB+r}" if k == "v" else f"v_accvgpr_write_b32 a{b+r}, v{UB+r}")
    wait(vm=t_b0a)
    e("s_barrier")
    btag = {}
    def bread(l, s, c, bt):
        kap = (s % 2) * 2 + c
        off = ((s // 2) % 2) * 32768 + bt * 1024
        e(f"ds_read_b128 {rng('a', bop(l, s, c, bt))}, v{vK+kap} offset:{off}")
        btag[(c, bt)] = LG.issue()
    for bt in range(8):
        for c in range(2): bread(0, 0, c, bt)

    tasks = []
    def add_task(ready, deadline, items): tasks.append([ready, deadline, list(items)])
    pre_ev = {}; post_ev = {}
    def at_pre(m, f): pre_ev.setdefault(m, []).append(f)
    def at_post(m, f): post_ev.setdefault(m, []).append(f)

    def sched_dma(l, ph, m0, spread):
        if P['NODMA']: return
        if l == 0:
            seq = [(j, i) for i in range(2) for j in range(4)]
            for n, (j, i) in enumerate(seq):
                m = m0 + n * spread
                at_pre(m, lambda j=j, i=i: (dma_x0_m0(ph, j, i), 1)[1])
                def ld(j=j, i=i):
                    blk_tag[(l, ph)] = dma_x0_ld(ph, j, i); return 1
                at_post(m, ld)
        else:
            j = ph % 4
            for n in range(8):
                m = m0 + n * spread
                if n % 4 == 0:
                    def setm(n=n):
                        e(f"s_add_u32 m0, s{sW8192}, {j*32768 + (n//4)*4096}")
                        if P['XSMALL'] == 2: e(f"s_add_u32 s{sTMP2}, s{sXLD}, {(j%2)*32768 + (n//4)*4096}")
                        else: e(f"s_add_u32 s{sTMP2}, s{sXLD}, {(l-1)*256*P['XSTR'] + j*32768 + (n//4)*4096}")
                        return 2
                    at_pre(m, setm)
                def ld(n=n):
                    e(f"buffer_load_dwordx4 v{vL0}, {SWS}, s{sTMP2} offen offset:{(n%4)*1024} {P['XSC']} lds")
                    blk_tag[(l, ph)] = VM.issue(); return 1
                at_post(m, ld)
    for ph in range(P["DLEAD"], 8):
        sched_dma(0, ph, M(0, 2 * (ph - P["DLEAD"])) + P["DOFF"], P["DSPREAD"])
    x0l_lg = [None]
    for bt in range(8):
        def wr(bt=bt):
            e(f"ds_write_b128 v{vLX}, {rng('a', breg(0, bt))} offset:{bt*1024}")
            x0l_lg[0] = LG.issue(); return 1
        at_post(M(0, 14, 1) + 1 + bt * 6, wr)
    for l in range(3):
        for ph in (1, 3, 5, 7):
            if l == 2 and ph == 7: continue
            for k in range(4):
                def tg(k=k, l=l, ph=ph):
                    if l == 0 and ph == 3:
                        e(f"v_xor_b32 v{vK+k}, {k*8192}, v{vW0}")
                    else:
                        e(f"v_xor_b32 v{vK+k}, 0x10000, v{vK+k}")
                    return 1
                at_post(M(l, 2 * ph + 1, 2, 6) + k, tg)
    ptag = {}
    spins = []
    for l in (1, 2):
        for j in range(4):
            for st in range(2):
                for n in range(4):
                    bt = st * 4 + n
                    def xs(l=l, j=j, st=st, bt=bt):
                        if P['NOST']: return 0
                        w_ = wait(lg=btag[(0, bt)])
                        if P['XSMALL'] == 2: e(f"buffer_store_dwordx4 {rng('a', breg(0, bt))}, v{vW0}, {SWS}, s{sXST + (j%2)*2 + bt//4} offen offset:{(bt%4)*1024} {P['SSC']}")
                        elif P['XSMALL']: e(f"buffer_store_dwordx4 {rng('a', breg(0, bt))}, v{vW0}, {SWS}, s{sXST} offen offset:{(bt%4)*1024} {P['SSC']}")
                        else: e(f"buffer_store_dwordx4 {rng('a', breg(0, bt))}, v{vK+2*st}, {SWS}, s{sXST + (j%2)*2 + bt//4} offen offset:{(bt%4)*1024} {P['SSC']}")
                        st_tag[(l, j)] = VM.issue(); return 1 + w_
                    m = M(l, 2 * j + st) + P["STOFF"] + n * P["STSPREAD"] + (16 if st else 0)
                    assert m < M(l, 2 * j + st, 2, 6)
                    at_post(m, xs)
            val = 4 * (l - 1) + j + 1
            mchk = M(l, 2 * j + 4) + P["XCHK"]
            if not P["NOSYNC"]:
                def setflag(val=val):
                    e(f"s_cmp_lg_u32 s{sW}, 0"); e(f"s_cbranch_scc1 L_nf{val}")
                    e(f"v_mov_b32 v{vB+1}, {val}"); e("s_mov_b64 exec, 1")
                    e(f"buffer_store_dword v{vB+1}, off, {SWS}, s{sFLAG} sc1")
                    e("s_mov_b64 exec, -1")
                    e(f"L_nf{val}:")
                    return 2
                at_post(M(l, 2 * j + 3, 3), setflag)
                def poll(val=val):
                    e(f"buffer_load_dword v{vP}, off, {SWS}, s{sPFLAG} sc1")
                    ptag[val] = VM.issue(); return 1
                at_post(mchk - P["POLL_M"], poll)
                def chk(val=val):
                    wait(vm=ptag[val])
                    e(f"v_readfirstlane_b32 s{sTMP}, v{vP}")
                    e(f"s_cmp_lt_u32 s{sTMP}, {val}"); e(f"s_cbranch_scc1 L_spin{val}")
                    e(f"L_back{val}:")
                    return 3
                at_post(mchk, chk)
                spins.append(val)
            sched_dma(l, 4 + j, mchk + 1, P["XDSPREAD"])
        if l == 1 and P['XSMALL'] != 2:
            def bump():
                for k in range(4): e(f"s_add_u32 s{sXST+k}, s{sXST+k}, {256*P['XSTR']}")
                return 4
            at_post(M(1, 9, 1), bump)
    for l in (1, 2):
        sb = P["BIAS_S"]
        bt_tags = {}
        for j in range(4):
            def ld(j=j, l=l):
                if l == 2 and j == 0: e(f"s_add_u32 s{sBOFF}, s{sBOFF}, 4096")
                bt_tags[j] = bias_load(l, j); return 1
            at_post(M(l, sb - 1, 1, j), ld)
        for j in range(4):
            items = []
            for h in range(2):
                def first(j=j, h=h): wait(vm=bt_tags[j]); e(f"v_lshlrev_b32 v{UB}, 16, v{T+4*j+2*h}")
                items.append(first)
                items.append(lambda j=j, h=h: e(f"v_and_b32 v{UB+1}, s{sMASK}, v{T+4*j+2*h}"))
                items.append(lambda j=j, h=h: e(f"v_lshlrev_b32 v{UB+2}, 16, v{T+4*j+2*h+1}"))
                items.append(lambda j=j, h=h: e(f"v_and_b32 v{UB+3}, s{sMASK}, v{T+4*j+2*h+1}"))
                for bt in range(8):
                    k, b = acc(2 * j + h, bt)
                    if k == "v":
                        for r in range(4):
                            items.append(lambda b=b, r=r: e(f"v_add_f32 v{b+r}, v{b+r}, v{UB+r}"))
                    else:
                        for r in range(4): items.append(lambda b=b, r=r: e(f"v_accvgpr_read_b32 v{T+r}, a{b+r}"))
                        for r in range(4): items.append(lambda r=r: e(f"v_add_f32 v{T+r}, v{T+r}, v{UB+r}"))
                        for r in range(4): items.append(lambda b=b, r=r: e(f"v_accvgpr_write_b32 a{b+r}, v{T+r}"))
            add_task(M(l, sb, j + 1) + 4, M(l, sb + 1, j) - 1, items)
    xl_tag = {}
    U = T + 12; A = T + 16
    for l in range(3):
        last = l == 2
        for u in range(32):
            j, bt = divmod(u, 8)
            ts = T + 4 * (u % 3)
            items = []
            def xl_prefetch(uu):
                def f():
                    wait(lg=x0l_lg[0])
                    e(f"ds_read_b128 {rng('v', T + 4*(uu % 3))}, v{vLX} offset:{(uu % 8)*1024}")
                    xl_tag[uu] = LG.issue()
                return f
            if j < 3:
                for d in range(4): items.append(lambda d=d, j=j, bt=bt, ts=ts: e(f"v_accvgpr_read_b32 v{ts+d}, a{x0r(j, bt)+d}"))
            for h in range(2):
                k, b = acc(2 * j + h, bt)
                def first(h=h, ts=ts, u=u, j=j):
                    if j == 3: wait(lg=xl_tag[u])
                    e(f"v_lshlrev_b32 v{U}, 16, v{ts+2*h}")
                items.append(first)
                items.append(lambda h=h, ts=ts: e(f"v_and_b32 v{U+1}, s{sMASK}, v{ts+2*h}"))
                items.append(lambda h=h, ts=ts: e(f"v_lshlrev_b32 v{U+2}, 16, v{ts+2*h+1}"))
                items.append(lambda h=h, ts=ts: e(f"v_and_b32 v{U+3}, s{sMASK}, v{ts+2*h+1}"))
                if h == 0 and 24 <= u + 2 < 32: items.append(xl_prefetch(u + 2))
                for r in range(4):
                    if k == "v":
                        items.append(lambda b=b, r=r: e(f"v_mul_f32 v{U+r}, v{U+r}, v{b+r}"))
                    else:
                        items.append(lambda b=b, r=r: e(f"v_accvgpr_read_b32 v{A+r}, a{b+r}"))
                        items.append(lambda r=r: e(f"v_mul_f32 v{U+r}, v{U+r}, v{A+r}"))
                items.append(lambda h=h, ts=ts: e(f"v_cvt_pk_bf16_f32 v{ts+2*h}, v{U}, v{U+1}"))
                items.append(lambda h=h, ts=ts: e(f"v_cvt_pk_bf16_f32 v{ts+2*h+1}, v{U+2}, v{U+3}"))
            if last:
                def st(j=j, bt=bt, ts=ts):
                    if P['NOOUT'] == 1 and not (j == 3 and bt == 7): return
                    if P['NOOUT'] == 2:
                        e(f"buffer_store_dwordx4 {rng('v', ts)}, v{vW0}, {SWS}, s{sXST + (j%2)*2 + bt//4} offen offset:{(bt%4)*1024}")
                    else: e(f"buffer_store_dwordx4 {rng('v', ts)}, v{vXR}, {SOUT}, s{sXO+bt} offen offset:{j*64}")
                    VM.issue()
                items.append(st)
            else:
                def dw(j=j, bt=bt, ts=ts, l=l):
                    off = j * 32768 + bt * 1024
                    e(f"ds_write_b128 v{vW0 if off < 65536 else vW1}, {rng('v', ts)} offset:{off % 65536}")
                    blk_lg[(l + 1, j)] = LG.issue()
                items.append(dw)
            ready = M(l, 15, j, bt) + 8
            dl = M(l + 1, 0, j, bt) if not last else NM + 1
            if j == 0 and not last: dl = min(dl, M(l, 15, 3))
            add_task(ready, dl, items)
    tasks.sort(key=lambda t: (t[0], t[1]))

    def run_items(m, n):
        k = 0
        while k < n and tasks and tasks[0][0] <= m:
            t = tasks[0]
            t[2].pop(0)(); k += 1
            if not t[2]: tasks.pop(0)
        return k
    def flush_deadlines(m):
        lastidx = -1
        for i, t in enumerate(tasks):
            if t[1] <= m: lastidx = i
            if t[0] > m: break
        n = 0
        for _ in range(lastidx + 1):
            t = tasks.pop(0)
            assert t[0] <= m, (t[0], m)
            for f in t[2]: f(); n += 1
        return n

    stall = 0
    for m in range(NM):
        l, r = divmod(m, 2048); s, r = divmod(r, 128); rp, r = divmod(r, 32); bt, sub = divmod(r, 4); h, c = divmod(sub, 2)
        ph = s // 2
        npre = 0
        stall += flush_deadlines(m)
        if m % 512 == 0: e(f"L_q{m//512}:")
        if P["CPF"] and m % 512 == 33: npre += code_touch(m // 512 + P["CPF"])
        if P["STAMPS"] == 1 and r == 0 and rp == 0 and s % 4 == 0: stamp()
        if P["STAMPS"] >= 2 and r == 0 and rp == 0 and l == P["STAMPS"] - 2 and s < 14: stamp()
        if r == 0 and rp == 3 and (s % 2 == 1 or (l == 0 and s == 0)) and not (l == 2 and s == 15):
            if s % 2 == 1:
                nl, nph = (l, ph + 1) if ph < 7 else (l + 1, 0)
                vms = [t for t in (blk_tag.get((nl, nph)), st_tag.get((l, ph - 1))) if t is not None]
                lgt = blk_lg.get((nl, nph))
                wait(vm=max(vms) if vms else None, lg=lgt)
            else:
                wait(vm=t_b0b)
            if not P["NOBAR"]: e("s_barrier")
            npre += 2
        for f in pre_ev.get(m, []): npre += f()
        g = m // 32
        vmt = wtag[g * 4 + 3] if r == 0 else None
        lgt = btag[(1, bt)] if (rp == 0 and sub == 0) else None
        npre += wait(vm=vmt, lg=lgt)
        k, b = acc(2 * rp + h, bt)
        d = rng(k, b)
        e(f"v_mfma_f32_16x16x32_bf16 {d}, {rng(*wslot[g*4 + sub][0])}, {rng('a', bop(l, s, c, bt))}, {d}")
        npost = 0
        if bt == 7:
            pool.append(wslot[g * 4 + sub])
            npost += wload()
        elif m % P["RAMP"] == 1:
            npost += wload()
        if rp == 3 and h == 1 and not (l == 2 and s == 15) and not P['NOJIT']:
            nl, ns = (l, s + 1) if s < 15 else (l + 1, 0)
            bread(nl, ns, c, bt); npost += 1
        for f in post_ev.get(m, []): npost += f()
        run_items(m, CAP - npost - npre)
    e("s_nop 7")
    n = 0
    while tasks: n += run_items(NM + 100, 1000)
    sys.stderr.write(f"forced items {stall}, tail items {n}\n")
    if P["STAMPS"]:
        stamp()
        e("s_waitcnt lgkmcnt(0)")
        ns = nstamp[0]
        assert ns <= 16
        for i in range(ns): e(f"v_mov_b32 v{32+i}, s{sSTAMP+2*i}")
        e(f"s_lshl_b32 s{sTMP}, s2, 8"); e(f"s_lshl_b32 s3, s{sW}, 6"); e(f"s_add_u32 s{sTMP}, s{sTMP}, s3")
        for i in range(0, 16, 4):
            e(f"buffer_store_dwordx4 {rng('v', 32+i)}, off, {SWS}, s{sTMP} offset:{i*4}")
    e("L_end:")
    e("s_endpgm")
    for val in spins:
        e(f"L_spin{val}:")
        e(f"s_mov_b32 s{sSPIN}, 0x40000")
        e(f"L_spinl{val}:")
        e("s_sleep 1")
        e(f"buffer_load_dword v{vP}, off, {SWS}, s{sPFLAG} sc1")
        e(f"s_sub_u32 s{sSPIN}, s{sSPIN}, 1")
        e("s_waitcnt vmcnt(0)")
        e(f"v_readfirstlane_b32 s{sTMP}, v{vP}")
        e(f"s_cmp_eq_u32 s{sSPIN}, 0"); e(f"s_cbranch_scc1 L_back{val}")
        e(f"s_cmp_lt_u32 s{sTMP}, {val}"); e(f"s_cbranch_scc1 L_spinl{val}")
        e(f"s_branch L_back{val}")

hdr = f"""; DCN-v2 cross network, 3 layers, B=16384, D=1024, bf16.  Generated by dev/gen.py (hand-written generator).
; @launch kernel={PK} grid=(192,1,1) block=(256,1,1) lds=32768
; @launch kernel={KN} grid=(256,1,1) block=(256,1,1) lds=163840
.amdgcn_target "amdgcn-amd-amdhsa--gfx950"
.text"""
main_kernel()
pack_kernel()
if P['CPF']: e('.fill 4096, 4, 0xBF800000')
def kd(name, vg, ao, sg):
    return f""".p2align 6
.amdhsa_kernel {name}
  .amdhsa_next_free_vgpr {vg}
  .amdhsa_next_free_sgpr {sg}
  .amdhsa_accum_offset {ao}
  .amdhsa_group_segment_fixed_size 0
  .amdhsa_kernarg_size 48
  .amdhsa_user_sgpr_count 2
  .amdhsa_user_sgpr_kernarg_segment_ptr 1
  .amdhsa_system_sgpr_workgroup_id_x 1
.end_amdhsa_kernel
"""
tail = '\n.section .rodata,"a"\n' + kd(KN, 512, 256, 100) + kd(PK, 80, 80, 48)
open(out, "w").write(hdr + "\n" + "\n".join(L) + tail)
```

```python
import sys
out = sys.argv[1]
P = dict(CAP=2, DLEAD=2, DSPREAD=32, STAMPS=0, XSC="sc1", SSC="sc1", POLL_M=64, BIAS_S=11, NOSYNC=0, XDSPREAD=24,
         DOFF=2, NODMA=0, NOBAR=0, NOW=0, NOJIT=0, NOST=0, DEEP=1, XCHK=192, STOFF=5, STSPREAD=20, RAMP=4, XSMALL=0, NOOUT=0, XSTR=131072+1024, CPF=2, ONLY=0, RT=0, WSC=1, PTOUCH=0, HB=2, C12=3, B1M=34, B1S=8, UDS=4, U3D=0, U5D=64, U4D=98, B3=262, B3S=24, M12=14,  NSELF=6, FB=0, WCHK=280, WPOLL=64, B2=132, B2S=16, BLK1E=1, U2M=40, U3M=100, U5M=200, U4M=226)
for kv in sys.argv[2:]:
    k, v = kv.split("=")
    P[k] = v.replace("+", " ").replace("none", "") if k in ("XSC", "SSC") else int(v)
CAP = P["CAP"]

KN = "standalone__cross_network_dcn__recsys_kernel"
PK = "dcn_pack_kernel"
WP_OFF = 0x100000
FLAG_OFF = 0x800000
X_OFF = P.get("XOFF", 0x1000000)
L = []
def e(s): L.append(s)

class Ctr:
    def __init__(s, name, mx): s.name, s.mx, s.n, s.done = name, mx, 0, 0
    def issue(s):
        s.n += 1
        return s.n - 1
    def need(s, idx):
        if idx is None or idx < s.done: return None
        N = min(s.n - 1 - idx, s.mx)
        s.done = max(s.done, s.n - N)
        return N
VM = Ctr("vmcnt", 63); LG = Ctr("lgkmcnt", 15)
def wait(vm=None, lg=None):
    a = VM.need(vm); b = LG.need(lg)
    parts = []
    if a is not None: parts.append(f"vmcnt({a})")
    if b is not None: parts.append(f"lgkmcnt({b})")
    if parts:
        e("s_waitcnt " + " ".join(parts)); return 1
    return 0
def wait_lg_all():
    e("s_waitcnt lgkmcnt(0)"); LG.done = LG.n

vL0, vK, vXR, vW0, vW1, vLX, vB, vP = 0, 1, 5, 6, 7, 8, 9, 10
T = 12
def acc(a, bt):
    if a < 7:
        b = 32 + (a * 8 + bt) * 4
        return ("v", b)
    return ("a", 224 + bt * 4)
def rng(k, b, n=4): return f"{k}[{b}:{b+n-1}]"
def x0r(j, bt): return (j * 8 + bt) * 4
def breg(c, bt): return 96 + (c * 8 + bt) * 4
SX0, SOUT, SWS, SBS, SWR = "s[12:15]", "s[16:19]", "s[20:23]", "s[24:27]", "s[4:7]"
sT, sSELF, sS2 = 8, 10, 11
EPOCH_OFF = 0x810000
sW, sHF, sWOFF, sW2048, sW8192, sMASK, sTMP, sFLAG, sPFLAG, sBOFF, sSPIN, sTMP2 = 28, 29, 30, 31, 32, 33, 34, 35, 36, 37, 38, 39
sXO = 40
sXOWN = 48
sXOTH = 50
sXST = 52
sXLD = 56
sSTAMP = 60
nstamp = [0]
def pstamp():
    if P["STAMPS"] == 9: stamp()
def stamp():
    if P["STAMPS"]:
        e(f"{'s_memrealtime' if P['RT'] else 's_memtime'} s[{sSTAMP+2*nstamp[0]}:{sSTAMP+2*nstamp[0]+1}]"); nstamp[0] += 1
M = lambda l, s, rp=0, bt=0, sub=0: l * 2048 + s * 128 + rp * 32 + bt * 4 + sub
NM = 3 * 2048

def bop(l, s, c, bt):
    if P['DEEP'] < 2 and l == 0 and c == 0 and s in (8, 10, 12): return x0r((s - 8) // 2, bt)
    return breg(c, bt)

def main_kernel():
    e(f".globl {KN}"); e(".p2align 8"); e(f".type {KN},@function"); e(f"{KN}:")
    e("s_cmp_ge_u32 s2, 256"); e("s_cbranch_scc1 L_end")
    if P["PTOUCH"]:
        e("s_getpc_b64 s[92:93]")
        e("v_lshrrev_b32 v12, 6, v0"); e("s_lshr_b32 s94, s2, 3"); e("v_readfirstlane_b32 s95, v12")
        e("s_and_b32 s94, s94, 15"); e("s_lshl_b32 s94, s94, 2"); e("s_add_u32 s94, s94, s95"); e("s_lshl_b32 s94, s94, 7")
        e("s_add_u32 s92, s92, s94"); e("s_addc_u32 s93, s93, 0")
        e("s_load_dword s98, s[92:93], 0")
    e("s_load_dwordx4 s[4:7], s[0:1], 0")
    e("s_load_dwordx4 s[8:11], s[0:1], 16")
    e("s_load_dwordx4 s[40:43], s[0:1], 32")
    stamp()
    e("v_lshrrev_b32 v12, 6, v0")
    e("v_and_b32 v13, 63, v0")
    e(f"v_readfirstlane_b32 s{sW}, v12")
    e(f"v_lshlrev_b32 v{vL0}, 4, v13")
    for k in range(4): e(f"v_add_u32 v{vK+k}, {k*8192}, v{vL0}")
    e(f"v_lshl_add_u32 v{vW0}, v12, 13, v{vL0}")
    e(f"v_add_u32 v{vW1}, 0x10000, v{vW0}")
    e(f"v_add_u32 v{vLX}, 0x20000, v{vW0}")
    e("v_and_b32 v14, 15, v13"); e("v_lshrrev_b32 v15, 4, v13")
    e(f"v_lshlrev_b32 v{vB}, 4, v15")
    e(f"v_lshl_add_u32 v{vXR}, v14, 11, v{vB}")
    e("s_and_b32 s3, s2, 7"); e(f"s_lshr_b32 s{sTMP}, s2, 4"); e(f"s_lshl_b32 s{sTMP}, s{sTMP}, 3"); e(f"s_or_b32 s3, s3, s{sTMP}")
    e(f"s_lshr_b32 s{sHF}, s2, 3"); e(f"s_and_b32 s{sHF}, s{sHF}, 1")
    e(f"s_lshl_b32 s{sW2048}, s{sW}, 11"); e(f"s_lshl_b32 s{sW8192}, s{sW}, 13")
    e(f"s_mov_b32 s{sMASK}, 0xffff0000")
    e("s_lshl_b32 s3, s3, 18")
    e(f"s_lshl_b32 s{sTMP2}, s{sHF}, 2"); e(f"s_add_u32 s{sTMP2}, s{sTMP2}, s{sW}")
    e(f"s_lshl_b32 s{sBOFF}, s{sTMP2}, 8")
    e(f"s_lshl_b32 s{sTMP}, s{sW}, 16"); e(f"s_add_u32 s{sTMP}, s{sTMP}, s3")
    e(f"s_lshl_b32 s{sXOWN}, s{sHF}, 10"); e(f"s_xor_b32 s{sXOTH}, s{sXOWN}, 1024")
    e(f"s_add_u32 s{sXOWN}, s{sXOWN}, s{sTMP}"); e(f"s_add_u32 s{sXOTH}, s{sXOTH}, s{sTMP}")
    e(f"s_add_u32 s{sXOWN+1}, s{sXOWN}, 32768"); e(f"s_add_u32 s{sXOTH+1}, s{sXOTH}, 32768")
    e(f"s_mul_i32 s{sWOFF}, s{sTMP2}, {3*8*32768}"); e(f"s_add_u32 s{sWOFF}, s{sWOFF}, {WP_OFF + P['NSELF']*8192}")
    e("s_waitcnt lgkmcnt(0)")
    pstamp()
    for (s, ptr, n) in ((24, 8, 6144), (12, 4, 0x2000000), (20, 42, 0x10000000), (16, 10, 0x2000000), (4, 6, 0x600000)):
        e(f"s_mov_b32 s{s}, s{ptr}"); e(f"s_and_b32 s{s+1}, s{ptr+1}, 0xffff"); e(f"s_mov_b32 s{s+2}, {hex(n)}"); e(f"s_mov_b32 s{s+3}, 0x20000")

    def bias_load(l, j):
        e(f"buffer_load_dwordx4 {rng('v', T+4*j)}, v{vB}, {SBS}, s{sBOFF} offen offset:{(l*2048 + j*64) % 4096}")
        return VM.issue()
    wtag = {}; wslot = {}; wlg = {}
    wok = [0]
    wload_n = [0]
    pool = [(("a", 160 + 4 * i), NM) for i in range(16)]
    if P["DEEP"]:
        for j in (2, 1, 0):
            if P["DEEP"] >= 2 and j >= P["DEEP"] - 1: continue
            pool += [(("a", x0r(j, bt)), M(0, 7 + 2 * j, 3) if P["DEEP"] < 2 else NM) for bt in range(8)]
    def last_use(f): return 32 * (f // 4) + 28 + f % 4
    def wload():
        f = wload_n[0]
        if f >= wok[0]: return 0
        while pool and pool[0][1] <= last_use(f): pool.pop(0)
        if not pool: return 0
        sl = pool.pop(0)
        wslot[f] = sl
        wload_n[0] += 1
        if P['NOW'] and f >= 16:
            wtag[f] = None; return 0
        k = f % 4
        e(f"buffer_load_dwordx4 {rng(*sl[0])}, v{vL0}, {SWS}, s{sWOFF} offen offset:{k*1024}{' sc1' if P['WSC'] else ''}")
        wtag[f] = VM.issue()
        n = 1
        if k == 3:
            e(f"s_add_u32 s{sWOFF}, s{sWOFF}, 4096"); n += 1
        return n
    def x0_io(ph, ksl): return ph * 256 + ksl * 64 if ph < 4 else ksl * 256 + (ph - 4) * 64
    def dma_x0_m0(ph, ksl, i):
        e(f"s_add_u32 m0, s{sW2048}, {(ph % 4)*32768 + ksl*8192 + i*1024 - x0_io(ph, ksl)}")
    def dma_x0_ld(ph, ksl, i):
        so = (sXOTH if ph < 4 else sXOWN) + i
        e(f"buffer_load_dwordx4 v{vXR}, {SX0}, s{so} offen offset:{x0_io(ph, ksl)} lds")
        return VM.issue()
    blk_tag = {}
    blk_lg = {}
    st_tag = {}

    UB = T + 16
    vSG, vCG, vCT, vFL, vTR, vTR4 = 12, 13, 14, 15, 16, 20
    def code_touch(q):
        if q > 11: return 0
        e(f"s_add_u32 s96, s92, L_q{q}-L_pc"); e("s_addc_u32 s97, s93, 0")
        e("s_load_dword s98, s[96:97], 0")
        return 3
    e(f"s_add_u32 s96, s42, {EPOCH_OFF}"); e("s_addc_u32 s97, s43, 0")
    e(f"s_load_dwordx2 s[{sT}:{sT+1}], s[96:97], 0")
    e("v_mov_b32 v24, v12"); e("v_mov_b32 v25, v13"); e("v_mov_b32 v26, v14"); e("v_mov_b32 v27, v15")
    e("v_lshrrev_b32 v28, 2, v25"); e("v_and_b32 v29, 3, v25")
    e(f"v_lshlrev_b32 v{vCG}, 11, v28"); e(f"v_lshl_add_u32 v{vCG}, v29, 4, v{vCG}")
    e(f"s_lshr_b32 s44, s2, 3"); e("s_and_b32 s45, s2, 7")
    e("s_lshl_b32 s46, s44, 16"); e("s_lshl_b32 s47, s45, 8"); e("s_add_u32 s46, s46, s47")
    e(f"s_lshl_b32 s47, s{sW}, 6"); e("s_add_u32 s100, s46, s47")
    coop_tag = {}
    def coop_dma(l, n):
        e(f"s_add_u32 m0, s{sW2048}, {(32768 if l == 0 else 131072) + l*8192 + n*1024}")
        e(f"s_add_u32 s{sS2}, s100, {l*0x200000 + n*32768}")
        e(f"buffer_load_dwordx4 v{vCG}, {SWR}, s{sS2} offen lds"); coop_tag[l] = VM.issue()
        return 3
    coop_dma(0, 0); coop_dma(0, 1)
    pstamp()
    e(f"v_lshlrev_b32 v30, 2, v27"); e("v_xor_b32 v30, v30, v26"); e("v_lshlrev_b32 v30, 4, v30")
    e(f"v_lshl_add_u32 v{vSG}, v27, 11, v30")
    e(f"s_xor_b32 s{sSELF}, s{sHF}, 1"); e(f"s_lshl_b32 s{sSELF}, s{sSELF}, 20"); e(f"s_add_u32 s{sSELF}, s{sSELF}, s{sBOFF}")
    REG = {0: 2, 1: 3, 2: 4, 3: 2, 4: 4, 5: 3}
    self_tag = {}; self_lg = {}
    def self_dma1(n, ch):
        e(f"s_add_u32 m0, s{sW2048}, {REG[n]*32768 + (ch>>1)*8192 + (ch&1)*1024}")
        e(f"s_add_u32 s{sS2}, s{sSELF}, {n*65536 + ch*8192}")
        e(f"buffer_load_dwordx4 v{vSG}, {SWR}, s{sS2} offen lds"); self_tag[n] = VM.issue()
        return 3
    def self_dma(n):
        for ch in range(8): self_dma1(n, ch)
    def self_read1(n, a, u):
        j, h = divmod(a, 2)
        f = ((n // 2) * 4 + j) * 4 + 2 * h + n % 2
        w_ = 0
        if a == 0 and u == 0: w_ = wait(vm=self_tag[n])
        if u == 0:
            while pool[0][1] <= last_use(f): pool.pop(0)
            wslot[f] = pool.pop(0)
        k, b = wslot[f][0]
        R = REG[n]
        e(f"ds_read_b64_tr_b16 {rng(k, b+2*u, 2)}, v{(vTR4 if R == 4 else vTR)+j} offset:{(R % 2)*32768 + u*1024 + 8*h}")
        self_lg[n] = wlg[f] = LG.issue(); wtag[f] = None
        return 1 + w_
    half_tag = {}
    def blk_dma(ph, hv):
        for ksl in (2 * hv, 2 * hv + 1):
            for i in range(2):
                dma_x0_m0(ph, ksl, i); e("s_nop 0")
                blk_tag[(0, ph)] = dma_x0_ld(ph, ksl, i)
        if hv == 0: half_tag[ph] = blk_tag[(0, ph)]
    self_dma(0); self_dma(1); blk_dma(0, 0)
    pstamp()
    e("v_bfe_u32 v28, v25, 2, 2")
    e(f"v_lshlrev_b32 v30, 11, v24"); e("v_lshl_add_u32 v30, v29, 4, v30")
    e("v_lshrrev_b32 v31, 1, v27"); e(f"v_lshl_add_u32 v{vCT}, v31, 10, v30")
    e("v_and_b32 v31, 1, v27"); e("v_lshl_add_u32 v31, v31, 3, v28"); e(f"v_lshl_add_u32 v{vCT}, v31, 6, v{vCT}")
    e(f"v_add_u32 v{vCT}, 0x8000, v{vCT}")
    e("v_lshl_add_u32 v30, v27, 13, v30"); e("v_lshl_add_u32 v30, v28, 8, v30"); e("v_add_u32 v30, 0x10000, v30")
    for j in range(4):
        e(f"v_xor_b32 v31, {j}, v28"); e(f"v_lshl_add_u32 v{vTR+j}, v31, 6, v30"); e(f"v_add_u32 v{vTR4+j}, 0x10000, v{vTR+j}")
    e("s_lshr_b32 s40, s44, 2"); e("s_and_b32 s41, s44, 3"); e("s_and_b32 s42, s45, 4")
    e("s_xor_b32 s42, s40, s42")
    e("s_and_b32 s43, s42, 3")
    e("s_and_b32 s46, s45, 3"); e("s_xor_b32 s46, s43, s46")
    e("s_and_b32 s47, s42, 4"); e("s_or_b32 s47, s47, s41")
    def dcalc(d, ph, ka):
        e(f"s_lshl_b32 s{d}, s{ph}, 15")
        e(f"s_lshr_b32 s{sTMP}, s{ka}, 1"); e(f"s_lshl_b32 s{sTMP}, s{sTMP}, 14"); e(f"s_add_u32 s{d}, s{d}, s{sTMP}")
        e(f"s_and_b32 s{sTMP}, s{ka}, 1"); e(f"s_lshl_b32 s{sTMP}, s{sTMP}, 10"); e(f"s_add_u32 s{d}, s{d}, s{sTMP}")
    dcalc(57, 47, 46)
    e("s_xor_b32 s47, s47, 4")
    e("s_cmp_lt_u32 s42, 4")
    e("s_cselect_b32 s47, s47, s43"); e("s_cselect_b32 s46, s46, s41")
    dcalc(58, 47, 46)
    e(f"s_mul_i32 s40, s45, {3*262144}"); e(f"s_lshl_b32 s41, s{sW}, 12"); e("s_add_u32 s40, s40, s41"); e(f"s_add_u32 s40, s40, {WP_OFF}")
    e("s_add_u32 s57, s40, s57"); e("s_add_u32 s58, s40, s58")
    e("s_add_u32 s57, s57, 262144"); e("s_add_u32 s99, s57, 262144")
    CD = {0: 58, 1: 57, 2: 99}
    e("s_getpc_b64 s[92:93]")
    e("L_pc:")
    e(f"s_lshr_b32 s94, s2, 3"); e(f"s_lshl_b32 s94, s94, 2"); e(f"s_add_u32 s94, s94, s{sW}")
    e(f"s_lshl_b32 s94, s94, 7")
    e("s_add_u32 s92, s92, s94"); e("s_addc_u32 s93, s93, 0")
    for q in range(P["CPF"]): code_touch(q)
    e(f"s_xor_b32 s{sPFLAG}, s2, 8")
    e(f"s_mul_i32 s{sXST}, s2, {P['XSTR']}"); e(f"s_add_u32 s{sXST}, s{sXST}, {X_OFF}")
    e(f"s_mul_i32 s{sXLD}, s{sPFLAG}, {P['XSTR']}"); e(f"s_add_u32 s{sXLD}, s{sXLD}, {X_OFF}")
    e(f"s_add_u32 s{sXLD}, s{sXLD}, s{sW8192}")
    for k in range(1, 4): e(f"s_add_u32 s{sXST+k}, s{sXST}, {(k//2)*32768 + (k%2)*4096}")
    e(f"s_lshl_b32 s{sFLAG}, s2, 7"); e(f"s_add_u32 s{sFLAG}, s{sFLAG}, {FLAG_OFF}")
    e(f"s_xor_b32 s{sPFLAG}, s{sFLAG}, {8*128}")
    e(f"s_lshr_b32 s59, s{sBOFF}, 1"); e(f"s_add_u32 s59, s59, {FLAG_OFF}")
    stamp()
    ct = {}; pack_tag = {}
    def creg(l, h): return ('a', 96 + h * 4) if l == 0 else ('v', 16 + ((l - 1) * 2 + h) * 4)
    def coop_read(l, h, u):
        w_ = wait(vm=coop_tag[l])
        k, b = creg(l, h)
        e(f"ds_read_b64_tr_b16 {rng(k, b + 2*u, 2)}, v{vCT} offset:{l*8192 + u*256 + h*8}")
        ct[(l, h)] = LG.issue(); return 1 + w_
    def coop_store(l, h):
        w_ = wait(lg=ct[(l, h)])
        e(f"buffer_store_dwordx4 {rng(*creg(l, h))}, v{vL0}, {SWS}, s{CD[l]} offen offset:{h*2048} sc1")
        pack_tag[l] = VM.issue(); return 1 + w_
    wait(vm=coop_tag[0])
    pstamp()
    for h in range(2):
        for u in range(2): coop_read(0, h, u)
    for h in range(2): coop_store(0, h)
    e(f"v_add_u32 v{vCT}, 0x18000, v{vCT}")
    blk_dma(0, 1); self_dma(2)
    pstamp()
    wait_lg_all()
    e(f"s_add_u32 s{sT}, s{sT}, 16"); e(f"s_addc_u32 s{sT+1}, s{sT+1}, 0")
    e(f"s_and_b32 s{sT}, s{sT}, -16"); e(f"s_and_b32 s{sT+1}, s{sT+1}, 0x7fffffff")
    e(f"s_add_u32 s{sXO}, s3, s{sBOFF}")
    for bt in range(1, 8): e(f"s_add_u32 s{sXO+bt}, s{sXO}, {bt*32768}")
    pstamp()
    for n in (0, 1):
        for a in range(8):
            for u in range(2): self_read1(n, a, u)
    pstamp()
    wait(vm=half_tag[0] if P["HB"] else blk_tag[(0, 0)])
    if P["FB"] == 0: wait(vm=pack_tag[0])
    e("s_barrier")
    stamp()
    def setflag(val):
        e(f"s_cmp_lg_u32 s{sW}, 0"); e(f"s_cbranch_scc1 L_nf{val}")
        e(f"s_add_u32 s{sTMP}, s{sT}, {val}")
        e(f"v_mov_b32 v{vP}, s{sTMP}"); e(f"v_mov_b32 v{vP+1}, s{sT+1}"); e("s_mov_b64 exec, 1")
        e(f"buffer_store_dwordx2 {rng('v', vP, 2)}, off, {SWS}, s{sFLAG} sc1")
        e("s_mov_b64 exec, -1")
        e(f"L_nf{val}:")
        return 2
    if P["FB"] == 0: setflag(0)
    wload_n[0] = 8 * P["NSELF"]
    btag = {}
    def bread(l, s, c, bt):
        kap = (s % 2) * 2 + c
        off = ((s // 2) % 2) * 32768 + bt * 1024
        e(f"ds_read_b128 {rng('a', bop(l, s, c, bt))}, v{vK+kap} offset:{off}")
        btag[(c, bt)] = LG.issue()
    for bt in range(8):
        for c in range(2): bread(0, 0, c, bt)

    tasks = []
    def add_task(ready, deadline, items): tasks.append([ready, deadline, list(items)])
    pre_ev = {}; post_ev = {}
    def at_pre(m, f): pre_ev.setdefault(m, []).append(f)
    def at_post(m, f): post_ev.setdefault(m, []).append(f)

    def sched_dma(l, ph, m0, spread):
        if P['NODMA']: return
        if l == 0:
            seq = [(j, i) for j in range(4) for i in range(2)]
            for n, (j, i) in enumerate(seq):
                m = m0 + n * spread
                at_pre(m, lambda j=j, i=i: (dma_x0_m0(ph, j, i), 1)[1])
                def ld(j=j, i=i):
                    blk_tag[(l, ph)] = dma_x0_ld(ph, j, i)
                    if (j, i) == (1, 1): half_tag[ph] = blk_tag[(l, ph)]
                    return 1
                at_post(m, ld)
        else:
            j = ph % 4
            for n in range(8):
                m = m0 + n * spread
                if n % 4 == 0:
                    def setm(n=n):
                        e(f"s_add_u32 m0, s{sW8192}, {j*32768 + (n//4)*4096}")
                        if P['XSMALL'] == 2: e(f"s_add_u32 s{sTMP2}, s{sXLD}, {(j%2)*32768 + (n//4)*4096}")
                        else: e(f"s_add_u32 s{sTMP2}, s{sXLD}, {(l-1)*256*P['XSTR'] + j*32768 + (n//4)*4096}")
                        return 2
                    at_pre(m, setm)
                def ld(n=n):
                    e(f"buffer_load_dwordx4 v{vL0}, {SWS}, s{sTMP2} offen offset:{(n%4)*1024} {P['XSC']} lds")
                    blk_tag[(l, ph)] = VM.issue(); return 1
                at_post(m, ld)
    sched_dma(0, 1, P["B1M"], P["B1S"])
    def sched_sdma(n, prev, m0):
        at_post(m0, lambda: wait(lg=self_lg[prev]))
        for ch in range(8): at_post(m0 + P["UDS"] * ch, lambda ch=ch: self_dma1(n, ch))
    sched_sdma(3, 0, P["U3D"])
    if P["NSELF"] > 4:
        sched_sdma(5, 1, P["U5D"]); sched_sdma(4, 2, P["U4D"])
        assert P["U2M"] + 16 < P["U4D"]
    mc = M(0, P["C12"]) + 10
    at_post(mc, lambda: wait(lg=self_lg[4 if P["NSELF"] > 4 else 2]))
    for i, (l, n) in enumerate([(1, 0), (1, 1), (2, 0), (2, 1)]): at_post(mc + 16 * i, lambda l=l, n=n: coop_dma(l, n))
    for i, (l, h, u) in enumerate([(l, h, u) for l in (1, 2) for h in range(2) for u in range(2)]):
        at_post(mc + 224 + 2 * i, lambda l=l, h=h, u=u: coop_read(l, h, u))
    for i, (l, h) in enumerate([(l, h) for l in (1, 2) for h in range(2)]): at_post(mc + 250 + 16 * i, lambda l=l, h=h: coop_store(l, h))
    PH12 = P["C12"] // 2 + 2
    assert mc + 250 + 48 + 100 < M(0, 2 * PH12 + 1, 3)
    at_post(M(0, 2 * PH12 + 1, 3), lambda: setflag(1))
    for ph in range(P["DLEAD"], 8):
        if ph == 2:
            at_pre(P["B2"], lambda: wait(lg=self_lg[3]))
            sched_dma(0, ph, P["B2"], P["B2S"])
        elif ph == 3 and P["NSELF"] > 4:
            at_pre(P["B3"], lambda: wait(lg=self_lg[5]))
            sched_dma(0, ph, P["B3"], P["B3S"])
        else: sched_dma(0, ph, M(0, 2 * (ph - P["DLEAD"])) + P["DOFF"], P["DSPREAD"])
    def sched_self(n, m0):
        for a in range(8):
            for u in range(2): at_post(m0 + 2 * a + u, lambda a=a, u=u: self_read1(n, a, u))
    sched_self(2, P["U2M"]); sched_self(3, P["U3M"])
    if P["NSELF"] > 4:
        sched_self(5, P["U5M"]); sched_self(4, P["U4M"])
        assert P["U5M"] + 16 < P["B3"]
    assert P["U3M"] + 16 < P["B2"]
    if P["FB"]:
        def fbar():
            wait(vm=pack_tag[0]); e("s_barrier"); return 2 + setflag(0)
        at_pre(P["FB"], fbar)
    wp = [None]
    def wpoll0():
        e(f"v_and_b32 v{vP}, 0x1f0, v{vL0}"); e(f"v_lshlrev_b32 v{vP}, 6, v{vP}")
        e(f"buffer_load_dwordx2 {rng('v', vP, 2)}, v{vP}, {SWS}, s59 offen sc1")
    def wpoll():
        wpoll0(); wp[0] = VM.issue(); return 3
    def wflagchk(val, lab):
        e(f"s_add_u32 s{sTMP}, s{sT}, {val}")
        e(f"v_subrev_u32 v{vP}, s{sTMP}, v{vP}"); e(f"v_xor_b32 v{vP+1}, s{sT+1}, v{vP+1}"); e("s_nop 0")
        e(f"v_cmp_gt_u64 vcc, {16-val}, {rng('v', vP, 2)}"); e("s_nop 3")
        e("s_cmp_lg_u64 vcc, -1"); e(f"s_cbranch_scc1 {lab}")
    def wchk(val):
        wait(vm=wp[0])
        wflagchk(val, f"L_wspin{val}")
        e(f"L_wback{val}:")
        wok[0] = 256 if val == 0 else 768
        return 8
    m12 = M(0, P["M12"], 1) + 16
    for val, mm in ((0, P["WCHK"]), (1, m12)):
        at_post(mm - P["WPOLL"], wpoll)
        at_post(mm, lambda val=val: wchk(val))
    x0l_lg = [None]
    for bt in range(8):
        def wr(bt=bt):
            e(f"ds_write_b128 v{vLX}, {rng('a', breg(0, bt))} offset:{bt*1024}")
            x0l_lg[0] = LG.issue(); return 1
        at_post(M(0, 14, 1) + 1 + bt * 6, wr)
    for l in range(3):
        for ph in (1, 3, 5, 7):
            if l == 2 and ph == 7: continue
            for k in range(4):
                def tg(k=k, l=l, ph=ph):
                    if l == 0 and ph == 3:
                        e(f"v_xor_b32 v{vK+k}, {k*8192}, v{vW0}")
                    else:
                        e(f"v_xor_b32 v{vK+k}, 0x10000, v{vK+k}")
                    return 1
                at_post(M(l, 2 * ph + 1, 2, 6) + k, tg)
    ptag = {}
    def flagchk(val, lab):
        e(f"v_readfirstlane_b32 s{sTMP}, v{vP}"); e(f"v_readfirstlane_b32 s{sS2}, v{vP+1}")
        e(f"s_xor_b32 s{sTMP}, s{sTMP}, s{sT}"); e(f"s_sub_u32 s{sTMP}, s{sTMP}, {val}")
        e(f"s_cmp_lg_u32 s{sS2}, s{sT+1}"); e(f"s_cbranch_scc1 {lab}")
        e(f"s_cmp_gt_u32 s{sTMP}, {15-val}"); e(f"s_cbranch_scc1 {lab}")
    spins = []
    for l in (1, 2):
        for j in range(4):
            for st in range(2):
                for n in range(4):
                    bt = st * 4 + n
                    def xs(l=l, j=j, st=st, bt=bt):
                        if P['NOST']: return 0
                        w_ = wait(lg=btag[(0, bt)])
                        if P['XSMALL'] == 2: e(f"buffer_store_dwordx4 {rng('a', breg(0, bt))}, v{vW0}, {SWS}, s{sXST + (j%2)*2 + bt//4} offen offset:{(bt%4)*1024} {P['SSC']}")
                        elif P['XSMALL']: e(f"buffer_store_dwordx4 {rng('a', breg(0, bt))}, v{vW0}, {SWS}, s{sXST} offen offset:{(bt%4)*1024} {P['SSC']}")
                        else: e(f"buffer_store_dwordx4 {rng('a', breg(0, bt))}, v{vK+2*st}, {SWS}, s{sXST + (j%2)*2 + bt//4} offen offset:{(bt%4)*1024} {P['SSC']}")
                        st_tag[(l, j)] = VM.issue(); return 1 + w_
                    m = M(l, 2 * j + st) + P["STOFF"] + n * P["STSPREAD"] + (16 if st else 0)
                    assert m < M(l, 2 * j + st, 2, 6)
                    at_post(m, xs)
            val = 4 * (l - 1) + j + 2
            mchk = M(l, 2 * j + 4) + P["XCHK"]
            if not P["NOSYNC"]:
                at_post(M(l, 2 * j + 3, 3), lambda val=val: setflag(val))
                def poll(val=val):
                    e(f"buffer_load_dwordx2 {rng('v', vP, 2)}, off, {SWS}, s{sPFLAG} sc1")
                    ptag[val] = VM.issue(); return 1
                at_post(mchk - P["POLL_M"], poll)
                def chk(val=val):
                    wait(vm=ptag[val])
                    flagchk(val, f"L_spin{val}")
                    e(f"L_back{val}:")
                    return 8
                at_post(mchk, chk)
                spins.append(val)
            sched_dma(l, 4 + j, mchk + 1, P["XDSPREAD"])
        if l == 1 and P['XSMALL'] != 2:
            def bump():
                for k in range(4): e(f"s_add_u32 s{sXST+k}, s{sXST+k}, {256*P['XSTR']}")
                return 4
            at_post(M(1, 9, 1), bump)
    for l in (0, 1, 2):
        sb = P["BIAS_S"]
        bt_tags = {}
        for j in range(4):
            def ld(j=j, l=l):
                if l == 2 and j == 0: e(f"s_add_u32 s{sBOFF}, s{sBOFF}, 4096")
                bt_tags[j] = bias_load(l, j); return 1
            at_post(M(l, sb - 1, 1, j), ld)
        for j in range(4):
            items = []
            for h in range(2):
                def first(j=j, h=h): wait(vm=bt_tags[j]); e(f"v_lshlrev_b32 v{UB}, 16, v{T+4*j+2*h}")
                items.append(first)
                items.append(lambda j=j, h=h: e(f"v_and_b32 v{UB+1}, s{sMASK}, v{T+4*j+2*h}"))
                items.append(lambda j=j, h=h: e(f"v_lshlrev_b32 v{UB+2}, 16, v{T+4*j+2*h+1}"))
                items.append(lambda j=j, h=h: e(f"v_and_b32 v{UB+3}, s{sMASK}, v{T+4*j+2*h+1}"))
                for bt in range(8):
                    k, b = acc(2 * j + h, bt)
                    if k == "v":
                        for r in range(4):
                            items.append(lambda b=b, r=r: e(f"v_add_f32 v{b+r}, v{b+r}, v{UB+r}"))
                    else:
                        for r in range(4): items.append(lambda b=b, r=r: e(f"v_accvgpr_read_b32 v{T+r}, a{b+r}"))
                        for r in range(4): items.append(lambda r=r: e(f"v_add_f32 v{T+r}, v{T+r}, v{UB+r}"))
                        for r in range(4): items.append(lambda b=b, r=r: e(f"v_accvgpr_write_b32 a{b+r}, v{T+r}"))
            add_task(M(l, sb, j + 1) + 4, M(l, sb + 1, j) - 1, items)
    xl_tag = {}
    U = T + 12; A = T + 16
    for l in range(3):
        last = l == 2
        for u in range(32):
            j, bt = divmod(u, 8)
            ts = T + 4 * (u % 3)
            items = []
            def xl_prefetch(uu):
                def f():
                    wait(lg=x0l_lg[0])
                    e(f"ds_read_b128 {rng('v', T + 4*(uu % 3))}, v{vLX} offset:{(uu % 8)*1024}")
                    xl_tag[uu] = LG.issue()
                return f
            if j < 3:
                for d in range(4): items.append(lambda d=d, j=j, bt=bt, ts=ts: e(f"v_accvgpr_read_b32 v{ts+d}, a{x0r(j, bt)+d}"))
            for h in range(2):
                k, b = acc(2 * j + h, bt)
                def first(h=h, ts=ts, u=u, j=j):
                    if j == 3: wait(lg=xl_tag[u])
                    e(f"v_lshlrev_b32 v{U}, 16, v{ts+2*h}")
                items.append(first)
                items.append(lambda h=h, ts=ts: e(f"v_and_b32 v{U+1}, s{sMASK}, v{ts+2*h}"))
                items.append(lambda h=h, ts=ts: e(f"v_lshlrev_b32 v{U+2}, 16, v{ts+2*h+1}"))
                items.append(lambda h=h, ts=ts: e(f"v_and_b32 v{U+3}, s{sMASK}, v{ts+2*h+1}"))
                if h == 0 and 24 <= u + 2 < 32: items.append(xl_prefetch(u + 2))
                for r in range(4):
                    if k == "v":
                        items.append(lambda b=b, r=r: e(f"v_mul_f32 v{U+r}, v{U+r}, v{b+r}"))
                    else:
                        items.append(lambda b=b, r=r: e(f"v_accvgpr_read_b32 v{A+r}, a{b+r}"))
                        items.append(lambda r=r: e(f"v_mul_f32 v{U+r}, v{U+r}, v{A+r}"))
                items.append(lambda h=h, ts=ts: e(f"v_cvt_pk_bf16_f32 v{ts+2*h}, v{U}, v{U+1}"))
                items.append(lambda h=h, ts=ts: e(f"v_cvt_pk_bf16_f32 v{ts+2*h+1}, v{U+2}, v{U+3}"))
            if last:
                def st(j=j, bt=bt, ts=ts):
                    if P['NOOUT'] == 1 and not (j == 3 and bt == 7): return
                    if P['NOOUT'] == 2:
                        e(f"buffer_store_dwordx4 {rng('v', ts)}, v{vW0}, {SWS}, s{sXST + (j%2)*2 + bt//4} offen offset:{(bt%4)*1024}")
                    else: e(f"buffer_store_dwordx4 {rng('v', ts)}, v{vXR}, {SOUT}, s{sXO+bt} offen offset:{j*64}")
                    VM.issue()
                items.append(st)
            else:
                def dw(j=j, bt=bt, ts=ts, l=l):
                    off = j * 32768 + bt * 1024
                    e(f"ds_write_b128 v{vW0 if off < 65536 else vW1}, {rng('v', ts)} offset:{off % 65536}")
                    blk_lg[(l + 1, j)] = LG.issue()
                items.append(dw)
            ready = M(l, 15, j, bt) + 8
            dl = M(l + 1, 0, j, bt) if not last else NM + 1
            if j == 0 and not last: dl = min(dl, M(l, 15, 3))
            add_task(ready, dl, items)
    tasks.sort(key=lambda t: (t[0], t[1]))

    def run_items(m, n):
        k = 0
        while k < n and tasks and tasks[0][0] <= m:
            t = tasks[0]
            t[2].pop(0)(); k += 1
            if not t[2]: tasks.pop(0)
        return k
    def flush_deadlines(m):
        lastidx = -1
        for i, t in enumerate(tasks):
            if t[1] <= m: lastidx = i
            if t[0] > m: break
        n = 0
        for _ in range(lastidx + 1):
            t = tasks.pop(0)
            assert t[0] <= m, (t[0], m)
            for f in t[2]: f(); n += 1
        return n

    stall = 0
    for m in range(NM):
        l, r = divmod(m, 2048); s, r = divmod(r, 128); rp, r = divmod(r, 32); bt, sub = divmod(r, 4); h, c = divmod(sub, 2)
        ph = s // 2
        npre = 0
        stall += flush_deadlines(m)
        if m % 512 == 0: e(f"L_q{m//512}:")
        if P["CPF"] and m % 512 == 33: npre += code_touch(m // 512 + P["CPF"])
        if P["STAMPS"] == 1 and r == 0 and rp == 0 and s % 4 == 0: stamp()
        if 2 <= P["STAMPS"] < 9 and r == 0 and rp == 0 and l == P["STAMPS"] - 2 and s < 12: stamp()
        if P["STAMPS"] == 9 and r == 0 and rp == 0 and l == 0 and 1 <= s < 6: stamp()
        if r == 0 and rp == 3 and (s % 2 == 1 or (l == 0 and ph < P["HB"])) and not (l == 2 and s == 15):
            if s % 2 == 1:
                nl, nph = (l, ph + 1) if ph < 7 else (l + 1, 0)
                nb = half_tag[nph] if (nl == 0 and nph < P["HB"]) else blk_tag.get((nl, nph))
                vms = [t for t in (nb, st_tag.get((l, ph - 1)), pack_tag[2] if (l == 0 and ph == PH12) else None) if t is not None]
                lgt = blk_lg.get((nl, nph))
                wait(vm=max(vms) if vms else None, lg=lgt)
            else:
                wait(vm=blk_tag[(0, ph)])
            if not P["NOBAR"]: e("s_barrier")
            npre += 2
        for f in pre_ev.get(m, []): npre += f()
        g = m // 32
        vmt = wtag[g * 4 + 3] if r == 0 else None
        lgt = btag[(1, bt)] if (rp == 0 and sub == 0) else None
        if r == 0:
            lw = [wlg[f] for f in range(g * 4, g * 4 + 4) if f in wlg]
            if lw: lgt = max(lw + ([lgt] if lgt is not None else []))
        npre += wait(vm=vmt, lg=lgt)
        k, b = acc(2 * rp + h, bt)
        d = rng(k, b)
        e(f"v_mfma_f32_16x16x32_bf16 {d}, {rng(*wslot[g*4 + sub][0])}, {rng('a', bop(l, s, c, bt))}, {'1.0' if (l == 0 and s == 0 and c == 0) else d}")
        npost = 0
        if bt == 7:
            pool.append(wslot[g * 4 + sub])
            npost += wload()
        elif m % P["RAMP"] == 1:
            npost += wload()
        if rp == 3 and h == 1 and not (l == 2 and s == 15) and not P['NOJIT']:
            nl, ns = (l, s + 1) if s < 15 else (l + 1, 0)
            bread(nl, ns, c, bt); npost += 1
        for f in post_ev.get(m, []): npost += f()
        run_items(m, CAP - npost - npre)
    e("s_nop 7")
    n = 0
    while tasks: n += run_items(NM + 100, 1000)
    sys.stderr.write(f"forced items {stall}, tail items {n}\n")
    if P["STAMPS"]:
        stamp()
        e("s_waitcnt lgkmcnt(0)")
        ns = nstamp[0]
        assert ns <= 16
        for i in range(ns): e(f"v_mov_b32 v{32+i}, s{sSTAMP+2*i}")
        e(f"s_lshl_b32 s{sTMP}, s2, 8"); e(f"s_lshl_b32 s3, s{sW}, 6"); e(f"s_add_u32 s{sTMP}, s{sTMP}, s3")
        for i in range(0, 16, 4):
            e(f"buffer_store_dwordx4 {rng('v', 32+i)}, off, {SWS}, s{sTMP} offset:{i*4}")
    e("s_cmp_lg_u32 s2, 0"); e("s_cbranch_scc1 L_end")
    e(f"s_cmp_lg_u32 s{sW}, 0"); e("s_cbranch_scc1 L_end")
    e(f"v_mov_b32 v{vP}, s{sT}"); e(f"v_mov_b32 v{vP+1}, s{sT+1}"); e("s_mov_b64 exec, 1")
    e(f"s_mov_b32 s{sTMP}, {EPOCH_OFF}")
    e(f"buffer_store_dwordx2 {rng('v', vP, 2)}, off, {SWS}, s{sTMP}")
    e("L_end:")
    e("s_endpgm")
    for val in spins:
        e(f"L_spin{val}:")
        e(f"s_mov_b32 s{sSPIN}, 0x40000")
        e(f"L_spinl{val}:")
        e("s_sleep 1")
        e(f"buffer_load_dwordx2 {rng('v', vP, 2)}, off, {SWS}, s{sPFLAG} sc1")
        e(f"s_sub_u32 s{sSPIN}, s{sSPIN}, 1")
        e("s_waitcnt vmcnt(0)")
        e(f"s_cmp_eq_u32 s{sSPIN}, 0"); e(f"s_cbranch_scc1 L_back{val}")
        flagchk(val, f"L_spinl{val}")
        e(f"s_branch L_back{val}")
    for val in (0, 1):
        e(f"L_wspin{val}:")
        e(f"s_mov_b32 s{sSPIN}, 0x40000")
        e(f"L_wspinl{val}:")
        e("s_sleep 2")
        wpoll0()
        e(f"s_sub_u32 s{sSPIN}, s{sSPIN}, 1")
        e("s_waitcnt vmcnt(0)")
        e(f"s_cmp_eq_u32 s{sSPIN}, 0"); e(f"s_cbranch_scc1 L_wback{val}")
        wflagchk(val, f"L_wspinl{val}")
        e(f"s_branch L_wback{val}")

LAUNCH = "; @launch grid=(256,1,1) block=(256,1,1) lds=163840"
hdr = f"""; DCN-v2 cross network, 3 layers, B=16384, D=1024, bf16.  Generated by dev/gen.py (hand-written generator).
{LAUNCH}
.amdgcn_target "amdgcn-amd-amdhsa--gfx950"
.text"""
main_kernel()
if P['CPF']: e('.fill 4096, 4, 0xBF800000')
def kd(name, vg, ao, sg):
    return f""".p2align 6
.amdhsa_kernel {name}
  .amdhsa_next_free_vgpr {vg}
  .amdhsa_next_free_sgpr {sg}
  .amdhsa_accum_offset {ao}
  .amdhsa_group_segment_fixed_size 0
  .amdhsa_kernarg_size 48
  .amdhsa_user_sgpr_count 2
  .amdhsa_user_sgpr_kernarg_segment_ptr 1
  .amdhsa_system_sgpr_workgroup_id_x 1
.end_amdhsa_kernel
"""
tail = '\n.section .rodata,"a"\n' + kd(KN, 512, 256, 102)
open(out, "w").write(hdr + "\n" + "\n".join(L) + tail)
```

```python
import sys
out = sys.argv[1]
P = dict(CAP=2, DLEAD=2, DSPREAD=32, STAMPS=0, XSC="sc1", SSC="sc1", POLL_M=64, BIAS_S=11, NOSYNC=0, XDSPREAD=24,
         DOFF=2, NODMA=0, NOBAR=0, NOW=0, NOJIT=0, NOST=0, DEEP=1, XCHK=192, STOFF=5, STSPREAD=20, RAMP=4, XSMALL=0, NOOUT=0, XSTR=131072+1024, CPF=2, ONLY=0, RT=0, WSC=1, DBG=0, SG0=1, HH=4, TT=4, TL=8, TL2=4, XBA=9, XBB=19, XBC=27, R1M=334, R1S=26, R3M=550, R3S=28, XLAG=170, XD0=550, XDS=30, XDL=24, BS0=9,  PTOUCH=0, HB=4, C12=5, B1M=34, B1S=8, UDS=4, U3D=0, U5D=64, U4D=98, B3=262, B3S=24, M12=14,  NSELF=6, FB=0, WCHK=280, WPOLL=64, B2=132, B2S=16, BLK1E=1, U2M=40, U3M=100, U5M=200, U4M=226)
for kv in sys.argv[2:]:
    k, v = kv.split("=")
    P[k] = v.replace("+", " ").replace("none", "") if k in ("XSC", "SSC") else int(v)
CAP = P["CAP"]

KN = "standalone__cross_network_dcn__recsys_kernel"
PK = "dcn_pack_kernel"
WP_OFF = 0x100000
FLAG_OFF = 0x800000
X_OFF = P.get("XOFF", 0x1000000)
L = []
def e(s): L.append(s)

class Ctr:
    def __init__(s, name, mx): s.name, s.mx, s.n, s.done = name, mx, 0, 0
    def issue(s):
        s.n += 1
        return s.n - 1
    def need(s, idx):
        if idx is None or idx < s.done: return None
        N = min(s.n - 1 - idx, s.mx)
        s.done = max(s.done, s.n - N)
        return N
VM = Ctr("vmcnt", 63); LG = Ctr("lgkmcnt", 15)
def wait(vm=None, lg=None):
    a = VM.need(vm); b = LG.need(lg)
    parts = []
    if a is not None: parts.append(f"vmcnt({a})")
    if b is not None: parts.append(f"lgkmcnt({b})")
    if parts:
        e("s_waitcnt " + " ".join(parts)); return 1
    return 0
def wait_lg_all():
    e("s_waitcnt lgkmcnt(0)"); LG.done = LG.n

vL0, vK, vXR, vW0, vW1, vLX, vB, vP = 0, 1, 5, 6, 7, 8, 9, 10
T = 12
def acc(a, bt):
    if a < 7:
        b = 32 + (a * 8 + bt) * 4
        return ("v", b)
    return ("a", 224 + bt * 4)
def rng(k, b, n=4): return f"{k}[{b}:{b+n-1}]"
def x0r(j, bt): return (j * 8 + bt) * 4
def breg(c, bt): return 96 + (c * 8 + bt) * 4
SX0, SOUT, SWS, SBS, SWR = "s[12:15]", "s[16:19]", "s[20:23]", "s[24:27]", "s[4:7]"
sT, sSELF, sS2 = 8, 10, 11
EPOCH_OFF = 0x810000
sW, sHF, sWOFF, sW2048, sW8192, sMASK, sTMP, sFLAG, sPFLAG, sBOFF, sSPIN, sTMP2 = 28, 29, 30, 31, 32, 33, 34, 35, 36, 37, 38, 39
sXO = 40
sXOWN = 48
sXOTH = 50
sXST = 52
sXLD = 56
sSTAMP = 60
nstamp = [0]
def pstamp():
    if P["STAMPS"] == 9: stamp()
def stamp():
    if P["STAMPS"]:
        e(f"{'s_memrealtime' if P['RT'] else 's_memtime'} s[{sSTAMP+2*nstamp[0]}:{sSTAMP+2*nstamp[0]+1}]"); nstamp[0] += 1
NM = 3 * 2048
ORDER = []
for l in range(3):
    H = P["HH"] if l > 0 else 0
    Tn = P["TT"] if l < 2 else P["TL"]
    T2 = P["TL2"] if l == 2 else 0
    ORDER += [(l, s, rp) for s in range(H) for rp in (0, 1)] + [(l, s, rp) for s in range(H) for rp in (2, 3)]
    ORDER += [(l, s, rp) for s in range(H, 16 - Tn) for rp in range(4)]
    ORDER += [(l, s, rp) for s in range(16 - Tn, 16) for rp in (0, 1)]
    ORDER += [(l, s, rp) for s in range(16 - Tn, 16 - T2) for rp in (2, 3)]
    ORDER += [(l, s, 2) for s in range(16 - T2, 16)] + [(l, s, 3) for s in range(16 - T2, 16)]
assert len(set(ORDER)) == 192
GPOS = {k: i for i, k in enumerate(ORDER)}
M = lambda l, s, rp=0, bt=0, sub=0: GPOS[(l, s, rp)] * 32 + bt * 4 + sub
RDG = {}
for i in range(1, 192):
    if ORDER[i][:2] != ORDER[i - 1][:2]: RDG.setdefault(ORDER[i][:2], []).append(i - 1)
def RB(l, ph): return min(RDG[(l, 2 * ph)] + RDG[(l, 2 * ph + 1)])
def LRD(l, ph): return max(RDG.get((l, 2 * ph), [-1]) + RDG[(l, 2 * ph + 1)])
BARS = set(RB(l, ph) for l in range(3) for ph in range(8) if (l, ph) != (0, 0))
BARS |= set(RDG[(0, 2 * ph + 1)][0] for ph in range(P["HB"]))
BARS |= set(64 * l + P[k] for l in (1, 2) for k in ("XBA", "XBB", "XBC"))
def free_at(l, ph):
    pl, pp = (l, ph - 4) if ph >= 4 else (l - 1, ph + 4)
    if pl < 0: return 0
    return 32 * min(b for b in BARS if b >= LRD(pl, pp) + 2)

def bop(l, s, c, bt):
    if P['DEEP'] < 2 and l == 0 and c == 0 and s in (8, 10, 12): return x0r((s - 8) // 2, bt)
    return breg(c, bt)

def main_kernel():
    e(f".globl {KN}"); e(".p2align 8"); e(f".type {KN},@function"); e(f"{KN}:")
    e("s_cmp_ge_u32 s2, 256"); e("s_cbranch_scc1 L_end")
    if P["PTOUCH"]:
        e("s_getpc_b64 s[92:93]")
        e("v_lshrrev_b32 v12, 6, v0"); e("s_lshr_b32 s94, s2, 3"); e("v_readfirstlane_b32 s95, v12")
        e("s_and_b32 s94, s94, 15"); e("s_lshl_b32 s94, s94, 2"); e("s_add_u32 s94, s94, s95"); e("s_lshl_b32 s94, s94, 7")
        e("s_add_u32 s92, s92, s94"); e("s_addc_u32 s93, s93, 0")
        e("s_load_dword s98, s[92:93], 0")
    e("s_load_dwordx4 s[4:7], s[0:1], 0")
    e("s_load_dwordx4 s[8:11], s[0:1], 16")
    e("s_load_dwordx4 s[40:43], s[0:1], 32")
    stamp()
    e("v_lshrrev_b32 v12, 6, v0")
    e("v_and_b32 v13, 63, v0")
    e(f"v_readfirstlane_b32 s{sW}, v12")
    e(f"v_lshlrev_b32 v{vL0}, 4, v13")
    for k in range(4): e(f"v_add_u32 v{vK+k}, {k*8192}, v{vL0}")
    e(f"v_lshl_add_u32 v{vW0}, v12, 13, v{vL0}")
    e(f"v_add_u32 v{vW1}, 0x10000, v{vW0}")
    e(f"v_add_u32 v{vLX}, 0x20000, v{vW0}")
    e("v_and_b32 v14, 15, v13"); e("v_lshrrev_b32 v15, 4, v13")
    e(f"v_lshlrev_b32 v{vB}, 4, v15")
    e(f"v_lshl_add_u32 v{vXR}, v14, 11, v{vB}")
    e("s_and_b32 s3, s2, 7"); e(f"s_lshr_b32 s{sTMP}, s2, 4"); e(f"s_lshl_b32 s{sTMP}, s{sTMP}, 3"); e(f"s_or_b32 s3, s3, s{sTMP}")
    e(f"s_lshr_b32 s{sHF}, s2, 3"); e(f"s_and_b32 s{sHF}, s{sHF}, 1")
    e(f"s_lshl_b32 s{sW2048}, s{sW}, 11"); e(f"s_lshl_b32 s{sW8192}, s{sW}, 13")
    e(f"s_mov_b32 s{sMASK}, 0xffff0000")
    e("s_lshl_b32 s3, s3, 18")
    e(f"s_lshl_b32 s{sTMP2}, s{sHF}, 2"); e(f"s_add_u32 s{sTMP2}, s{sTMP2}, s{sW}")
    e(f"s_lshl_b32 s{sBOFF}, s{sTMP2}, 8")
    e(f"s_lshl_b32 s{sTMP}, s{sW}, 16"); e(f"s_add_u32 s{sTMP}, s{sTMP}, s3")
    e(f"s_lshl_b32 s{sXOWN}, s{sHF}, 10"); e(f"s_xor_b32 s{sXOTH}, s{sXOWN}, 1024")
    e(f"s_add_u32 s{sXOWN}, s{sXOWN}, s{sTMP}"); e(f"s_add_u32 s{sXOTH}, s{sXOTH}, s{sTMP}")
    e(f"s_add_u32 s{sXOWN+1}, s{sXOWN}, 32768"); e(f"s_add_u32 s{sXOTH+1}, s{sXOTH}, 32768")
    e(f"s_mul_i32 s{sWOFF}, s{sTMP2}, {3*8*32768}"); e(f"s_add_u32 s{sWOFF}, s{sWOFF}, {WP_OFF + P['NSELF']*8192}")
    e("s_waitcnt lgkmcnt(0)")
    pstamp()
    for (s, ptr, n) in ((24, 8, 6144), (12, 4, 0x2000000), (20, 42, 0x10000000), (16, 10, 0x2000000), (4, 6, 0x600000)):
        e(f"s_mov_b32 s{s}, s{ptr}"); e(f"s_and_b32 s{s+1}, s{ptr+1}, 0xffff"); e(f"s_mov_b32 s{s+2}, {hex(n)}"); e(f"s_mov_b32 s{s+3}, 0x20000")

    def bias_load(l, j):
        e(f"buffer_load_dwordx4 {rng('v', T+4*j)}, v{vB}, {SBS}, s{sBOFF} offen offset:{(l*2048 + j*64) % 4096}")
        return VM.issue()
    wtag = {}; wslot = {}; wlg = {}
    wok = [0]
    wload_n = [0]
    pool = [(("a", 160 + 4 * i), NM) for i in range(16)]
    if P["DEEP"]:
        for j in (2, 1, 0):
            if P["DEEP"] >= 2 and j >= P["DEEP"] - 1: continue
            pool += [(("a", x0r(j, bt)), 32 * RDG[(0, 8 + 2 * j)][0] if P["DEEP"] < 2 else NM) for bt in range(8)]
    def last_use(f): return 32 * (f // 4) + 28 + f % 4
    def wload():
        f = wload_n[0]
        if f >= wok[0]: return 0
        while pool and pool[0][1] <= last_use(f): pool.pop(0)
        if not pool: return 0
        sl = pool.pop(0)
        wslot[f] = sl
        wload_n[0] += 1
        if P['NOW'] and f >= 16:
            wtag[f] = None; return 0
        k = f % 4
        e(f"buffer_load_dwordx4 {rng(*sl[0])}, v{vL0}, {SWS}, s{sWOFF} offen offset:{k*1024}{' sc1' if P['WSC'] else ''}")
        wtag[f] = VM.issue()
        n = 1
        if k == 3 and f + 1 < 768:
            lin = lambda g: ORDER[g][0] * 64 + ORDER[g][1] * 4 + ORDER[g][2]
            e(f"s_add_u32 s{sWOFF}, s{sWOFF}, {hex(((lin(f // 4 + 1) - lin(f // 4)) * 4096) & 0xffffffff)}"); n += 1
        return n
    def x0_io(ph, ksl): return ph * 256 + ksl * 64 if ph < 4 else ksl * 256 + (ph - 4) * 64
    m0own = [None]
    def dma_x0_m0(ph, ksl, i):
        m0own[0] = ("x", ph, ksl, i)
        e(f"s_add_u32 m0, s{sW2048}, {(ph % 4)*32768 + ksl*8192 + i*1024 - x0_io(ph, ksl)}")
    def dma_x0_ld(ph, ksl, i):
        assert m0own[0] == ("x", ph, ksl, i)
        so = (sXOTH if ph < 4 else sXOWN) + i
        e(f"buffer_load_dwordx4 v{vXR}, {SX0}, s{so} offen offset:{x0_io(ph, ksl)} lds")
        return VM.issue()
    blk_tag = {}
    blk_lg = {}
    st_tag = {}

    UB = T + 16
    vSG, vCG, vCT, vFL, vTR, vTR4 = 12, 13, 14, 15, 16, 20
    def code_touch(q):
        if q > 11: return 0
        e(f"s_add_u32 s96, s92, L_q{q}-L_pc"); e("s_addc_u32 s97, s93, 0")
        e("s_load_dword s98, s[96:97], 0")
        return 3
    e(f"s_add_u32 s96, s42, {EPOCH_OFF}"); e("s_addc_u32 s97, s43, 0")
    e(f"s_load_dwordx2 s[{sT}:{sT+1}], s[96:97], 0")
    e("v_mov_b32 v24, v12"); e("v_mov_b32 v25, v13"); e("v_mov_b32 v26, v14"); e("v_mov_b32 v27, v15")
    e("v_lshrrev_b32 v28, 2, v25"); e("v_and_b32 v29, 3, v25")
    e(f"v_lshlrev_b32 v{vCG}, 11, v28"); e(f"v_lshl_add_u32 v{vCG}, v29, 4, v{vCG}")
    e(f"s_lshr_b32 s44, s2, 3"); e("s_and_b32 s45, s2, 7")
    e("s_lshl_b32 s46, s44, 16"); e("s_lshl_b32 s47, s45, 8"); e("s_add_u32 s46, s46, s47")
    e(f"s_lshl_b32 s47, s{sW}, 6"); e("s_add_u32 s100, s46, s47")
    coop_tag = {}
    def coop_dma(l, n):
        m0own[0] = None
        e(f"s_add_u32 m0, s{sW2048}, {(32768 if l == 0 else 131072) + l*8192 + n*1024}")
        e(f"s_add_u32 s{sS2}, s100, {l*0x200000 + n*32768}")
        e(f"buffer_load_dwordx4 v{vCG}, {SWR}, s{sS2} offen lds"); coop_tag[l] = VM.issue()
        return 3
    coop_dma(0, 0); coop_dma(0, 1)
    pstamp()
    e(f"v_lshlrev_b32 v30, 2, v27"); e("v_xor_b32 v30, v30, v26"); e("v_lshlrev_b32 v30, 4, v30")
    e(f"v_lshl_add_u32 v{vSG}, v27, 11, v30")
    e(f"s_xor_b32 s{sSELF}, s{sHF}, 1"); e(f"s_lshl_b32 s{sSELF}, s{sSELF}, 20"); e(f"s_add_u32 s{sSELF}, s{sSELF}, s{sBOFF}")
    REG = {0: 2, 1: 3, 2: 4, 3: 2, 4: 4, 5: 3}
    self_tag = {}; self_lg = {}
    def self_dma1(n, ch):
        m0own[0] = None
        e(f"s_add_u32 m0, s{sW2048}, {REG[n]*32768 + (ch>>1)*8192 + (ch&1)*1024}")
        e(f"s_add_u32 s{sS2}, s{sSELF}, {n*65536 + ch*8192}")
        e(f"buffer_load_dwordx4 v{vSG}, {SWR}, s{sS2} offen lds"); self_tag[n] = VM.issue()
        return 3
    def self_dma(n):
        for ch in range(8): self_dma1(n, ch)
    def self_read1(n, a, u):
        j, h = divmod(a, 2)
        f = ((n // 2) * 4 + j) * 4 + 2 * h + n % 2
        w_ = 0
        if a == 0 and u == 0: w_ = wait(vm=self_tag[n])
        if u == 0:
            while pool[0][1] <= last_use(f): pool.pop(0)
            wslot[f] = pool.pop(0)
        k, b = wslot[f][0]
        R = REG[n]
        e(f"ds_read_b64_tr_b16 {rng(k, b+2*u, 2)}, v{(vTR4 if R == 4 else vTR)+j} offset:{(R % 2)*32768 + u*1024 + 8*h}")
        self_lg[n] = wlg[f] = LG.issue(); wtag[f] = None
        return 1 + w_
    half_tag = {}
    def blk_dma(ph, hv):
        for ksl in (2 * hv, 2 * hv + 1):
            for i in range(2):
                dma_x0_m0(ph, ksl, i); e("s_nop 0")
                blk_tag[(0, ph)] = dma_x0_ld(ph, ksl, i)
        if hv == 0: half_tag[ph] = blk_tag[(0, ph)]
    self_dma(0); self_dma(1); blk_dma(0, 0)
    pstamp()
    e("v_bfe_u32 v28, v25, 2, 2")
    e(f"v_lshlrev_b32 v30, 11, v24"); e("v_lshl_add_u32 v30, v29, 4, v30")
    e("v_lshrrev_b32 v31, 1, v27"); e(f"v_lshl_add_u32 v{vCT}, v31, 10, v30")
    e("v_and_b32 v31, 1, v27"); e("v_lshl_add_u32 v31, v31, 3, v28"); e(f"v_lshl_add_u32 v{vCT}, v31, 6, v{vCT}")
    e(f"v_add_u32 v{vCT}, 0x8000, v{vCT}")
    e("v_lshl_add_u32 v30, v27, 13, v30"); e("v_lshl_add_u32 v30, v28, 8, v30"); e("v_add_u32 v30, 0x10000, v30")
    for j in range(4):
        e(f"v_xor_b32 v31, {j}, v28"); e(f"v_lshl_add_u32 v{vTR+j}, v31, 6, v30"); e(f"v_add_u32 v{vTR4+j}, 0x10000, v{vTR+j}")
    e("s_lshr_b32 s40, s44, 2"); e("s_and_b32 s41, s44, 3"); e("s_and_b32 s42, s45, 4")
    e("s_xor_b32 s42, s40, s42")
    e("s_and_b32 s43, s42, 3")
    e("s_and_b32 s46, s45, 3"); e("s_xor_b32 s46, s43, s46")
    e("s_and_b32 s47, s42, 4"); e("s_or_b32 s47, s47, s41")
    def dcalc(d, ph, ka):
        e(f"s_lshl_b32 s{d}, s{ph}, 15")
        e(f"s_lshr_b32 s{sTMP}, s{ka}, 1"); e(f"s_lshl_b32 s{sTMP}, s{sTMP}, 14"); e(f"s_add_u32 s{d}, s{d}, s{sTMP}")
        e(f"s_and_b32 s{sTMP}, s{ka}, 1"); e(f"s_lshl_b32 s{sTMP}, s{sTMP}, 10"); e(f"s_add_u32 s{d}, s{d}, s{sTMP}")
    dcalc(57, 47, 46)
    e("s_xor_b32 s47, s47, 4")
    e("s_cmp_lt_u32 s42, 4")
    e("s_cselect_b32 s47, s47, s43"); e("s_cselect_b32 s46, s46, s41")
    dcalc(58, 47, 46)
    e(f"s_mul_i32 s40, s45, {3*262144}"); e(f"s_lshl_b32 s41, s{sW}, 12"); e("s_add_u32 s40, s40, s41"); e(f"s_add_u32 s40, s40, {WP_OFF}")
    e("s_add_u32 s57, s40, s57"); e("s_add_u32 s58, s40, s58")
    e("s_add_u32 s57, s57, 262144"); e("s_add_u32 s99, s57, 262144")
    CD = {0: 58, 1: 57, 2: 99}
    e("s_getpc_b64 s[92:93]")
    e("L_pc:")
    e(f"s_lshr_b32 s94, s2, 3"); e(f"s_lshl_b32 s94, s94, 2"); e(f"s_add_u32 s94, s94, s{sW}")
    e(f"s_lshl_b32 s94, s94, 7")
    e("s_add_u32 s92, s92, s94"); e("s_addc_u32 s93, s93, 0")
    for q in range(P["CPF"]): code_touch(q)
    e(f"s_xor_b32 s{sPFLAG}, s2, 8")
    e(f"s_mul_i32 s{sXST}, s2, {P['XSTR']}"); e(f"s_add_u32 s{sXST}, s{sXST}, {X_OFF}")
    e(f"s_mul_i32 s{sXLD}, s{sPFLAG}, {P['XSTR']}"); e(f"s_add_u32 s{sXLD}, s{sXLD}, {X_OFF}")
    e(f"s_add_u32 s{sXLD}, s{sXLD}, s{sW8192}")
    for k in range(1, 4): e(f"s_add_u32 s{sXST+k}, s{sXST}, {(k//2)*32768 + (k%2)*4096}")
    e(f"s_lshl_b32 s{sFLAG}, s2, 7"); e(f"s_add_u32 s{sFLAG}, s{sFLAG}, {FLAG_OFF}")
    e(f"s_xor_b32 s{sPFLAG}, s{sFLAG}, {8*128}")
    e(f"s_lshr_b32 s59, s{sBOFF}, 1"); e(f"s_add_u32 s59, s59, {FLAG_OFF}")
    stamp()
    ct = {}; pack_tag = {}
    def creg(l, h): return ('a', 96 + h * 4) if l == 0 else ('v', 16 + ((l - 1) * 2 + h) * 4)
    def coop_read(l, h, u):
        w_ = wait(vm=coop_tag[l])
        k, b = creg(l, h)
        e(f"ds_read_b64_tr_b16 {rng(k, b + 2*u, 2)}, v{vCT} offset:{l*8192 + u*256 + h*8}")
        ct[(l, h)] = LG.issue(); return 1 + w_
    def coop_store(l, h):
        w_ = wait(lg=ct[(l, h)])
        e(f"buffer_store_dwordx4 {rng(*creg(l, h))}, v{vL0}, {SWS}, s{CD[l]} offen offset:{h*2048} sc1")
        pack_tag[l] = VM.issue(); return 1 + w_
    wait(vm=coop_tag[0])
    pstamp()
    for h in range(2):
        for u in range(2): coop_read(0, h, u)
    for h in range(2): coop_store(0, h)
    e(f"v_add_u32 v{vCT}, 0x18000, v{vCT}")
    blk_dma(0, 1); self_dma(2)
    pstamp()
    wait_lg_all()
    e(f"s_add_u32 s{sT}, s{sT}, 16"); e(f"s_addc_u32 s{sT+1}, s{sT+1}, 0")
    e(f"s_and_b32 s{sT}, s{sT}, -16"); e(f"s_and_b32 s{sT+1}, s{sT+1}, 0x7fffffff")
    e(f"s_add_u32 s{sXO}, s3, s{sBOFF}")
    for bt in range(1, 8): e(f"s_add_u32 s{sXO+bt}, s{sXO}, {bt*32768}")
    pstamp()
    for n in (0, 1):
        for a in range(8):
            for u in range(2): self_read1(n, a, u)
    pstamp()
    wait(vm=half_tag[0] if P["HB"] else blk_tag[(0, 0)])
    if P["FB"] == 0: wait(vm=pack_tag[0])
    e("s_barrier")
    stamp()
    def setflag(val):
        e(f"s_cmp_lg_u32 s{sW}, 0"); e(f"s_cbranch_scc1 L_nf{val}")
        e(f"s_add_u32 s{sTMP}, s{sT}, {val}")
        e(f"v_mov_b32 v{vP}, s{sTMP}"); e(f"v_mov_b32 v{vP+1}, s{sT+1}"); e("s_mov_b64 exec, 1")
        e(f"buffer_store_dwordx2 {rng('v', vP, 2)}, off, {SWS}, s{sFLAG} sc1")
        e("s_mov_b64 exec, -1")
        e(f"L_nf{val}:")
        return 2
    if P["FB"] == 0: setflag(0)
    wload_n[0] = 8 * P["NSELF"]
    btag = {}
    kst = {k: (0, 0) for k in range(4)}
    capt = set()
    def bread(l, s, c, bt):
        kap = (s % 2) * 2 + c
        if bop(l, s, c, bt) < 96:
            if (s, bt) in capt: return 0
            capt.add((s, bt))
        n = 1
        want = (0 if (l == 0 and s < 8) else 1, (s // 4) % 2)
        if kst[kap] != want:
            e(f"v_xor_b32 v{vK+kap}, {hex(kap*8192 + want[1]*65536)}, v{vW0 if want[0] else vL0}"); kst[kap] = want; n += 1
        off = ((s // 2) % 2) * 32768 + bt * 1024
        e(f"ds_read_b128 {rng('a', bop(l, s, c, bt))}, v{vK+kap} offset:{off}")
        btag[(c, bt)] = LG.issue()
        return n
    for bt in range(8):
        for c in range(2): bread(0, 0, c, bt)

    tasks = []
    def add_task(ready, deadline, items): tasks.append([ready, deadline, list(items)])
    pre_ev = {}; post_ev = {}
    def at_pre(m, f): pre_ev.setdefault(m, []).append(f)
    def at_post(m, f): post_ev.setdefault(m, []).append(f)

    def sched_dma(l, ph, m0, spread):
        if P['NODMA']: return
        assert m0 >= free_at(l, ph), (l, ph, m0, free_at(l, ph))
        assert m0 + 7 * spread < 32 * RB(l, ph), (l, ph)
        sys.stderr.write(f"dma ({l},{ph}) {m0 % 2048}..{(m0 + 7 * spread) % 2048} free {free_at(l, ph) % 2048} need {32 * RB(l, ph) % 2048}\n")
        if l == 0:
            seq = [(j, i) for j in range(4) for i in range(2)]
            for n, (j, i) in enumerate(seq):
                m = m0 + n * spread
                at_pre(m, lambda j=j, i=i: (dma_x0_m0(ph, j, i), 1)[1])
                def ld(j=j, i=i):
                    blk_tag[(l, ph)] = dma_x0_ld(ph, j, i)
                    if (j, i) == (1, 1): half_tag[ph] = blk_tag[(l, ph)]
                    return 1
                at_post(m, ld)
        else:
            j = ph % 4
            for n in range(8):
                m = m0 + n * spread
                if n % 4 == 0:
                    def setm(n=n):
                        m0own[0] = ("e", l, ph, n // 4)
                        e(f"s_add_u32 m0, s{sW8192}, {j*32768 + (n//4)*4096}")
                        if P['XSMALL'] == 2: e(f"s_add_u32 s{sTMP2}, s{sXLD}, {(j%2)*32768 + (n//4)*4096}")
                        else: e(f"s_add_u32 s{sTMP2}, s{sXLD}, {(l-1)*256*P['XSTR'] + j*32768 + (n//4)*4096}")
                        return 2
                    at_pre(m, setm)
                def ld(n=n):
                    assert m0own[0] == ("e", l, ph, n // 4)
                    e(f"buffer_load_dwordx4 v{vL0}, {SWS}, s{sTMP2} offen offset:{(n%4)*1024} {P['XSC']} lds")
                    blk_tag[(l, ph)] = VM.issue(); return 1
                at_post(m, ld)
    sched_dma(0, 1, P["B1M"], P["B1S"])
    def sched_sdma(n, prev, m0):
        at_post(m0, lambda: wait(lg=self_lg[prev]))
        for ch in range(8): at_post(m0 + P["UDS"] * ch, lambda ch=ch: self_dma1(n, ch))
    sched_sdma(3, 0, P["U3D"])
    if P["NSELF"] > 4:
        sched_sdma(5, 1, P["U5D"]); sched_sdma(4, 2, P["U4D"])
        assert P["U2M"] + 16 < P["U4D"]
    mc = M(0, P["C12"]) + 10
    at_post(mc, lambda: wait(lg=self_lg[4 if P["NSELF"] > 4 else 2]))
    for i, (l, n) in enumerate([(1, 0), (1, 1), (2, 0), (2, 1)]): at_post(mc + 16 * i, lambda l=l, n=n: coop_dma(l, n))
    for i, (l, h, u) in enumerate([(l, h, u) for l in (1, 2) for h in range(2) for u in range(2)]):
        at_post(mc + 224 + 2 * i, lambda l=l, h=h, u=u: coop_read(l, h, u))
    for i, (l, h) in enumerate([(l, h) for l in (1, 2) for h in range(2)]): at_post(mc + 250 + 16 * i, lambda l=l, h=h: coop_store(l, h))
    PH12 = P["C12"] // 2 + 2
    G12 = RB(0, PH12 + 1)
    assert mc + 250 + 48 + 100 < 32 * G12
    at_post(32 * G12, lambda: setflag(1))
    for ph in range(P["DLEAD"], 8):
        if ph == 2:
            at_pre(P["B2"], lambda: wait(lg=self_lg[3]))
            sched_dma(0, ph, P["B2"], P["B2S"])
        elif ph == 3 and P["NSELF"] > 4:
            at_pre(P["B3"], lambda: wait(lg=self_lg[5]))
            sched_dma(0, ph, P["B3"], P["B3S"])
        else: sched_dma(0, ph, M(0, 2 * (ph - P["DLEAD"])) + P["DOFF"], P["DSPREAD"])
    def sched_self(n, m0):
        for a in range(8):
            for u in range(2): at_post(m0 + 2 * a + u, lambda a=a, u=u: self_read1(n, a, u))
    sched_self(2, P["U2M"]); sched_self(3, P["U3M"])
    if P["NSELF"] > 4:
        sched_self(5, P["U5M"]); sched_self(4, P["U4M"])
        assert P["U5M"] + 16 < P["B3"]
    assert P["U3M"] + 16 < P["B2"]
    if P["FB"]:
        def fbar():
            wait(vm=pack_tag[0]); e("s_barrier"); return 2 + setflag(0)
        at_pre(P["FB"], fbar)
    wp = [None]
    def wpoll0():
        e(f"v_and_b32 v{vP}, 0x1f0, v{vL0}"); e(f"v_lshlrev_b32 v{vP}, 6, v{vP}")
        e(f"buffer_load_dwordx2 {rng('v', vP, 2)}, v{vP}, {SWS}, s59 offen sc1")
    def wpoll():
        wpoll0(); wp[0] = VM.issue(); return 3
    def wflagchk(val, lab):
        e(f"s_add_u32 s{sTMP}, s{sT}, {val}")
        e(f"v_subrev_u32 v{vP}, s{sTMP}, v{vP}"); e(f"v_xor_b32 v{vP+1}, s{sT+1}, v{vP+1}"); e("s_nop 0")
        e(f"v_cmp_gt_u64 vcc, {16-val}, {rng('v', vP, 2)}"); e("s_nop 3")
        e("s_cmp_lg_u64 vcc, -1"); e(f"s_cbranch_scc1 {lab}")
    def wchk(val):
        wait(vm=wp[0])
        wflagchk(val, f"L_wspin{val}")
        e(f"L_wback{val}:")
        wok[0] = 256 if val == 0 else 768
        return 8
    m12 = P["M12"] * 128 + 48
    for val, mm in ((0, P["WCHK"]), (1, m12)):
        at_post(mm - P["WPOLL"], wpoll)
        at_post(mm, lambda val=val: wchk(val))
    x0l_lg = [None]
    for bt in range(8):
        def wr(bt=bt):
            e(f"ds_write_b128 v{vLX}, {rng('a', breg(0, bt))} offset:{bt*1024}")
            x0l_lg[0] = LG.issue(); return 1
        at_post(M(0, 14, 0, bt) + 5, wr)
    ptag = {}
    def flagchk(val, lab):
        e(f"v_readfirstlane_b32 s{sTMP}, v{vP}"); e(f"v_readfirstlane_b32 s{sS2}, v{vP+1}")
        e(f"s_xor_b32 s{sTMP}, s{sTMP}, s{sT}"); e(f"s_sub_u32 s{sTMP}, s{sTMP}, {val}")
        e(f"s_cmp_lg_u32 s{sS2}, s{sT+1}"); e(f"s_cbranch_scc1 {lab}")
        e(f"s_cmp_gt_u32 s{sTMP}, {15-val}"); e(f"s_cbranch_scc1 {lab}")
    spins = []
    FLAGBAR = {}
    busy = []
    def xst(l, j, bt, reg):
        if P['NOST']: return 0
        e(f"buffer_store_dwordx4 {rng('v', reg)}, v{vW0 if j < 2 else vW1}, {SWS}, s{sXST + (j%2)*2 + bt//4} offen offset:{(bt%4)*1024} {P['SSC']}")
        st_tag[(l, j)] = VM.issue(); return 1
    rr_tag = {}
    for l in (1, 2):
        sp = P["XDS"] if l == 1 else P["XDL"]
        for j, m0, st in ((1, P["R1M"], P["R1S"]), (3, P["R3M"], P["R3S"])):
            for bt in range(8):
                reg = T + 8 + 4 * (bt % 2)
                def rr(l=l, j=j, bt=bt, reg=reg):
                    off = j * 32768 + bt * 1024
                    e(f"ds_read_b128 {rng('v', reg)}, v{vW0 if off < 65536 else vW1} offset:{off % 65536}")
                    rr_tag[(l, j, bt)] = LG.issue(); return 1
                def ws(l=l, j=j, bt=bt, reg=reg):
                    w_ = wait(lg=rr_tag[(l, j, bt)]); return w_ + xst(l, j, bt, reg)
                m = 2048 * l + m0 + bt * st
                at_post(m - 10, rr); at_post(m, ws)
                assert m - 10 > M(l, 0, 3) + 32 and m + 40 < 32 * (64 * l + P['XBB' if j == 1 else 'XBC'])
        mm = 2048 * l + P["XD0"]
        for fi, (key, sblk, blks) in enumerate((("XBA", 2, (4, 6)), ("XBB", 1, (5,)), ("XBC", 3, (7,)))):
            val = 3 * (l - 1) + fi + 2
            gb = 64 * l + P[key]
            FLAGBAR[gb] = (l, sblk)
            mchk = max(mm, free_at(l, blks[0]), 32 * gb + P["XLAG"]) + 2
            if not P["NOSYNC"]:
                at_post(32 * gb, lambda val=val: setflag(val)); busy.append((32 * gb, 32 * gb))
                def poll(val=val):
                    e(f"buffer_load_dwordx2 {rng('v', vP, 2)}, off, {SWS}, s{sPFLAG} sc1")
                    ptag[val] = VM.issue(); return 1
                busy.append((mchk - P["POLL_M"], mchk))
                at_post(mchk - P["POLL_M"], poll)
                def chk(val=val):
                    wait(vm=ptag[val])
                    flagchk(val, f"L_spin{val}")
                    e(f"L_back{val}:")
                    return 8
                at_post(mchk, chk)
                spins.append(val)
            mm = mchk + 1
            for bk in blks:
                mm = max(mm, free_at(l, bk) + 1)
                sched_dma(l, bk, mm, sp)
                mm += 8 * sp
        busy.sort()
        for x, y in zip(busy, busy[1:]): assert x[1] < y[0], (x, y)
        if l == 1:
            def bump():
                for k in range(4): e(f"s_add_u32 s{sXST+k}, s{sXST+k}, {256*P['XSTR']}")
                return 4
            at_post(M(1, 9, 1), bump)
    for l in (0, 1, 2):
        bt_tags = {}
        Tn = P["TT"] if l < 2 else P["TL"]
        for j in range(4):
            sb = (P["BS0"] if l == 0 else P["HH"] - 1) if j < 2 else 15 - Tn
            rdy = M(l, sb, j) + 36
            if l > 0 and j < 2: rdy = max(rdy, M(l, 0, 3) + 32 + 100)
            def ld(j=j, l=l):
                if l == 2 and j == 0: e(f"s_add_u32 s{sBOFF}, s{sBOFF}, 4096")
                bt_tags[j] = bias_load(l, j); return 1
            at_post((rdy - 96 if j % 2 == 0 else prev_ld + 4), ld)
            prev_ld = rdy - 96
            items = []
            for h in range(2):
                def first(j=j, h=h): wait(vm=bt_tags[j]); e(f"v_lshlrev_b32 v{UB}, 16, v{T+4*j+2*h}")
                items.append(first)
                items.append(lambda j=j, h=h: e(f"v_and_b32 v{UB+1}, s{sMASK}, v{T+4*j+2*h}"))
                items.append(lambda j=j, h=h: e(f"v_lshlrev_b32 v{UB+2}, 16, v{T+4*j+2*h+1}"))
                items.append(lambda j=j, h=h: e(f"v_and_b32 v{UB+3}, s{sMASK}, v{T+4*j+2*h+1}"))
                for bt in range(8):
                    k, b = acc(2 * j + h, bt)
                    if k == "v":
                        for r in range(4):
                            items.append(lambda b=b, r=r: e(f"v_add_f32 v{b+r}, v{b+r}, v{UB+r}"))
                    else:
                        for r in range(4): items.append(lambda b=b, r=r: e(f"v_accvgpr_read_b32 v{T+r}, a{b+r}"))
                        for r in range(4): items.append(lambda r=r: e(f"v_add_f32 v{T+r}, v{T+r}, v{UB+r}"))
                        for r in range(4): items.append(lambda b=b, r=r: e(f"v_accvgpr_write_b32 a{b+r}, v{T+r}"))
            dlb = M(l, sb + 1, j) - 1
            if j >= 2: dlb = min(dlb, M(l, 15, 0) + 7)
            add_task(rdy, dlb, items)
    xl_tag = {}
    U = T + 12; A = T + 16
    for l in range(3):
        last = l == 2
        for u in range(32):
            j, bt = divmod(u, 8)
            ts = T + 4 * (u % 3)
            items = []
            def xl_prefetch(uu):
                def f():
                    wait(lg=x0l_lg[0])
                    e(f"ds_read_b128 {rng('v', T + 4*(uu % 3))}, v{vLX} offset:{(uu % 8)*1024}")
                    xl_tag[uu] = LG.issue()
                return f
            if j < 3:
                for d in range(4): items.append(lambda d=d, j=j, bt=bt, ts=ts: e(f"v_accvgpr_read_b32 v{ts+d}, a{x0r(j, bt)+d}"))
            for h in range(2):
                k, b = acc(2 * j + h, bt)
                def first(h=h, ts=ts, u=u, j=j):
                    if j == 3: wait(lg=xl_tag[u])
                    e(f"v_lshlrev_b32 v{U}, 16, v{ts+2*h}")
                items.append(first)
                items.append(lambda h=h, ts=ts: e(f"v_and_b32 v{U+1}, s{sMASK}, v{ts+2*h}"))
                items.append(lambda h=h, ts=ts: e(f"v_lshlrev_b32 v{U+2}, 16, v{ts+2*h+1}"))
                items.append(lambda h=h, ts=ts: e(f"v_and_b32 v{U+3}, s{sMASK}, v{ts+2*h+1}"))
                if h == 0 and 24 <= u + 2 < 32: items.append(xl_prefetch(u + 2))
                for r in range(4):
                    if k == "v":
                        items.append(lambda b=b, r=r: e(f"v_mul_f32 v{U+r}, v{U+r}, v{b+r}"))
                    else:
                        items.append(lambda b=b, r=r: e(f"v_accvgpr_read_b32 v{A+r}, a{b+r}"))
                        items.append(lambda r=r: e(f"v_mul_f32 v{U+r}, v{U+r}, v{A+r}"))
                items.append(lambda h=h, ts=ts: e(f"v_cvt_pk_bf16_f32 v{ts+2*h}, v{U}, v{U+1}"))
                items.append(lambda h=h, ts=ts: e(f"v_cvt_pk_bf16_f32 v{ts+2*h+1}, v{U+2}, v{U+3}"))
            if last:
                def st(j=j, bt=bt, ts=ts):
                    if P['NOOUT'] == 1 and not (j == 3 and bt == 7): return
                    if P['NOOUT'] == 2:
                        e(f"buffer_store_dwordx4 {rng('v', ts)}, v{vW0}, {SWS}, s{sXST + (j%2)*2 + bt//4} offen offset:{(bt%4)*1024}")
                    else: e(f"buffer_store_dwordx4 {rng('v', ts)}, v{vXR}, {SOUT}, s{sXO+bt} offen offset:{j*64}")
                    VM.issue()
                items.append(st)
            else:
                def dw(j=j, bt=bt, ts=ts, l=l):
                    off = j * 32768 + bt * 1024
                    e(f"ds_write_b128 v{vW0 if off < 65536 else vW1}, {rng('v', ts)} offset:{off % 65536}")
                    blk_lg[(l + 1, j)] = LG.issue()
                items.append(dw)
                if j % 2 == 0: items.append(lambda j=j, bt=bt, ts=ts, l=l: xst(l + 1, j, bt, ts))
            ready = M(l, 15, j, bt) + 8
            dl = min(M(l + 1, 0, j, bt), 32 * RB(l + 1, j)) if not last else NM + 1
            if not last: ready = max(ready, free_at(l + 1, j))
            add_task(ready, dl, items)
    tasks.sort(key=lambda t: (t[0], t[1]))

    def run_items(m, n):
        k = 0
        while k < n and tasks and tasks[0][0] <= m:
            t = tasks[0]
            t[2].pop(0)(); k += 1
            if not t[2]: tasks.pop(0)
        return k
    def flush_deadlines(m):
        lastidx = -1
        for i, t in enumerate(tasks):
            if t[1] <= m: lastidx = i
            if t[0] > m: break
        n = 0
        for _ in range(lastidx + 1):
            t = tasks.pop(0)
            assert t[0] <= m, (t[0], m)
            for f in t[2]: f(); n += 1
        return n

    stall = 0
    for m in range(NM):
        g, r = divmod(m, 32); l, s, rp = ORDER[g]; bt, sub = divmod(r, 4); h, c = divmod(sub, 2)
        ph = s // 2
        npre = 0
        stall += flush_deadlines(m)
        if m % 512 == 0: e(f"L_q{m//512}:")
        if P["CPF"] and m % 512 == 33: npre += code_touch(m // 512 + P["CPF"])
        if P["STAMPS"] == 1 and m % 512 == 0: stamp()
        if 2 <= P["STAMPS"] < 9 and m % 128 == 0 and P["SG0"] <= m // 128 < P["SG0"] + 12: stamp()
        if P["STAMPS"] == 10 and r == 0 and P["SG0"] <= m // 32 < P["SG0"] + 12: stamp()
        if P["STAMPS"] == 9 and r == 0 and rp == 0 and l == 0 and 1 <= s < 6: stamp()
        if r == 0 and g in BARS:
            vms = []; lgt = None
            for nl in range(3):
                for nph in range(8):
                    if (nl, nph) != (0, 0) and RB(nl, nph) == g:
                        vms.append(half_tag[nph] if (nl == 0 and nph < P["HB"]) else blk_tag.get((nl, nph)))
                        lgt = blk_lg.get((nl, nph))
            for nph in range(P["HB"]):
                if RDG[(0, 2 * nph + 1)][0] == g: vms.append(blk_tag[(0, nph)])
            if g == G12: vms.append(pack_tag[2])
            if g in FLAGBAR: vms.append(st_tag.get(FLAGBAR[g]))
            vms = [t for t in vms if t is not None]
            wait(vm=max(vms) if vms else None, lg=lgt)
            if not P["NOBAR"]: e("s_barrier")
            npre += 2
        for f in pre_ev.get(m, []): npre += f()
        vmt = wtag[g * 4 + 3] if r == 0 else None
        lgt = btag[(1, bt)] if sub == 0 else None
        if r == 0:
            lw = [wlg[f] for f in range(g * 4, g * 4 + 4) if f in wlg]
            if lw: lgt = max(lw + ([lgt] if lgt is not None else []))
        npre += wait(vm=vmt, lg=lgt)
        k, b = acc(2 * rp + h, bt)
        d = rng(k, b)
        e(f"v_mfma_f32_16x16x32_bf16 {d}, {rng(*wslot[g*4 + sub][0])}, {rng('a', bop(l, s, c, bt))}, {'1.0' if (l == 0 and s == 0 and c == 0) else d}")
        npost = 0
        if bt == 7:
            pool.append(wslot[g * 4 + sub])
            npost += wload()
        elif m % P["RAMP"] == 1:
            npost += wload()
        if h == 1 and g < 191 and ORDER[g + 1][:2] != (l, s) and not P['NOJIT']:
            npost += bread(ORDER[g + 1][0], ORDER[g + 1][1], c, bt)
        for f in post_ev.get(m, []): npost += f()
        run_items(m, CAP - npost - npre)
    e("s_nop 7")
    n = 0
    while tasks: n += run_items(NM + 100, 1000)
    sys.stderr.write(f"forced items {stall}, tail items {n}\n")
    if P["STAMPS"]:
        stamp()
        e("s_waitcnt lgkmcnt(0)")
        ns = nstamp[0]
        assert ns <= 16
        for i in range(ns): e(f"v_mov_b32 v{32+i}, s{sSTAMP+2*i}")
        if P["DBG"]:
            for i in range(ns - 1, 0, -1): e(f"v_sub_u32 v{32+i}, v{32+i}, v{32+i-1}")
            e(f"s_cmp_lg_u32 s2, {P['DBG']}"); e("s_cbranch_scc1 L_nodbg")
            e(f"s_cmp_lg_u32 s{sW}, 0"); e("s_cbranch_scc1 L_nodbg")
            e("s_load_dwordx2 s[24:25], s[0:1], 32"); e("s_waitcnt lgkmcnt(0)")
            e("s_and_b32 s25, s25, 0xffff"); e("s_mov_b32 s26, 256"); e("s_mov_b32 s27, 0x20000")
            for i in range(0, 16, 4):
                e(f"buffer_store_dwordx4 {rng('v', 32+i)}, off, s[24:27], 0 offset:{i*4}")
            e("L_nodbg:")
        e(f"s_lshl_b32 s{sTMP}, s2, 8"); e(f"s_lshl_b32 s3, s{sW}, 6"); e(f"s_add_u32 s{sTMP}, s{sTMP}, s3")
        for i in range(0, 16, 4):
            e(f"buffer_store_dwordx4 {rng('v', 32+i)}, off, {SWS}, s{sTMP} offset:{i*4}")
    e("s_cmp_lg_u32 s2, 0"); e("s_cbranch_scc1 L_end")
    e(f"s_cmp_lg_u32 s{sW}, 0"); e("s_cbranch_scc1 L_end")
    e(f"v_mov_b32 v{vP}, s{sT}"); e(f"v_mov_b32 v{vP+1}, s{sT+1}"); e("s_mov_b64 exec, 1")
    e(f"s_mov_b32 s{sTMP}, {EPOCH_OFF}")
    e(f"buffer_store_dwordx2 {rng('v', vP, 2)}, off, {SWS}, s{sTMP}")
    e("L_end:")
    e("s_endpgm")
    for val in spins:
        e(f"L_spin{val}:")
        e(f"s_mov_b32 s{sSPIN}, 0x40000")
        e(f"L_spinl{val}:")
        e("s_sleep 1")
        e(f"buffer_load_dwordx2 {rng('v', vP, 2)}, off, {SWS}, s{sPFLAG} sc1")
        e(f"s_sub_u32 s{sSPIN}, s{sSPIN}, 1")
        e("s_waitcnt vmcnt(0)")
        e(f"s_cmp_eq_u32 s{sSPIN}, 0"); e(f"s_cbranch_scc1 L_back{val}")
        flagchk(val, f"L_spinl{val}")
        e(f"s_branch L_back{val}")
    for val in (0, 1):
        e(f"L_wspin{val}:")
        e(f"s_mov_b32 s{sSPIN}, 0x40000")
        e(f"L_wspinl{val}:")
        e("s_sleep 2")
        wpoll0()
        e(f"s_sub_u32 s{sSPIN}, s{sSPIN}, 1")
        e("s_waitcnt vmcnt(0)")
        e(f"s_cmp_eq_u32 s{sSPIN}, 0"); e(f"s_cbranch_scc1 L_wback{val}")
        wflagchk(val, f"L_wspinl{val}")
        e(f"s_branch L_wback{val}")

LAUNCH = "; @launch grid=(256,1,1) block=(256,1,1) lds=163840"
hdr = f"""; DCN-v2 cross network, 3 layers, B=16384, D=1024, bf16.  Generated by dev/gen.py (hand-written generator).
{LAUNCH}
.amdgcn_target "amdgcn-amd-amdhsa--gfx950"
.text"""
main_kernel()
if P['CPF']: e('.fill 4096, 4, 0xBF800000')
def kd(name, vg, ao, sg):
    return f""".p2align 6
.amdhsa_kernel {name}
  .amdhsa_next_free_vgpr {vg}
  .amdhsa_next_free_sgpr {sg}
  .amdhsa_accum_offset {ao}
  .amdhsa_group_segment_fixed_size 0
  .amdhsa_kernarg_size 48
  .amdhsa_user_sgpr_count 2
  .amdhsa_user_sgpr_kernarg_segment_ptr 1
  .amdhsa_system_sgpr_workgroup_id_x 1
.end_amdhsa_kernel
"""
tail = '\n.section .rodata,"a"\n' + kd(KN, 512, 256, 102)
open(out, "w").write(hdr + "\n" + "\n".join(L) + tail)
```

```python
import sys
out = sys.argv[1]
P = dict(CAP=2, DLEAD=2, DSPREAD=32, STAMPS=0, XSC="sc1", SSC="sc1", POLL_M=64, BIAS_S=11, NOSYNC=0, XDSPREAD=24,
         DOFF=2, NODMA=0, NOBAR=0, NOW=0, NOJIT=0, NOST=0, DEEP=1, XCHK=192, STOFF=5, STSPREAD=20, RAMP=4, XSMALL=0, NOOUT=0, XSTR=131072+1024, CPF=2, ONLY=0, RT=0, WSC=1, DBG=0, OI=0, OPACE=0, DEEPT=0, OSC="",  XDEL=1, PFD=560,  SG0=1, HH=4, TT=4, TL=8, TL2=4, XBA=9, XBB=19, XBC=27, R1M=334, R1S=26, R3M=550, R3S=28, XLAG=170, XD0=550, XDS=30, XDL=20, BS0=9,  PTOUCH=0, HB=4, C12=3, B1M=34, B1S=8, UDS=4, U3D=0, U5D=64, U4D=98, B3=262, B3S=24, M12=11,  NSELF=6, FB=0, WCHK=280, WPOLL=64, B2=132, B2S=16, BLK1E=1, U2M=40, U3M=100, U5M=200, U4M=226)
for kv in sys.argv[2:]:
    k, v = kv.split("=")
    P[k] = v.replace("+", " ").replace("none", "") if k in ("XSC", "SSC", "OSC") else int(v)
CAP = P["CAP"]

KN = "standalone__cross_network_dcn__recsys_kernel"
PK = "dcn_pack_kernel"
WP_OFF = 0x100000
FLAG_OFF = 0x800000
X_OFF = P.get("XOFF", 0x1000000)
L = []
def e(s): L.append(s)

class Ctr:
    def __init__(s, name, mx): s.name, s.mx, s.n, s.done = name, mx, 0, 0
    def issue(s):
        s.n += 1
        return s.n - 1
    def need(s, idx):
        if idx is None or idx < s.done: return None
        N = min(s.n - 1 - idx, s.mx)
        s.done = max(s.done, s.n - N)
        return N
VM = Ctr("vmcnt", 63); LG = Ctr("lgkmcnt", 15)
def wait(vm=None, lg=None):
    a = VM.need(vm); b = LG.need(lg)
    parts = []
    if a is not None: parts.append(f"vmcnt({a})")
    if b is not None: parts.append(f"lgkmcnt({b})")
    if parts:
        e("s_waitcnt " + " ".join(parts)); return 1
    return 0
def wait_lg_all():
    e("s_waitcnt lgkmcnt(0)"); LG.done = LG.n

vL0, vK, vXR, vW0, vW1, vLX, vB, vP = 0, 1, 5, 6, 7, 8, 9, 10
T = 12
def acc(a, bt):
    if a < 7:
        b = 32 + (a * 8 + bt) * 4
        return ("v", b)
    return ("a", 224 + bt * 4)
def rng(k, b, n=4): return f"{k}[{b}:{b+n-1}]"
def x0r(j, bt): return (j * 8 + bt) * 4
def breg(c, bt): return 96 + (c * 8 + bt) * 4
SX0, SOUT, SWS, SBS, SWR = "s[12:15]", "s[16:19]", "s[20:23]", "s[24:27]", "s[4:7]"
sT, sSELF, sS2 = 8, 10, 11
EPOCH_OFF = 0x810000
sW, sHF, sWOFF, sW2048, sW8192, sMASK, sTMP, sFLAG, sPFLAG, sBOFF, sSPIN, sTMP2 = 28, 29, 30, 31, 32, 33, 34, 35, 36, 37, 38, 39
sXO = 40
sXOWN = 48
sXOTH = 50
sXST = 52
sXLD = 56
sSTAMP = 60
nstamp = [0]
def pstamp():
    if P["STAMPS"] == 9: stamp()
def stamp():
    if P["STAMPS"]:
        e(f"{'s_memrealtime' if P['RT'] else 's_memtime'} s[{sSTAMP+2*nstamp[0]}:{sSTAMP+2*nstamp[0]+1}]"); nstamp[0] += 1
NM = 3 * 2048
ORDER = []
for l in range(3):
    H = P["HH"] if l > 0 else 0
    Tn = P["TT"] if l < 2 else P["TL"]
    T2 = P["TL2"] if l == 2 else 0
    ORDER += [(l, s, rp) for s in range(H) for rp in (0, 1)] + [(l, s, rp) for s in range(H) for rp in (2, 3)]
    ORDER += [(l, s, rp) for s in range(H, 16 - Tn) for rp in range(4)]
    ORDER += [(l, s, rp) for s in range(16 - Tn, 16) for rp in (0, 1)]
    ORDER += [(l, s, rp) for s in range(16 - Tn, 16 - T2) for rp in (2, 3)]
    ORDER += [(l, s, 2) for s in range(16 - T2, 16)] + [(l, s, 3) for s in range(16 - T2, 16)]
assert len(set(ORDER)) == 192
GPOS = {k: i for i, k in enumerate(ORDER)}
M = lambda l, s, rp=0, bt=0, sub=0: GPOS[(l, s, rp)] * 32 + bt * 4 + sub
RDG = {}
for i in range(1, 192):
    if ORDER[i][:2] != ORDER[i - 1][:2]: RDG.setdefault(ORDER[i][:2], []).append(i - 1)
def RB(l, ph): return min(RDG[(l, 2 * ph)] + RDG[(l, 2 * ph + 1)])
def LRD(l, ph): return max(RDG.get((l, 2 * ph), [-1]) + RDG[(l, 2 * ph + 1)])
BARS = set(RB(l, ph) for l in range(3) for ph in range(8) if (l, ph) != (0, 0))
BARS |= set(RDG[(0, 2 * ph + 1)][0] for ph in range(P["HB"]))
BARS |= set(64 * l + P[k] for l in (1, 2) for k in ("XBA", "XBB", "XBC"))
def free_at(l, ph):
    pl, pp = (l, ph - 4) if ph >= 4 else (l - 1, ph + 4)
    if pl < 0: return 0
    return 32 * min(b for b in BARS if b >= LRD(pl, pp) + 2)

def bop(l, s, c, bt):
    if P['DEEP'] < 2 and l == 0 and c == 0 and s in (8, 10, 12): return x0r((s - 8) // 2, bt)
    return breg(c, bt)

def main_kernel():
    e(f".globl {KN}"); e(".p2align 8"); e(f".type {KN},@function"); e(f"{KN}:")
    e("s_cmp_ge_u32 s2, 256"); e("s_cbranch_scc1 L_end")
    if P["PTOUCH"]:
        e("s_getpc_b64 s[92:93]")
        e("v_lshrrev_b32 v12, 6, v0"); e("s_lshr_b32 s94, s2, 3"); e("v_readfirstlane_b32 s95, v12")
        e("s_and_b32 s94, s94, 15"); e("s_lshl_b32 s94, s94, 2"); e("s_add_u32 s94, s94, s95"); e("s_lshl_b32 s94, s94, 7")
        e("s_add_u32 s92, s92, s94"); e("s_addc_u32 s93, s93, 0")
        e("s_load_dword s98, s[92:93], 0")
    e("s_load_dwordx4 s[4:7], s[0:1], 0")
    e("s_load_dwordx4 s[8:11], s[0:1], 16")
    e("s_load_dwordx4 s[40:43], s[0:1], 32")
    stamp()
    e("v_lshrrev_b32 v12, 6, v0")
    e("v_and_b32 v13, 63, v0")
    e(f"v_readfirstlane_b32 s{sW}, v12")
    e(f"v_lshlrev_b32 v{vL0}, 4, v13")
    for k in range(4): e(f"v_add_u32 v{vK+k}, {k*8192}, v{vL0}")
    e(f"v_lshl_add_u32 v{vW0}, v12, 13, v{vL0}")
    e(f"v_add_u32 v{vW1}, 0x10000, v{vW0}")
    e(f"v_add_u32 v{vLX}, 0x20000, v{vW0}")
    e("v_and_b32 v14, 15, v13"); e("v_lshrrev_b32 v15, 4, v13")
    e(f"v_lshlrev_b32 v{vB}, 4, v15")
    e(f"v_lshl_add_u32 v{vXR}, v14, 11, v{vB}")
    e("s_and_b32 s3, s2, 7"); e(f"s_lshr_b32 s{sTMP}, s2, 4"); e(f"s_lshl_b32 s{sTMP}, s{sTMP}, 3"); e(f"s_or_b32 s3, s3, s{sTMP}")
    e(f"s_lshr_b32 s{sHF}, s2, 3"); e(f"s_and_b32 s{sHF}, s{sHF}, 1")
    e(f"s_lshl_b32 s{sW2048}, s{sW}, 11"); e(f"s_lshl_b32 s{sW8192}, s{sW}, 13")
    e(f"s_mov_b32 s{sMASK}, 0xffff0000")
    e("s_lshl_b32 s3, s3, 18")
    e(f"s_lshl_b32 s{sTMP2}, s{sHF}, 2"); e(f"s_add_u32 s{sTMP2}, s{sTMP2}, s{sW}")
    e(f"s_lshl_b32 s{sBOFF}, s{sTMP2}, 8")
    e(f"s_lshl_b32 s{sTMP}, s{sW}, 16"); e(f"s_add_u32 s{sTMP}, s{sTMP}, s3")
    e(f"s_lshl_b32 s{sXOWN}, s{sHF}, 10"); e(f"s_xor_b32 s{sXOTH}, s{sXOWN}, 1024")
    e(f"s_add_u32 s{sXOWN}, s{sXOWN}, s{sTMP}"); e(f"s_add_u32 s{sXOTH}, s{sXOTH}, s{sTMP}")
    e(f"s_add_u32 s{sXOWN+1}, s{sXOWN}, 32768"); e(f"s_add_u32 s{sXOTH+1}, s{sXOTH}, 32768")
    e(f"s_mul_i32 s{sWOFF}, s{sTMP2}, {3*8*32768}"); e(f"s_add_u32 s{sWOFF}, s{sWOFF}, {WP_OFF + P['NSELF']*8192}")
    e("s_waitcnt lgkmcnt(0)")
    pstamp()
    for (s, ptr, n) in ((24, 8, 6144), (12, 4, 0x2000000), (20, 42, 0x10000000), (16, 10, 0x2000000), (4, 6, 0x600000)):
        e(f"s_mov_b32 s{s}, s{ptr}"); e(f"s_and_b32 s{s+1}, s{ptr+1}, 0xffff"); e(f"s_mov_b32 s{s+2}, {hex(n)}"); e(f"s_mov_b32 s{s+3}, 0x20000")

    def bias_load(l, j):
        e(f"buffer_load_dwordx4 {rng('v', T+4*j)}, v{vB}, {SBS}, s{sBOFF} offen offset:{(l*2048 + j*64) % 4096}")
        return VM.issue()
    wtag = {}; wslot = {}; wlg = {}
    wok = [0]
    pf_req = []; cur_m = [0]
    busy = []
    wload_n = [0]
    pool = [(("a", 160 + 4 * i), NM) for i in range(16)]
    if P["DEEP"]:
        for j in (2, 1, 0):
            if P["DEEP"] >= 2 and j >= P["DEEP"] - 1: continue
            pool += [(("a", x0r(j, bt)), 32 * RDG[(0, 8 + 2 * j)][0] if P["DEEP"] < 2 else NM) for bt in range(8)]
    def last_use(f): return 32 * (f // 4) + 28 + f % 4
    def wload():
        f = wload_n[0]
        if f >= wok[0]: return 0
        while pool and pool[0][1] <= last_use(f): pool.pop(0)
        if not pool: return 0
        sl = pool.pop(0)
        wslot[f] = sl
        wload_n[0] += 1
        if P['NOW'] and f >= 16:
            wtag[f] = None; return 0
        k = f % 4
        nt = 0
        if pf_req:
            q = pf_req.pop(0)
            for x in busy: assert not (x[0] <= cur_m[0] <= x[1]), ("touch in busy", cur_m[0], x)
            lins = sorted(ORDER[g][0] * 64 + ORDER[g][1] * 4 + ORDER[g][2] for g in range(16 * q, 16 * q + 16))
            if lins == list(range(lins[0], lins[0] + 16)): sb = 101
            else:
                assert lins == [lins[0] + (i >> 1) * 4 + (i & 1) for i in range(16)]; sb = 3
            e(f"v_lshlrev_b32 v{vP+1}, 2, v{vL0}"); e(f"s_add_u32 s{sTMP}, s{sb}, {lins[0]*4096}")
            e(f"buffer_load_dword {sl[0][0]}{sl[0][1]}, v{vP+1}, {SWS}, s{sTMP} offen{' sc1' if P['WSC'] else ''}"); VM.issue(); nt = 3
        e(f"buffer_load_dwordx4 {rng(*sl[0])}, v{vL0}, {SWS}, s{sWOFF} offen offset:{k*1024}{' sc1' if P['WSC'] else ''}")
        wtag[f] = VM.issue()
        n = 1 + nt
        if k == 3 and f + 1 < 768:
            lin = lambda g: ORDER[g][0] * 64 + ORDER[g][1] * 4 + ORDER[g][2]
            e(f"s_add_u32 s{sWOFF}, s{sWOFF}, {hex(((lin(f // 4 + 1) - lin(f // 4)) * 4096) & 0xffffffff)}"); n += 1
        return n
    def x0_io(ph, ksl): return ph * 256 + ksl * 64 if ph < 4 else ksl * 256 + (ph - 4) * 64
    m0own = [None]
    def dma_x0_m0(ph, ksl, i):
        m0own[0] = ("x", ph, ksl, i)
        e(f"s_add_u32 m0, s{sW2048}, {(ph % 4)*32768 + ksl*8192 + i*1024 - x0_io(ph, ksl)}")
    def dma_x0_ld(ph, ksl, i):
        assert m0own[0] == ("x", ph, ksl, i)
        so = (sXOTH if ph < 4 else sXOWN) + i
        e(f"buffer_load_dwordx4 v{vXR}, {SX0}, s{so} offen offset:{x0_io(ph, ksl)} lds")
        return VM.issue()
    blk_tag = {}
    blk_lg = {}
    st_tag = {}

    UB = T + 16
    vSG, vCG, vCT, vFL, vTR, vTR4 = 12, 13, 14, 15, 16, 20
    def code_touch(q):
        if q > 11: return 0
        e(f"s_add_u32 s96, s92, L_q{q}-L_pc"); e("s_addc_u32 s97, s93, 0")
        e("s_load_dword s98, s[96:97], 0")
        return 3
    e(f"s_add_u32 s96, s42, {EPOCH_OFF}"); e("s_addc_u32 s97, s43, 0")
    e(f"s_load_dwordx2 s[{sT}:{sT+1}], s[96:97], 0")
    e("v_mov_b32 v24, v12"); e("v_mov_b32 v25, v13"); e("v_mov_b32 v26, v14"); e("v_mov_b32 v27, v15")
    e("v_lshrrev_b32 v28, 2, v25"); e("v_and_b32 v29, 3, v25")
    e(f"v_lshlrev_b32 v{vCG}, 11, v28"); e(f"v_lshl_add_u32 v{vCG}, v29, 4, v{vCG}")
    e(f"s_lshr_b32 s44, s2, 3"); e("s_and_b32 s45, s2, 7")
    e("s_lshl_b32 s46, s44, 16"); e("s_lshl_b32 s47, s45, 8"); e("s_add_u32 s46, s46, s47")
    e(f"s_lshl_b32 s47, s{sW}, 6"); e("s_add_u32 s100, s46, s47")
    coop_tag = {}
    def coop_dma(l, n):
        m0own[0] = None
        e(f"s_add_u32 m0, s{sW2048}, {(32768 if l == 0 else 131072) + l*8192 + n*1024}")
        e(f"s_add_u32 s{sS2}, s100, {l*0x200000 + n*32768}")
        e(f"buffer_load_dwordx4 v{vCG}, {SWR}, s{sS2} offen lds"); coop_tag[l] = VM.issue()
        return 3
    coop_dma(0, 0); coop_dma(0, 1)
    pstamp()
    e(f"v_lshlrev_b32 v30, 2, v27"); e("v_xor_b32 v30, v30, v26"); e("v_lshlrev_b32 v30, 4, v30")
    e(f"v_lshl_add_u32 v{vSG}, v27, 11, v30")
    e(f"s_xor_b32 s{sSELF}, s{sHF}, 1"); e(f"s_lshl_b32 s{sSELF}, s{sSELF}, 20"); e(f"s_add_u32 s{sSELF}, s{sSELF}, s{sBOFF}")
    REG = {0: 2, 1: 3, 2: 4, 3: 2, 4: 4, 5: 3}
    self_tag = {}; self_lg = {}
    def self_dma1(n, ch):
        m0own[0] = None
        e(f"s_add_u32 m0, s{sW2048}, {REG[n]*32768 + (ch>>1)*8192 + (ch&1)*1024}")
        e(f"s_add_u32 s{sS2}, s{sSELF}, {n*65536 + ch*8192}")
        e(f"buffer_load_dwordx4 v{vSG}, {SWR}, s{sS2} offen lds"); self_tag[n] = VM.issue()
        return 3
    def self_dma(n):
        for ch in range(8): self_dma1(n, ch)
    def self_read1(n, a, u):
        j, h = divmod(a, 2)
        f = ((n // 2) * 4 + j) * 4 + 2 * h + n % 2
        w_ = 0
        if a == 0 and u == 0: w_ = wait(vm=self_tag[n])
        if u == 0:
            while pool[0][1] <= last_use(f): pool.pop(0)
            wslot[f] = pool.pop(0)
        k, b = wslot[f][0]
        R = REG[n]
        e(f"ds_read_b64_tr_b16 {rng(k, b+2*u, 2)}, v{(vTR4 if R == 4 else vTR)+j} offset:{(R % 2)*32768 + u*1024 + 8*h}")
        self_lg[n] = wlg[f] = LG.issue(); wtag[f] = None
        return 1 + w_
    half_tag = {}
    def blk_dma(ph, hv):
        for ksl in (2 * hv, 2 * hv + 1):
            for i in range(2):
                dma_x0_m0(ph, ksl, i); e("s_nop 0")
                blk_tag[(0, ph)] = dma_x0_ld(ph, ksl, i)
        if hv == 0: half_tag[ph] = blk_tag[(0, ph)]
    self_dma(0); self_dma(1); blk_dma(0, 0)
    pstamp()
    e("v_bfe_u32 v28, v25, 2, 2")
    e(f"v_lshlrev_b32 v30, 11, v24"); e("v_lshl_add_u32 v30, v29, 4, v30")
    e("v_lshrrev_b32 v31, 1, v27"); e(f"v_lshl_add_u32 v{vCT}, v31, 10, v30")
    e("v_and_b32 v31, 1, v27"); e("v_lshl_add_u32 v31, v31, 3, v28"); e(f"v_lshl_add_u32 v{vCT}, v31, 6, v{vCT}")
    e(f"v_add_u32 v{vCT}, 0x8000, v{vCT}")
    e("v_lshl_add_u32 v30, v27, 13, v30"); e("v_lshl_add_u32 v30, v28, 8, v30"); e("v_add_u32 v30, 0x10000, v30")
    for j in range(4):
        e(f"v_xor_b32 v31, {j}, v28"); e(f"v_lshl_add_u32 v{vTR+j}, v31, 6, v30"); e(f"v_add_u32 v{vTR4+j}, 0x10000, v{vTR+j}")
    e("s_lshr_b32 s40, s44, 2"); e("s_and_b32 s41, s44, 3"); e("s_and_b32 s42, s45, 4")
    e("s_xor_b32 s42, s40, s42")
    e("s_and_b32 s43, s42, 3")
    e("s_and_b32 s46, s45, 3"); e("s_xor_b32 s46, s43, s46")
    e("s_and_b32 s47, s42, 4"); e("s_or_b32 s47, s47, s41")
    def dcalc(d, ph, ka):
        e(f"s_lshl_b32 s{d}, s{ph}, 15")
        e(f"s_lshr_b32 s{sTMP}, s{ka}, 1"); e(f"s_lshl_b32 s{sTMP}, s{sTMP}, 14"); e(f"s_add_u32 s{d}, s{d}, s{sTMP}")
        e(f"s_and_b32 s{sTMP}, s{ka}, 1"); e(f"s_lshl_b32 s{sTMP}, s{sTMP}, 10"); e(f"s_add_u32 s{d}, s{d}, s{sTMP}")
    dcalc(57, 47, 46)
    e("s_xor_b32 s47, s47, 4")
    e("s_cmp_lt_u32 s42, 4")
    e("s_cselect_b32 s47, s47, s43"); e("s_cselect_b32 s46, s46, s41")
    dcalc(58, 47, 46)
    e(f"s_mul_i32 s40, s45, {3*262144}"); e(f"s_lshl_b32 s41, s{sW}, 12"); e("s_add_u32 s40, s40, s41"); e(f"s_add_u32 s40, s40, {WP_OFF}")
    e("s_add_u32 s57, s40, s57"); e("s_add_u32 s58, s40, s58")
    e("s_add_u32 s57, s57, 262144"); e("s_add_u32 s99, s57, 262144")
    CD = {0: 58, 1: 57, 2: 99}
    e("s_getpc_b64 s[92:93]")
    e("L_pc:")
    e(f"s_lshr_b32 s94, s2, 3"); e(f"s_lshl_b32 s94, s94, 2"); e(f"s_add_u32 s94, s94, s{sW}")
    e(f"s_lshl_b32 s94, s94, 7")
    e("s_add_u32 s92, s92, s94"); e("s_addc_u32 s93, s93, 0")
    for q in range(P["CPF"]): code_touch(q)
    e(f"s_xor_b32 s{sPFLAG}, s2, 8")
    e(f"s_mul_i32 s{sXST}, s2, {P['XSTR']}"); e(f"s_add_u32 s{sXST}, s{sXST}, {X_OFF}")
    e(f"s_mul_i32 s{sXLD}, s{sPFLAG}, {P['XSTR']}"); e(f"s_add_u32 s{sXLD}, s{sXLD}, {X_OFF}")
    e(f"s_add_u32 s{sXLD}, s{sXLD}, s{sW8192}")
    for k in range(1, 4): e(f"s_add_u32 s{sXST+k}, s{sXST}, {(k//2)*32768 + (k%2)*4096}")
    e(f"s_lshl_b32 s{sFLAG}, s2, 7"); e(f"s_add_u32 s{sFLAG}, s{sFLAG}, {FLAG_OFF}")
    e(f"s_xor_b32 s{sPFLAG}, s{sFLAG}, {8*128}")
    e(f"s_lshr_b32 s59, s{sBOFF}, 1"); e(f"s_add_u32 s59, s59, {FLAG_OFF}")
    stamp()
    ct = {}; pack_tag = {}
    def creg(l, h): return ('a', 96 + h * 4) if l == 0 else ('v', 16 + ((l - 1) * 2 + h) * 4)
    def coop_read(l, h, u):
        w_ = wait(vm=coop_tag[l])
        k, b = creg(l, h)
        e(f"ds_read_b64_tr_b16 {rng(k, b + 2*u, 2)}, v{vCT} offset:{l*8192 + u*256 + h*8}")
        ct[(l, h)] = LG.issue(); return 1 + w_
    def coop_store(l, h):
        w_ = wait(lg=ct[(l, h)])
        e(f"buffer_store_dwordx4 {rng(*creg(l, h))}, v{vL0}, {SWS}, s{CD[l]} offen offset:{h*2048} sc1")
        pack_tag[l] = VM.issue(); return 1 + w_
    wait(vm=coop_tag[0])
    pstamp()
    for h in range(2):
        for u in range(2): coop_read(0, h, u)
    for h in range(2): coop_store(0, h)
    e(f"v_add_u32 v{vCT}, 0x18000, v{vCT}")
    blk_dma(0, 1); self_dma(2)
    pstamp()
    wait_lg_all()
    e(f"s_add_u32 s{sT}, s{sT}, 16"); e(f"s_addc_u32 s{sT+1}, s{sT+1}, 0")
    e(f"s_and_b32 s{sT}, s{sT}, -16"); e(f"s_and_b32 s{sT+1}, s{sT+1}, 0x7fffffff")
    e(f"s_add_u32 s{sXO}, s3, s{sBOFF}")
    for bt in range(1, 8): e(f"s_add_u32 s{sXO+bt}, s{sXO}, {bt*32768}")
    e(f"s_lshr_b32 s{sTMP}, s2, 4"); e(f"s_lshl_b32 s101, s{sTMP}, 12")
    e(f"s_lshr_b32 s3, s{sTMP}, 1"); e(f"s_lshl_b32 s3, s3, 2"); e(f"s_and_b32 s{sTMP}, s{sTMP}, 1"); e(f"s_add_u32 s3, s3, s{sTMP}"); e("s_lshl_b32 s3, s3, 12")
    e(f"s_sub_u32 s{sTMP}, s{sWOFF}, {P['NSELF']*8192}")
    e(f"s_add_u32 s101, s101, s{sTMP}"); e(f"s_add_u32 s3, s3, s{sTMP}")
    pstamp()
    for n in (0, 1):
        for a in range(8):
            for u in range(2): self_read1(n, a, u)
    pstamp()
    wait(vm=half_tag[0] if P["HB"] else blk_tag[(0, 0)])
    if P["FB"] == 0: wait(vm=pack_tag[0])
    e("s_barrier")
    stamp()
    def setflag(val):
        e(f"s_cmp_lg_u32 s{sW}, 0"); e(f"s_cbranch_scc1 L_nf{val}")
        e(f"s_add_u32 s{sTMP}, s{sT}, {val}")
        e(f"v_mov_b32 v{vP}, s{sTMP}"); e(f"v_mov_b32 v{vP+1}, s{sT+1}"); e("s_mov_b64 exec, 1")
        e(f"buffer_store_dwordx2 {rng('v', vP, 2)}, off, {SWS}, s{sFLAG} sc1")
        e("s_mov_b64 exec, -1")
        e(f"L_nf{val}:")
        return 2
    if P["FB"] == 0: setflag(0)
    wload_n[0] = 8 * P["NSELF"]
    btag = {}
    kst = {k: (0, 0) for k in range(4)}
    capt = set()
    def bread(l, s, c, bt):
        kap = (s % 2) * 2 + c
        if bop(l, s, c, bt) < 96:
            if (s, bt) in capt: return 0
            capt.add((s, bt))
        n = 1
        want = (0 if (l == 0 and s < 8) else 1, (s // 4) % 2)
        if kst[kap] != want:
            e(f"v_xor_b32 v{vK+kap}, {hex(kap*8192 + want[1]*65536)}, v{vW0 if want[0] else vL0}"); kst[kap] = want; n += 1
        off = ((s // 2) % 2) * 32768 + bt * 1024
        e(f"ds_read_b128 {rng('a', bop(l, s, c, bt))}, v{vK+kap} offset:{off}")
        btag[(c, bt)] = LG.issue()
        return n
    for bt in range(8):
        for c in range(2): bread(0, 0, c, bt)

    tasks = []
    def add_task(ready, deadline, items): tasks.append([ready, deadline, list(items)])
    pre_ev = {}; post_ev = {}
    def at_pre(m, f): pre_ev.setdefault(m, []).append(f)
    def at_post(m, f): post_ev.setdefault(m, []).append(f)

    def sched_dma(l, ph, m0, spread):
        if P['NODMA']: return
        assert m0 >= free_at(l, ph), (l, ph, m0, free_at(l, ph))
        assert m0 + 7 * spread < 32 * RB(l, ph), (l, ph)
        sys.stderr.write(f"dma ({l},{ph}) {m0 % 2048}..{(m0 + 7 * spread) % 2048} free {free_at(l, ph) % 2048} need {32 * RB(l, ph) % 2048}\n")
        if l == 0:
            seq = [(j, i) for j in range(4) for i in range(2)]
            for n, (j, i) in enumerate(seq):
                m = m0 + n * spread
                at_pre(m, lambda j=j, i=i: (dma_x0_m0(ph, j, i), 1)[1])
                def ld(j=j, i=i):
                    blk_tag[(l, ph)] = dma_x0_ld(ph, j, i)
                    if (j, i) == (1, 1): half_tag[ph] = blk_tag[(l, ph)]
                    return 1
                at_post(m, ld)
        else:
            j = ph % 4
            for n in range(8):
                m = m0 + n * spread
                if n % 4 == 0:
                    def setm(n=n):
                        m0own[0] = ("e", l, ph, n // 4)
                        e(f"s_add_u32 m0, s{sW8192}, {j*32768 + (n//4)*4096}")
                        if P['XSMALL'] == 2: e(f"s_add_u32 s{sTMP2}, s{sXLD}, {(j%2)*32768 + (n//4)*4096}")
                        else: e(f"s_add_u32 s{sTMP2}, s{sXLD}, {(l-1)*256*P['XSTR'] + j*32768 + (n//4)*4096}")
                        return 2
                    at_pre(m, setm)
                def ld(n=n):
                    assert m0own[0] == ("e", l, ph, n // 4)
                    e(f"buffer_load_dwordx4 v{vL0}, {SWS}, s{sTMP2} offen offset:{(n%4)*1024} {P['XSC']} lds")
                    blk_tag[(l, ph)] = VM.issue(); return 1
                at_post(m, ld)
    sched_dma(0, 1, P["B1M"], P["B1S"])
    def sched_sdma(n, prev, m0):
        at_post(m0, lambda: wait(lg=self_lg[prev]))
        for ch in range(8): at_post(m0 + P["UDS"] * ch, lambda ch=ch: self_dma1(n, ch))
    sched_sdma(3, 0, P["U3D"])
    if P["NSELF"] > 4:
        sched_sdma(5, 1, P["U5D"]); sched_sdma(4, 2, P["U4D"])
        assert P["U2M"] + 16 < P["U4D"]
    mc = M(0, P["C12"]) + 10
    at_post(mc, lambda: wait(lg=self_lg[4 if P["NSELF"] > 4 else 2]))
    for i, (l, n) in enumerate([(1, 0), (1, 1), (2, 0), (2, 1)]): at_post(mc + 16 * i, lambda l=l, n=n: coop_dma(l, n))
    for i, (l, h, u) in enumerate([(l, h, u) for l in (1, 2) for h in range(2) for u in range(2)]):
        at_post(mc + 224 + 2 * i, lambda l=l, h=h, u=u: coop_read(l, h, u))
    for i, (l, h) in enumerate([(l, h) for l in (1, 2) for h in range(2)]): at_post(mc + 250 + 16 * i, lambda l=l, h=h: coop_store(l, h))
    PH12 = P["C12"] // 2 + 2
    G12 = RB(0, PH12 + 1)
    assert mc + 250 + 48 + 100 < 32 * G12
    at_post(32 * G12, lambda: setflag(1))
    for ph in range(P["DLEAD"], 8):
        if ph == 2:
            at_pre(P["B2"], lambda: wait(lg=self_lg[3]))
            sched_dma(0, ph, P["B2"], P["B2S"])
        elif ph == 3 and P["NSELF"] > 4:
            at_pre(P["B3"], lambda: wait(lg=self_lg[5]))
            sched_dma(0, ph, P["B3"], P["B3S"])
        else: sched_dma(0, ph, M(0, 2 * (ph - P["DLEAD"])) + P["DOFF"], P["DSPREAD"])
    def sched_self(n, m0):
        for a in range(8):
            for u in range(2): at_post(m0 + 2 * a + u, lambda a=a, u=u: self_read1(n, a, u))
    sched_self(2, P["U2M"]); sched_self(3, P["U3M"])
    if P["NSELF"] > 4:
        sched_self(5, P["U5M"]); sched_self(4, P["U4M"])
        assert P["U5M"] + 16 < P["B3"]
    assert P["U3M"] + 16 < P["B2"]
    if P["FB"]:
        def fbar():
            wait(vm=pack_tag[0]); e("s_barrier"); return 2 + setflag(0)
        at_pre(P["FB"], fbar)
    wp = [None]
    def wpoll0():
        e(f"v_and_b32 v{vP}, 0x1f0, v{vL0}"); e(f"v_lshlrev_b32 v{vP}, 6, v{vP}")
        e(f"buffer_load_dwordx2 {rng('v', vP, 2)}, v{vP}, {SWS}, s59 offen sc1")
    def wpoll():
        wpoll0(); wp[0] = VM.issue(); return 3
    def wflagchk(val, lab):
        e(f"s_add_u32 s{sTMP}, s{sT}, {val}")
        e(f"v_subrev_u32 v{vP}, s{sTMP}, v{vP}"); e(f"v_xor_b32 v{vP+1}, s{sT+1}, v{vP+1}"); e("s_nop 0")
        e(f"v_cmp_gt_u64 vcc, {16-val}, {rng('v', vP, 2)}"); e("s_nop 3")
        e("s_cmp_lg_u64 vcc, -1"); e(f"s_cbranch_scc1 {lab}")
    def wchk(val):
        wait(vm=wp[0])
        wflagchk(val, f"L_wspin{val}")
        e(f"L_wback{val}:")
        wok[0] = 256 if val == 0 else 768
        return 8
    m12 = P["M12"] * 128 + 48
    for val, mm in ((0, P["WCHK"]), (1, m12)):
        at_post(mm - P["WPOLL"], wpoll)
        at_post(mm, lambda val=val: wchk(val))
        busy.append((mm - P["WPOLL"], mm))
    if P["PFD"]:
        for q in range(1, 12):
            mq = max(512 * q - P["PFD"], P["WCHK"] + 8 if q < 4 else m12 + 8)
            at_post(mq, lambda q=q: (pf_req.append(q), 0)[1])
    x0l_lg = [None]
    for bt in range(8):
        def wr(bt=bt):
            e(f"ds_write_b128 v{vLX}, {rng('a', breg(0, bt))} offset:{bt*1024}")
            x0l_lg[0] = LG.issue(); return 1
        at_post(M(0, 14, 0, bt) + 5, wr)
    ptag = {}
    def flagchk(val, lab):
        e(f"v_readfirstlane_b32 s{sTMP}, v{vP}"); e(f"v_readfirstlane_b32 s{sS2}, v{vP+1}")
        e(f"s_xor_b32 s{sTMP}, s{sTMP}, s{sT}"); e(f"s_sub_u32 s{sTMP}, s{sTMP}, {val}")
        e(f"s_cmp_lg_u32 s{sS2}, s{sT+1}"); e(f"s_cbranch_scc1 {lab}")
        e(f"s_cmp_gt_u32 s{sTMP}, {15-val}"); e(f"s_cbranch_scc1 {lab}")
    spins = []
    FLAGBAR = {}
    def xst(l, j, bt, reg):
        if P['NOST']: return 0
        e(f"buffer_store_dwordx4 {rng('v', reg)}, v{vW0 if j < 2 else vW1}, {SWS}, s{sXST + (j%2)*2 + bt//4} offen offset:{(bt%4)*1024} {P['SSC']}")
        st_tag[(l, j)] = VM.issue(); return 1
    rr_tag = {}
    for l in (1, 2):
        sp = P["XDS"] if l == 1 else P["XDL"]
        for j, m0, st in ((1, P["R1M"], P["R1S"]), (3, P["R3M"], P["R3S"])) if P["XDEL"] else ():
            for bt in range(8):
                reg = T + 8 + 4 * (bt % 2)
                def rr(l=l, j=j, bt=bt, reg=reg):
                    off = j * 32768 + bt * 1024
                    e(f"ds_read_b128 {rng('v', reg)}, v{vW0 if off < 65536 else vW1} offset:{off % 65536}")
                    rr_tag[(l, j, bt)] = LG.issue(); return 1
                def ws(l=l, j=j, bt=bt, reg=reg):
                    w_ = wait(lg=rr_tag[(l, j, bt)]); return w_ + xst(l, j, bt, reg)
                m = 2048 * l + m0 + bt * st
                at_post(m - 10, rr); at_post(m, ws)
                assert m - 10 > M(l, 0, 3) + 32 and m + 40 < 32 * (64 * l + P['XBB' if j == 1 else 'XBC'])
        mm = 2048 * l + P["XD0"]
        for fi, (key, sblk, blks) in enumerate((("XBA", 2, (4,)), ("XBB", 1, (5, 6)), ("XBC", 3, (7,)))):
            val = 3 * (l - 1) + fi + 2
            gb = 64 * l + P[key]
            FLAGBAR[gb] = (l, sblk)
            mchk = max(mm, free_at(l, blks[0]), 32 * gb + P["XLAG"]) + 2
            if not P["NOSYNC"]:
                at_post(32 * gb, lambda val=val: setflag(val)); busy.append((32 * gb, 32 * gb))
                def poll(val=val):
                    e(f"buffer_load_dwordx2 {rng('v', vP, 2)}, off, {SWS}, s{sPFLAG} sc1")
                    ptag[val] = VM.issue(); return 1
                busy.append((mchk - P["POLL_M"], mchk))
                at_post(mchk - P["POLL_M"], poll)
                def chk(val=val):
                    wait(vm=ptag[val])
                    flagchk(val, f"L_spin{val}")
                    e(f"L_back{val}:")
                    return 8
                at_post(mchk, chk)
                spins.append(val)
            mm = mchk + 1
            for bk in blks:
                mm = max(mm, free_at(l, bk) + 1)
                sched_dma(l, bk, mm, sp)
                mm += 8 * sp
        busy.sort()
        for x, y in zip(busy, busy[1:]): assert x[1] < y[0], (x, y)
        if l == 1:
            def bump():
                for k in range(4): e(f"s_add_u32 s{sXST+k}, s{sXST+k}, {256*P['XSTR']}")
                return 4
            at_post(M(1, 9, 1), bump)
    for l in (0, 1, 2):
        bt_tags = {}
        Tn = P["TT"] if l < 2 else P["TL"]
        for j in range(4):
            sb = (P["BS0"] if l == 0 else P["HH"] - 1) if j < 2 else 15 - Tn
            rdy = M(l, sb, j) + 36
            if l > 0 and j < 2: rdy = max(rdy, M(l, 0, 3) + 32 + 100)
            def ld(j=j, l=l):
                if l == 2 and j == 0: e(f"s_add_u32 s{sBOFF}, s{sBOFF}, 4096")
                bt_tags[j] = bias_load(l, j); return 1
            at_post((rdy - 96 if j % 2 == 0 else prev_ld + 4), ld)
            prev_ld = rdy - 96
            items = []
            for h in range(2):
                def first(j=j, h=h): wait(vm=bt_tags[j]); e(f"v_lshlrev_b32 v{UB}, 16, v{T+4*j+2*h}")
                items.append(first)
                items.append(lambda j=j, h=h: e(f"v_and_b32 v{UB+1}, s{sMASK}, v{T+4*j+2*h}"))
                items.append(lambda j=j, h=h: e(f"v_lshlrev_b32 v{UB+2}, 16, v{T+4*j+2*h+1}"))
                items.append(lambda j=j, h=h: e(f"v_and_b32 v{UB+3}, s{sMASK}, v{T+4*j+2*h+1}"))
                for bt in range(8):
                    k, b = acc(2 * j + h, bt)
                    if k == "v":
                        for r in range(4):
                            items.append(lambda b=b, r=r: e(f"v_add_f32 v{b+r}, v{b+r}, v{UB+r}"))
                    else:
                        for r in range(4): items.append(lambda b=b, r=r: e(f"v_accvgpr_read_b32 v{T+r}, a{b+r}"))
                        for r in range(4): items.append(lambda r=r: e(f"v_add_f32 v{T+r}, v{T+r}, v{UB+r}"))
                        for r in range(4): items.append(lambda b=b, r=r: e(f"v_accvgpr_write_b32 a{b+r}, v{T+r}"))
            dlb = M(l, sb + 1, j) - 1
            if j >= 2: dlb = min(dlb, M(l, 15, 0) + 7)
            add_task(rdy, dlb, items)
    xl_tag = {}
    U = T + 12; A = T + 16
    for l in range(3):
        last = l == 2
        seq = [divmod(u, 8) for u in range(32)]
        if last and P["OI"] >= 1: seq[:16] = [(u % 2, u // 2) for u in range(16)]
        if last and P["OI"] >= 2: seq[16:] = [(2 + u % 2, u // 2) for u in range(16)]
        prev_ready = 0
        for u in range(32):
            j, bt = seq[u]
            ts = T + 4 * (u % 3)
            items = []
            def xl_prefetch(uu, seq=seq):
                def f():
                    wait(lg=x0l_lg[0])
                    e(f"ds_read_b128 {rng('v', T + 4*(uu % 3))}, v{vLX} offset:{seq[uu][1]*1024}")
                    xl_tag[uu] = LG.issue()
                return f
            if j < 3:
                for d in range(4): items.append(lambda d=d, j=j, bt=bt, ts=ts: e(f"v_accvgpr_read_b32 v{ts+d}, a{x0r(j, bt)+d}"))
            for h in range(2):
                k, b = acc(2 * j + h, bt)
                def first(h=h, ts=ts, u=u, j=j):
                    if j == 3: wait(lg=xl_tag[u])
                    e(f"v_lshlrev_b32 v{U}, 16, v{ts+2*h}")
                items.append(first)
                items.append(lambda h=h, ts=ts: e(f"v_and_b32 v{U+1}, s{sMASK}, v{ts+2*h}"))
                items.append(lambda h=h, ts=ts: e(f"v_lshlrev_b32 v{U+2}, 16, v{ts+2*h+1}"))
                items.append(lambda h=h, ts=ts: e(f"v_and_b32 v{U+3}, s{sMASK}, v{ts+2*h+1}"))
                if h == 0 and u + 2 < 32 and seq[u + 2][0] == 3: items.append(xl_prefetch(u + 2))
                for r in range(4):
                    if k == "v":
                        items.append(lambda b=b, r=r: e(f"v_mul_f32 v{U+r}, v{U+r}, v{b+r}"))
                    else:
                        items.append(lambda b=b, r=r: e(f"v_accvgpr_read_b32 v{A+r}, a{b+r}"))
                        items.append(lambda r=r: e(f"v_mul_f32 v{U+r}, v{U+r}, v{A+r}"))
                items.append(lambda h=h, ts=ts: e(f"v_cvt_pk_bf16_f32 v{ts+2*h}, v{U}, v{U+1}"))
                items.append(lambda h=h, ts=ts: e(f"v_cvt_pk_bf16_f32 v{ts+2*h+1}, v{U+2}, v{U+3}"))
            if last:
                def st(j=j, bt=bt, ts=ts):
                    if P['NOOUT'] == 1 and not (j == 3 and bt == 7): return
                    if P['NOOUT'] == 2:
                        e(f"buffer_store_dwordx4 {rng('v', ts)}, v{vW0}, {SWS}, s{sXST + (j%2)*2 + bt//4} offen offset:{(bt%4)*1024}")
                    else: e(f"buffer_store_dwordx4 {rng('v', ts)}, v{vXR}, {SOUT}, s{sXO+bt} offen offset:{j*64} {P['OSC']}")
                    VM.issue()
                    if P["DEEPT"] and j < 2:
                        pool.extend([(acc(2 * j, bt), NM), (acc(2 * j + 1, bt), NM), (("a", x0r(j, bt)), NM)])
                items.append(st)
            else:
                def dw(j=j, bt=bt, ts=ts, l=l):
                    off = j * 32768 + bt * 1024
                    e(f"ds_write_b128 v{vW0 if off < 65536 else vW1}, {rng('v', ts)} offset:{off % 65536}")
                    blk_lg[(l + 1, j)] = LG.issue()
                items.append(dw)
                if j % 2 == 0 or not P["XDEL"]: items.append(lambda j=j, bt=bt, ts=ts, l=l: xst(l + 1, j, bt, ts))
            ready = max(M(l, 15, j, bt) + 8, prev_ready + (P["OPACE"] if (last and j < 2 and u > 0) else 0))
            if last: prev_ready = ready
            dl = min(M(l + 1, 0, j, bt), 32 * RB(l + 1, j)) if not last else NM + 1
            if not last: ready = max(ready, free_at(l + 1, j))
            add_task(ready, dl, items)
    tasks.sort(key=lambda t: (t[0], t[1]))

    def run_items(m, n):
        k = 0
        while k < n and tasks and tasks[0][0] <= m:
            t = tasks[0]
            t[2].pop(0)(); k += 1
            if not t[2]: tasks.pop(0)
        return k
    def flush_deadlines(m):
        lastidx = -1
        for i, t in enumerate(tasks):
            if t[1] <= m: lastidx = i
            if t[0] > m: break
        n = 0
        for _ in range(lastidx + 1):
            t = tasks.pop(0)
            assert t[0] <= m, (t[0], m)
            for f in t[2]: f(); n += 1
        return n

    stall = 0
    for m in range(NM):
        g, r = divmod(m, 32); l, s, rp = ORDER[g]; bt, sub = divmod(r, 4); h, c = divmod(sub, 2)
        ph = s // 2
        npre = 0; cur_m[0] = m
        stall += flush_deadlines(m)
        if m % 512 == 0: e(f"L_q{m//512}:")
        if P["CPF"] and m % 512 == 33: npre += code_touch(m // 512 + P["CPF"])
        if P["STAMPS"] == 1 and m % 512 == 0: stamp()
        if 2 <= P["STAMPS"] < 9 and m % 128 == 0 and P["SG0"] <= m // 128 < P["SG0"] + 12: stamp()
        if P["STAMPS"] == 10 and r == 0 and P["SG0"] <= m // 32 < P["SG0"] + 12: stamp()
        if P["STAMPS"] == 9 and r == 0 and rp == 0 and l == 0 and 1 <= s < 6: stamp()
        if r == 0 and g in BARS:
            vms = []; lgt = None
            for nl in range(3):
                for nph in range(8):
                    if (nl, nph) != (0, 0) and RB(nl, nph) == g:
                        vms.append(half_tag[nph] if (nl == 0 and nph < P["HB"]) else blk_tag.get((nl, nph)))
                        lgt = blk_lg.get((nl, nph))
            for nph in range(P["HB"]):
                if RDG[(0, 2 * nph + 1)][0] == g: vms.append(blk_tag[(0, nph)])
            if g == G12: vms.append(pack_tag[2])
            if g in FLAGBAR: vms.append(st_tag.get(FLAGBAR[g]))
            vms = [t for t in vms if t is not None]
            wait(vm=max(vms) if vms else None, lg=lgt)
            if not P["NOBAR"]: e("s_barrier")
            npre += 2
        for f in pre_ev.get(m, []): npre += f()
        vmt = wtag[g * 4 + 3] if r == 0 else None
        lgt = btag[(1, bt)] if sub == 0 else None
        if r == 0:
            lw = [wlg[f] for f in range(g * 4, g * 4 + 4) if f in wlg]
            if lw: lgt = max(lw + ([lgt] if lgt is not None else []))
        npre += wait(vm=vmt, lg=lgt)
        k, b = acc(2 * rp + h, bt)
        d = rng(k, b)
        e(f"v_mfma_f32_16x16x32_bf16 {d}, {rng(*wslot[g*4 + sub][0])}, {rng('a', bop(l, s, c, bt))}, {'1.0' if (l == 0 and s == 0 and c == 0) else d}")
        npost = 0
        if bt == 7:
            pool.append(wslot[g * 4 + sub])
            npost += wload()
        elif m % P["RAMP"] == 1:
            npost += wload()
        if h == 1 and g < 191 and ORDER[g + 1][:2] != (l, s) and not P['NOJIT']:
            npost += bread(ORDER[g + 1][0], ORDER[g + 1][1], c, bt)
        for f in post_ev.get(m, []): npost += f()
        run_items(m, CAP - npost - npre)
    e("s_nop 7")
    n = 0
    while tasks: n += run_items(NM + 100, 1000)
    sys.stderr.write(f"forced items {stall}, tail items {n}\n")
    if P["STAMPS"]:
        stamp()
        e("s_waitcnt lgkmcnt(0)")
        ns = nstamp[0]
        assert ns <= 16
        for i in range(ns): e(f"v_mov_b32 v{32+i}, s{sSTAMP+2*i}")
        if P["DBG"]:
            for i in range(ns - 1, 0, -1): e(f"v_sub_u32 v{32+i}, v{32+i}, v{32+i-1}")
            e(f"s_cmp_lg_u32 s2, {P['DBG']}"); e("s_cbranch_scc1 L_nodbg")
            e(f"s_cmp_lg_u32 s{sW}, 0"); e("s_cbranch_scc1 L_nodbg")
            e("s_load_dwordx2 s[24:25], s[0:1], 32"); e("s_waitcnt lgkmcnt(0)")
            e("s_and_b32 s25, s25, 0xffff"); e("s_mov_b32 s26, 256"); e("s_mov_b32 s27, 0x20000")
            for i in range(0, 16, 4):
                e(f"buffer_store_dwordx4 {rng('v', 32+i)}, off, s[24:27], 0 offset:{i*4}")
            e("L_nodbg:")
        e(f"s_lshl_b32 s{sTMP}, s2, 8"); e(f"s_lshl_b32 s3, s{sW}, 6"); e(f"s_add_u32 s{sTMP}, s{sTMP}, s3")
        for i in range(0, 16, 4):
            e(f"buffer_store_dwordx4 {rng('v', 32+i)}, off, {SWS}, s{sTMP} offset:{i*4}")
    e("s_cmp_lg_u32 s2, 0"); e("s_cbranch_scc1 L_end")
    e(f"s_cmp_lg_u32 s{sW}, 0"); e("s_cbranch_scc1 L_end")
    e(f"v_mov_b32 v{vP}, s{sT}"); e(f"v_mov_b32 v{vP+1}, s{sT+1}"); e("s_mov_b64 exec, 1")
    e(f"s_mov_b32 s{sTMP}, {EPOCH_OFF}")
    e(f"buffer_store_dwordx2 {rng('v', vP, 2)}, off, {SWS}, s{sTMP}")
    e("L_end:")
    e("s_endpgm")
    for val in spins:
        e(f"L_spin{val}:")
        e(f"s_mov_b32 s{sSPIN}, 0x40000")
        e(f"L_spinl{val}:")
        e("s_sleep 1")
        e(f"buffer_load_dwordx2 {rng('v', vP, 2)}, off, {SWS}, s{sPFLAG} sc1")
        e(f"s_sub_u32 s{sSPIN}, s{sSPIN}, 1")
        e("s_waitcnt vmcnt(0)")
        e(f"s_cmp_eq_u32 s{sSPIN}, 0"); e(f"s_cbranch_scc1 L_back{val}")
        flagchk(val, f"L_spinl{val}")
        e(f"s_branch L_back{val}")
    for val in (0, 1):
        e(f"L_wspin{val}:")
        e(f"s_mov_b32 s{sSPIN}, 0x40000")
        e(f"L_wspinl{val}:")
        e("s_sleep 2")
        wpoll0()
        e(f"s_sub_u32 s{sSPIN}, s{sSPIN}, 1")
        e("s_waitcnt vmcnt(0)")
        e(f"s_cmp_eq_u32 s{sSPIN}, 0"); e(f"s_cbranch_scc1 L_wback{val}")
        wflagchk(val, f"L_wspinl{val}")
        e(f"s_branch L_wback{val}")

LAUNCH = "; @launch grid=(256,1,1) block=(256,1,1) lds=163840"
hdr = f"""; DCN-v2 cross network, 3 layers, B=16384, D=1024, bf16.  Generated by dev/gen.py (hand-written generator).
{LAUNCH}
.amdgcn_target "amdgcn-amd-amdhsa--gfx950"
.text"""
main_kernel()
if P['CPF']: e('.fill 4096, 4, 0xBF800000')
def kd(name, vg, ao, sg):
    return f""".p2align 6
.amdhsa_kernel {name}
  .amdhsa_next_free_vgpr {vg}
  .amdhsa_next_free_sgpr {sg}
  .amdhsa_accum_offset {ao}
  .amdhsa_group_segment_fixed_size 0
  .amdhsa_kernarg_size 48
  .amdhsa_user_sgpr_count 2
  .amdhsa_user_sgpr_kernarg_segment_ptr 1
  .amdhsa_system_sgpr_workgroup_id_x 1
.end_amdhsa_kernel
"""
tail = '\n.section .rodata,"a"\n' + kd(KN, 512, 256, 102)
open(out, "w").write(hdr + "\n" + "\n".join(L) + tail)
```

```python
import sys
out = sys.argv[1]
P = dict(CAP=2, DLEAD=2, DSPREAD=32, STAMPS=0, XSC="sc1", SSC="sc1", POLL_M=64, BIAS_S=11, NOSYNC=0, XDSPREAD=24,
         DOFF=2, NODMA=0, NOBAR=0, NOW=0, NOJIT=0, NOST=0, DEEP=1, XCHK=192, STOFF=5, STSPREAD=20, RAMP=4, XSMALL=0, NOOUT=0, XSTR=131072+1024, CPF=2, ONLY=0, RT=0, WSC=1, OT=0, OSC2=0, XOUT=0, XMASK=31, CA1=1600, CB1=1960, CA2=1470, CB2=1640, SAMEX=0, PORD=0, D4=0, D5=0, CTM=0, XALT=0, OI=0, OPACE=0, DEEPT=0, OSC="", SG0=1, HH=4, TT=4, TL=8, TL2=4, XBA=9, XD0=550, XDS=30, XDL=24, BS0=9,  PTOUCH=0, HB=4, C12=5, B1M=34, B1S=8, UDS=4, U3D=0, U5D=64, U4D=98, B3=262, B3S=24, M12=14,  NSELF=6, FB=0, WCHK=280, WPOLL=64, B2=132, B2S=16, BLK1E=1, U2M=40, U3M=100, U5M=200, U4M=226)
for kv in sys.argv[2:]:
    k, v = kv.split("=")
    P[k] = v.replace("+", " ").replace("none", "") if k in ("XSC", "SSC", "OSC") else int(v)
CAP = P["CAP"]

KN = "standalone__cross_network_dcn__recsys_kernel"
PK = "dcn_pack_kernel"
WP_OFF = 0x100000
FLAG_OFF = 0x800000
X_OFF = P.get("XOFF", 0x1000000)
L = []
def e(s): L.append(s)

class Ctr:
    def __init__(s, name, mx): s.name, s.mx, s.n, s.done = name, mx, 0, 0
    def issue(s):
        s.n += 1
        return s.n - 1
    def need(s, idx):
        if idx is None or idx < s.done: return None
        N = min(s.n - 1 - idx, s.mx)
        s.done = max(s.done, s.n - N)
        return N
cur_m = [0]; touch_m = []
VM = Ctr("vmcnt", 63); LG = Ctr("lgkmcnt", 15)
def wait(vm=None, lg=None):
    a = VM.need(vm); b = LG.need(lg)
    parts = []
    if a is not None: parts.append(f"vmcnt({a})")
    if b is not None:
        parts.append(f"lgkmcnt({b})")
        if touch_m: sys.stderr.write(f"touch at {touch_m[0]}: next lgkm wait after {cur_m[0] - touch_m[0]} (N={b})\n"); touch_m.clear()
    if parts:
        e("s_waitcnt " + " ".join(parts)); return 1
    return 0
def wait_lg_all():
    e("s_waitcnt lgkmcnt(0)"); LG.done = LG.n

vL0, vK, vXR, vW0, vW1, vLX, vB, vP = 0, 1, 5, 6, 7, 8, 9, 10
T = 12
def acc(a, bt):
    if a < 7:
        b = 32 + (a * 8 + bt) * 4
        return ("v", b)
    return ("a", 224 + bt * 4)
def rng(k, b, n=4): return f"{k}[{b}:{b+n-1}]"
def x0r(j, bt): return (j * 8 + bt) * 4
def breg(c, bt): return 96 + (c * 8 + bt) * 4
SX0, SOUT, SWS, SBS, SWR = "s[12:15]", "s[16:19]", "s[20:23]", "s[24:27]", "s[4:7]"
sT, sSELF, sS2 = 8, 10, 11
EPOCH_OFF = 0x810000
sW, sHF, sWOFF, sW2048, sW8192, sMASK, sTMP, sFLAG, sPFLAG, sBOFF, sSPIN, sTMP2 = 28, 29, 30, 31, 32, 33, 34, 35, 36, 37, 38, 39
sXO = 40
sXOWN = 48
sXOTH = 50
sXST = 52
sXLD = 56
sSTAMP = 60
nstamp = [0]
def pstamp():
    if P["STAMPS"] == 9: stamp()
def stamp():
    if P["STAMPS"]:
        e(f"{'s_memrealtime' if P['RT'] else 's_memtime'} s[{sSTAMP+2*nstamp[0]}:{sSTAMP+2*nstamp[0]+1}]"); nstamp[0] += 1
NM = 3 * 2048
ORDER = []
for l in range(3):
    H = P["HH"] if l > 0 else 0
    Tn = P["TT"] if l < 2 else P["TL"]
    T2 = P["TL2"] if l == 2 else 0
    ORDER += [(l, s, rp) for s in range(H) for rp in (0, 1)] + [(l, s, rp) for s in range(H) for rp in (2, 3)]
    ORDER += [(l, s, rp) for s in range(H, 16 - Tn) for rp in range(4)]
    ORDER += [(l, s, rp) for s in range(16 - Tn, 16) for rp in (0, 1)]
    ORDER += [(l, s, rp) for s in range(16 - Tn, 16 - T2) for rp in (2, 3)]
    ORDER += [(l, s, 2) for s in range(16 - T2, 16)] + [(l, s, 3) for s in range(16 - T2, 16)]
assert len(set(ORDER)) == 192
GPOS = {k: i for i, k in enumerate(ORDER)}
M = lambda l, s, rp=0, bt=0, sub=0: GPOS[(l, s, rp)] * 32 + bt * 4 + sub
RDG = {}
for i in range(1, 192):
    if ORDER[i][:2] != ORDER[i - 1][:2]: RDG.setdefault(ORDER[i][:2], []).append(i - 1)
def RB(l, ph): return min(RDG[(l, 2 * ph)] + RDG[(l, 2 * ph + 1)])
def LRD(l, ph): return max(RDG.get((l, 2 * ph), [-1]) + RDG[(l, 2 * ph + 1)])
BARS = set(RB(l, ph) for l in range(3) for ph in range(8) if (l, ph) != (0, 0))
BARS |= set(RDG[(0, 2 * ph + 1)][0] for ph in range(P["HB"]))
BARS |= set(64 * l + P["XBA"] for l in (1, 2))
def free_at(l, ph):
    pl, pp = (l, ph - 4) if ph >= 4 else (l - 1, ph + 4)
    if pl < 0: return 0
    return 32 * min(b for b in BARS if b >= LRD(pl, pp) + 2)

CAPS = (4, 6, 12, 14) if P["XALT"] == 3 else (8, 10, 12, 14)
def own0(ph): return ph % 4 >= 2 if P["XALT"] == 3 else ph >= 4
def bop(l, s, c, bt):
    if P['DEEP'] < 2 and l == 0 and c == 0 and s in CAPS[:3]: return x0r(CAPS.index(s), bt)
    return breg(c, bt)

def main_kernel():
    e(f".globl {KN}"); e(".p2align 8"); e(f".type {KN},@function"); e(f"{KN}:")
    e("s_cmp_ge_u32 s2, 256"); e("s_cbranch_scc1 L_end")
    if P["PTOUCH"]:
        e("s_getpc_b64 s[92:93]")
        e("v_lshrrev_b32 v12, 6, v0"); e("s_lshr_b32 s94, s2, 3"); e("v_readfirstlane_b32 s95, v12")
        e("s_and_b32 s94, s94, 15"); e("s_lshl_b32 s94, s94, 2"); e("s_add_u32 s94, s94, s95"); e("s_lshl_b32 s94, s94, 7")
        e("s_add_u32 s92, s92, s94"); e("s_addc_u32 s93, s93, 0")
        e("s_load_dword s98, s[92:93], 0")
    e("s_load_dwordx4 s[4:7], s[0:1], 0")
    e("s_load_dwordx4 s[8:11], s[0:1], 16")
    e("s_load_dwordx4 s[40:43], s[0:1], 32")
    stamp()
    e("v_lshrrev_b32 v12, 6, v0")
    e("v_and_b32 v13, 63, v0")
    e(f"v_readfirstlane_b32 s{sW}, v12")
    e(f"v_lshlrev_b32 v{vL0}, 4, v13")
    for k in range(4): e(f"v_add_u32 v{vK+k}, {k*8192}, v{vL0}")
    e(f"v_lshl_add_u32 v{vW0}, v12, 13, v{vL0}")
    e(f"v_add_u32 v{vW1}, 0x10000, v{vW0}")
    e(f"v_add_u32 v{vLX}, 0x20000, v{vW0}")
    e("v_and_b32 v14, 15, v13"); e("v_lshrrev_b32 v15, 4, v13")
    e(f"v_lshlrev_b32 v{vB}, 4, v15")
    e(f"v_lshl_add_u32 v{vXR}, v14, 11, v{vB}")
    e("s_and_b32 s3, s2, 7"); e(f"s_lshr_b32 s{sTMP}, s2, 4"); e(f"s_lshl_b32 s{sTMP}, s{sTMP}, 3"); e(f"s_or_b32 s3, s3, s{sTMP}")
    e(f"s_lshr_b32 s{sHF}, s2, 3"); e(f"s_and_b32 s{sHF}, s{sHF}, 1")
    e(f"s_lshl_b32 s{sW2048}, s{sW}, 11"); e(f"s_lshl_b32 s{sW8192}, s{sW}, 13")
    e(f"s_mov_b32 s{sMASK}, 0xffff0000")
    e("s_lshl_b32 s3, s3, 18")
    e(f"s_lshl_b32 s{sTMP2}, s{sHF}, 2"); e(f"s_add_u32 s{sTMP2}, s{sTMP2}, s{sW}")
    e(f"s_lshl_b32 s{sBOFF}, s{sTMP2}, 8")
    e(f"s_lshl_b32 s{sTMP}, s{sW}, 16"); e(f"s_add_u32 s{sTMP}, s{sTMP}, s3")
    e(f"s_lshl_b32 s{sXOWN}, s{sHF}, 10"); e(f"s_xor_b32 s{sXOTH}, s{sXOWN}, 1024")
    e(f"s_add_u32 s{sXOWN}, s{sXOWN}, s{sTMP}"); e(f"s_add_u32 s{sXOTH}, s{sXOTH}, s{sTMP}")
    e(f"s_add_u32 s{sXOWN+1}, s{sXOWN}, 32768"); e(f"s_add_u32 s{sXOTH+1}, s{sXOTH}, 32768")
    e(f"s_mul_i32 s{sWOFF}, s{sTMP2}, {3*8*32768}"); e(f"s_add_u32 s{sWOFF}, s{sWOFF}, {WP_OFF + P['NSELF']*8192}")
    e("s_waitcnt lgkmcnt(0)")
    pstamp()
    for (s, ptr, n) in ((24, 8, 6144), (12, 4, 0x2000000), (20, 42, 0x10000000), (16, 10, 0x2000000), (4, 6, 0x600000)):
        e(f"s_mov_b32 s{s}, s{ptr}"); e(f"s_and_b32 s{s+1}, s{ptr+1}, 0xffff"); e(f"s_mov_b32 s{s+2}, {hex(n)}"); e(f"s_mov_b32 s{s+3}, 0x20000")

    def bias_load(l, j):
        e(f"buffer_load_dwordx4 {rng('v', T+4*j)}, v{vB}, {SBS}, s{sBOFF} offen offset:{(l*2048 + j*64) % 4096}")
        return VM.issue()
    wtag = {}; wslot = {}; wlg = {}
    wok = [0]
    wload_n = [0]
    pool = [(("a", 160 + 4 * i), NM) for i in range(16)]
    if P["DEEP"]:
        for j in ((0, 1, 2) if P["PORD"] else (2, 1, 0)):
            if P["DEEP"] >= 2 and j >= P["DEEP"] - 1: continue
            pool += [(("a", x0r(j, bt)), 32 * RDG[(0, CAPS[j])][0] if P["DEEP"] < 2 else NM) for bt in range(8)]
    def last_use(f): return 32 * (f // 4) + 28 + f % 4
    def wload():
        f = wload_n[0]
        if f >= wok[0]: return 0
        while pool and pool[0][1] <= last_use(f): pool.pop(0)
        if not pool: return 0
        sl = pool.pop(0)
        wslot[f] = sl
        wload_n[0] += 1
        if P['NOW'] and f >= 16:
            wtag[f] = None; return 0
        k = f % 4
        e(f"buffer_load_dwordx4 {rng(*sl[0])}, v{vL0}, {SWS}, s{sWOFF} offen offset:{k*1024}{' sc1' if P['WSC'] else ''}")
        wtag[f] = VM.issue()
        n = 1
        if k == 3 and f + 1 < 768:
            lin = lambda g: ORDER[g][0] * 64 + ORDER[g][1] * 4 + ORDER[g][2]
            e(f"s_add_u32 s{sWOFF}, s{sWOFF}, {hex(((lin(f // 4 + 1) - lin(f // 4)) * 4096) & 0xffffffff)}"); n += 1
        return n
    def x0_io(ph, ksl):
        if P["XALT"] == 3:
            if own0(ph): return ksl * 256 + ((ph // 4) * 2 + ph % 2) * 64
            return (2 * (ph % 2) + (ksl >> 1)) * 256 + (2 * (ph // 4) + (ksl & 1)) * 64
        if P["XALT"] == 1: return (ph // 2) * 256 + ksl * 64
        if P["XALT"] == 2: return ((ph // 4) * 2 + ph % 2) * 256 + ksl * 64
        return ph * 256 + ksl * 64 if ph < 4 else ksl * 256 + (ph - 4) * 64
    m0own = [None]
    def dma_x0_m0(ph, ksl, i):
        m0own[0] = ("x", ph, ksl, i)
        lo = (ph % 4)*32768 + ksl*8192 + i*1024
        e(f"s_add_u32 m0, s{sW2048}, {lo - x0_io(ph, ksl) if lo >= x0_io(ph, ksl) else lo}")
    def dma_x0_ld(ph, ksl, i):
        assert m0own[0] == ("x", ph, ksl, i)
        so = (sXOWN if own0(ph) else sXOTH) + i
        if P["XALT"] == 1: so = (sXOTH if ph % 2 == 0 else sXOWN) + i
        if P["XALT"] == 2: so = (sXOTH if ph % 4 < 2 else sXOWN) + i
        io = x0_io(ph, ksl)
        if (ph % 4)*32768 + ksl*8192 + i*1024 < io:
            e(f"s_add_u32 s{sS2}, s{so}, {io}"); so = sS2; io = 0
        e(f"buffer_load_dwordx4 v{vXR}, {SX0}, s{so} offen offset:{io} lds")
        return VM.issue()
    blk_tag = {}
    blk_lg = {}
    st_tag = {}

    UB = T + 16
    vSG, vCG, vCT, vFL, vTR, vTR4 = 12, 13, 14, 15, 16, 20
    def code_touch(q):
        if q > 11: return 0
        e(f"s_add_u32 s96, s92, L_q{q}-L_pc"); e("s_addc_u32 s97, s93, 0")
        e("s_load_dword s98, s[96:97], 0")
        return 3
    e(f"s_add_u32 s96, s42, {EPOCH_OFF}"); e("s_addc_u32 s97, s43, 0")
    e(f"s_load_dwordx2 s[{sT}:{sT+1}], s[96:97], 0")
    e("v_mov_b32 v24, v12"); e("v_mov_b32 v25, v13"); e("v_mov_b32 v26, v14"); e("v_mov_b32 v27, v15")
    e("v_lshrrev_b32 v28, 2, v25"); e("v_and_b32 v29, 3, v25")
    e(f"v_lshlrev_b32 v{vCG}, 11, v28"); e(f"v_lshl_add_u32 v{vCG}, v29, 4, v{vCG}")
    e(f"s_lshr_b32 s44, s2, 3"); e("s_and_b32 s45, s2, 7")
    e("s_lshl_b32 s46, s44, 16"); e("s_lshl_b32 s47, s45, 8"); e("s_add_u32 s46, s46, s47")
    e(f"s_lshl_b32 s47, s{sW}, 6"); e("s_add_u32 s100, s46, s47")
    coop_tag = {}
    def coop_dma(l, n):
        m0own[0] = None
        e(f"s_add_u32 m0, s{sW2048}, {(32768 if l == 0 else 131072) + l*8192 + n*1024}")
        e(f"s_add_u32 s{sS2}, s100, {l*0x200000 + n*32768}")
        e(f"buffer_load_dwordx4 v{vCG}, {SWR}, s{sS2} offen lds"); coop_tag[l] = VM.issue()
        return 3
    coop_dma(0, 0); coop_dma(0, 1)
    pstamp()
    e(f"v_lshlrev_b32 v30, 2, v27"); e("v_xor_b32 v30, v30, v26"); e("v_lshlrev_b32 v30, 4, v30")
    e(f"v_lshl_add_u32 v{vSG}, v27, 11, v30")
    e(f"s_xor_b32 s{sSELF}, s{sHF}, 1"); e(f"s_lshl_b32 s{sSELF}, s{sSELF}, 20"); e(f"s_add_u32 s{sSELF}, s{sSELF}, s{sBOFF}")
    REG = {0: 2, 1: 3, 2: 4, 3: 2, 4: 4, 5: 3}
    self_tag = {}; self_lg = {}
    def self_dma1(n, ch):
        m0own[0] = None
        e(f"s_add_u32 m0, s{sW2048}, {REG[n]*32768 + (ch>>1)*8192 + (ch&1)*1024}")
        rb = (n >> 1) * 4 + (n & 1) if P["XALT"] == 3 else n
        e(f"s_add_u32 s{sS2}, s{sSELF}, {rb*65536 + ch*8192}")
        e(f"buffer_load_dwordx4 v{vSG}, {SWR}, s{sS2} offen lds"); self_tag[n] = VM.issue()
        return 3
    def self_dma(n):
        for ch in range(8): self_dma1(n, ch)
    def self_read1(n, a, u):
        j, h = divmod(a, 2)
        f = ((n // 2) * 4 + j) * 4 + 2 * h + n % 2
        w_ = 0
        if a == 0 and u == 0: w_ = wait(vm=self_tag[n])
        if u == 0:
            while pool[0][1] <= last_use(f): pool.pop(0)
            wslot[f] = pool.pop(0)
        k, b = wslot[f][0]
        R = REG[n]
        e(f"ds_read_b64_tr_b16 {rng(k, b+2*u, 2)}, v{(vTR4 if R == 4 else vTR)+j} offset:{(R % 2)*32768 + u*1024 + 8*h}")
        self_lg[n] = wlg[f] = LG.issue(); wtag[f] = None
        return 1 + w_
    half_tag = {}
    def blk_dma(ph, hv):
        for ksl in (2 * hv, 2 * hv + 1):
            for i in range(2):
                dma_x0_m0(ph, ksl, i); e("s_nop 0")
                blk_tag[(0, ph)] = dma_x0_ld(ph, ksl, i)
        if hv == 0: half_tag[ph] = blk_tag[(0, ph)]
    self_dma(0); self_dma(1); blk_dma(0, 0)
    pstamp()
    e("v_bfe_u32 v28, v25, 2, 2")
    e(f"v_lshlrev_b32 v30, 11, v24"); e("v_lshl_add_u32 v30, v29, 4, v30")
    e("v_lshrrev_b32 v31, 1, v27"); e(f"v_lshl_add_u32 v{vCT}, v31, 10, v30")
    e("v_and_b32 v31, 1, v27"); e("v_lshl_add_u32 v31, v31, 3, v28"); e(f"v_lshl_add_u32 v{vCT}, v31, 6, v{vCT}")
    e(f"v_add_u32 v{vCT}, 0x8000, v{vCT}")
    e("v_lshl_add_u32 v30, v27, 13, v30"); e("v_lshl_add_u32 v30, v28, 8, v30"); e("v_add_u32 v30, 0x10000, v30")
    for j in range(4):
        e(f"v_xor_b32 v31, {j}, v28"); e(f"v_lshl_add_u32 v{vTR+j}, v31, 6, v30"); e(f"v_add_u32 v{vTR4+j}, 0x10000, v{vTR+j}")
    e("s_lshr_b32 s40, s44, 2"); e("s_and_b32 s41, s44, 3"); e("s_and_b32 s42, s45, 4")
    e("s_xor_b32 s42, s40, s42")
    e("s_and_b32 s43, s42, 3")
    e("s_and_b32 s46, s45, 3"); e("s_xor_b32 s46, s43, s46")
    e("s_and_b32 s47, s42, 4"); e("s_or_b32 s47, s47, s41")
    def dcalc(d, ph, ka):
        e(f"s_lshl_b32 s{d}, s{ph}, 15")
        e(f"s_lshr_b32 s{sTMP}, s{ka}, 1"); e(f"s_lshl_b32 s{sTMP}, s{sTMP}, 14"); e(f"s_add_u32 s{d}, s{d}, s{sTMP}")
        e(f"s_and_b32 s{sTMP}, s{ka}, 1"); e(f"s_lshl_b32 s{sTMP}, s{sTMP}, 10"); e(f"s_add_u32 s{d}, s{d}, s{sTMP}")
    dcalc(57, 47, 46)
    if P["XALT"] == 3:
        e("s_and_b32 s47, s41, 1"); e("s_and_b32 s40, s43, 1"); e("s_lshl_b32 s40, s40, 1"); e("s_or_b32 s40, s40, s47")
        e("s_or_b32 s47, s47, 2"); e("s_lshr_b32 s43, s43, 1")
        e("s_cmp_lt_u32 s42, 4")
        e("s_cselect_b32 s47, s47, s43"); e("s_cselect_b32 s46, s46, s40")
        e("s_lshr_b32 s40, s41, 1"); e("s_lshl_b32 s40, s40, 2"); e("s_or_b32 s47, s47, s40")
    else:
        e("s_xor_b32 s47, s47, 4")
        e("s_cmp_lt_u32 s42, 4")
        e("s_cselect_b32 s47, s47, s43"); e("s_cselect_b32 s46, s46, s41")
    dcalc(58, 47, 46)
    e(f"s_mul_i32 s40, s45, {3*262144}"); e(f"s_lshl_b32 s41, s{sW}, 12"); e("s_add_u32 s40, s40, s41"); e(f"s_add_u32 s40, s40, {WP_OFF}")
    e("s_add_u32 s57, s40, s57"); e("s_add_u32 s58, s40, s58")
    e("s_add_u32 s57, s57, 262144"); e("s_add_u32 s99, s57, 262144")
    CD = {0: 58, 1: 57, 2: 99}
    e("s_getpc_b64 s[92:93]")
    e("L_pc:")
    e(f"s_lshr_b32 s94, s2, 3"); e(f"s_lshl_b32 s94, s94, 2"); e(f"s_add_u32 s94, s94, s{sW}")
    e(f"s_lshl_b32 s94, s94, 7")
    e("s_add_u32 s92, s92, s94"); e("s_addc_u32 s93, s93, 0")
    for q in range(P["CPF"]): code_touch(q)
    e(f"s_xor_b32 s{sPFLAG}, s2, 8")
    e(f"s_mul_i32 s{sXST}, s2, {P['XSTR']}"); e(f"s_add_u32 s{sXST}, s{sXST}, {X_OFF}")
    e(f"s_mul_i32 s{sXLD}, s{sPFLAG}, {P['XSTR']}"); e(f"s_add_u32 s{sXLD}, s{sXLD}, {X_OFF}")
    e(f"s_add_u32 s{sXLD}, s{sXLD}, s{sW8192}")
    for k in range(1, 4): e(f"s_add_u32 s{sXST+k}, s{sXST}, {(k//2)*32768 + (k%2)*4096}")
    if P["XOUT"]:
        e(f"s_lshr_b32 s{sXST}, s3, 7"); e(f"s_and_b32 s{sXST}, s{sXST}, {P['XMASK'] << 11}")
        e(f"s_lshl_b32 s{sXLD}, s{sW}, 14"); e(f"s_xor_b32 s{sXST}, s{sXST}, s{sXLD}")
        e(f"s_lshl_b32 s{sXLD}, s{sHF}, 10"); e(f"s_or_b32 s{sXST}, s{sXST}, s{sXLD}"); e(f"s_or_b32 s{sXST}, s{sXST}, s3")
        e(f"s_xor_b32 s{sXLD}, s{sXST}, 1024")
    e(f"s_lshl_b32 s{sFLAG}, s2, 7"); e(f"s_add_u32 s{sFLAG}, s{sFLAG}, {FLAG_OFF}")
    e(f"s_xor_b32 s{sPFLAG}, s{sFLAG}, {8*128}")
    e(f"s_lshr_b32 s59, s{sBOFF}, 1"); e(f"s_add_u32 s59, s59, {FLAG_OFF}")
    stamp()
    ct = {}; pack_tag = {}
    def creg(l, h): return ('a', 96 + h * 4) if l == 0 else ('v', 16 + ((l - 1) * 2 + h) * 4)
    def coop_read(l, h, u):
        w_ = wait(vm=coop_tag[l])
        k, b = creg(l, h)
        e(f"ds_read_b64_tr_b16 {rng(k, b + 2*u, 2)}, v{vCT} offset:{l*8192 + u*256 + h*8}")
        ct[(l, h)] = LG.issue(); return 1 + w_
    def coop_store(l, h):
        w_ = wait(lg=ct[(l, h)])
        e(f"buffer_store_dwordx4 {rng(*creg(l, h))}, v{vL0}, {SWS}, s{CD[l]} offen offset:{h*2048} sc1")
        pack_tag[l] = VM.issue(); return 1 + w_
    wait(vm=coop_tag[0])
    pstamp()
    for h in range(2):
        for u in range(2): coop_read(0, h, u)
    for h in range(2): coop_store(0, h)
    e(f"v_add_u32 v{vCT}, 0x18000, v{vCT}")
    blk_dma(0, 1); self_dma(2)
    pstamp()
    wait_lg_all()
    e(f"s_add_u32 s{sT}, s{sT}, 16"); e(f"s_addc_u32 s{sT+1}, s{sT+1}, 0")
    e(f"s_and_b32 s{sT}, s{sT}, -16"); e(f"s_and_b32 s{sT+1}, s{sT+1}, 0x7fffffff")
    e(f"s_add_u32 s{sXO}, s3, s{sBOFF}")
    for bt in range(1, 8): e(f"s_add_u32 s{sXO+bt}, s{sXO}, {bt*32768}")
    pstamp()
    for n in (0, 1):
        for a in range(8):
            for u in range(2): self_read1(n, a, u)
    pstamp()
    wait(vm=half_tag[0] if P["HB"] else blk_tag[(0, 0)])
    if P["FB"] == 0: wait(vm=pack_tag[0])
    e("s_barrier")
    stamp()
    def setflag(val):
        e(f"s_cmp_lg_u32 s{sW}, 0"); e(f"s_cbranch_scc1 L_nf{val}")
        e(f"s_add_u32 s{sTMP}, s{sT}, {val}")
        e(f"v_mov_b32 v{vP}, s{sTMP}"); e(f"v_mov_b32 v{vP+1}, s{sT+1}"); e("s_mov_b64 exec, 1")
        e(f"buffer_store_dwordx2 {rng('v', vP, 2)}, off, {SWS}, s{sFLAG} sc1")
        e("s_mov_b64 exec, -1")
        e(f"L_nf{val}:")
        return 2
    if P["FB"] == 0: setflag(0)
    wload_n[0] = 8 * P["NSELF"]
    btag = {}
    kst = {k: (0, 0) for k in range(4)}
    capt = set()
    def bread(l, s, c, bt):
        kap = (s % 2) * 2 + c
        if bop(l, s, c, bt) < 96:
            if (s, bt) in capt: return 0
            capt.add((s, bt))
        n = 1
        want = (0 if (l == 0 and not own0(s // 2)) else 1, (s // 4) % 2)
        if kst[kap] != want:
            e(f"v_xor_b32 v{vK+kap}, {hex(kap*8192 + want[1]*65536)}, v{vW0 if want[0] else vL0}"); kst[kap] = want; n += 1
        off = ((s // 2) % 2) * 32768 + bt * 1024
        e(f"ds_read_b128 {rng('a', bop(l, s, c, bt))}, v{vK+kap} offset:{off}")
        btag[(c, bt)] = LG.issue()
        return n
    for bt in range(8):
        for c in range(2): bread(0, 0, c, bt)

    tasks = []
    def add_task(ready, deadline, items): tasks.append([ready, deadline, list(items)])
    pre_ev = {}; post_ev = {}
    def at_pre(m, f): pre_ev.setdefault(m, []).append(f)
    def at_post(m, f): post_ev.setdefault(m, []).append(f)

    def sched_dma(l, ph, m0, spread):
        if P['NODMA']: return
        assert m0 >= free_at(l, ph), (l, ph, m0, free_at(l, ph))
        assert m0 + 7 * spread < 32 * RB(l, ph), (l, ph)
        sys.stderr.write(f"dma ({l},{ph}) {m0 % 2048}..{(m0 + 7 * spread) % 2048} free {free_at(l, ph) % 2048} need {32 * RB(l, ph) % 2048}\n")
        if l == 0:
            seq = [(j, i) for j in range(4) for i in range(2)]
            for n, (j, i) in enumerate(seq):
                m = m0 + n * spread
                at_pre(m, lambda j=j, i=i: (dma_x0_m0(ph, j, i), 1)[1])
                def ld(j=j, i=i):
                    blk_tag[(l, ph)] = dma_x0_ld(ph, j, i)
                    if (j, i) == (1, 1): half_tag[ph] = blk_tag[(l, ph)]
                    return 1
                at_post(m, ld)
        else:
            j = ph % 4
            for n in range(8):
                m = m0 + n * spread
                if P["XOUT"]:
                    def setm1(n=n):
                        m0own[0] = ("e", l, ph, n)
                        e(f"s_add_u32 m0, s{sW8192}, {j*32768 + n*1024}")
                        e(f"s_xor_b32 s{sTMP2}, s{sXLD}, {(j*32 + n)*2048}")
                        return 2
                    at_pre(m, setm1)
                    def ld1(n=n):
                        assert m0own[0] == ("e", l, ph, n)
                        e(f"buffer_load_dwordx4 v{vL0}, {SOUT}, s{sTMP2} offen {P['XSC']} lds")
                        blk_tag[(l, ph)] = VM.issue(); return 1
                    at_post(m, ld1)
                    continue
                if n % 4 == 0:
                    def setm(n=n):
                        m0own[0] = ("e", l, ph, n // 4)
                        e(f"s_add_u32 m0, s{sW8192}, {j*32768 + (n//4)*4096}")
                        if P['XSMALL'] == 2: e(f"s_add_u32 s{sTMP2}, s{sXLD}, {(j%2)*32768 + (n//4)*4096}")
                        else: e(f"s_add_u32 s{sTMP2}, s{sXLD}, {(0 if P['SAMEX'] else (l-1)*256*P['XSTR']) + j*32768 + (n//4)*4096}")
                        return 2
                    at_pre(m, setm)
                def ld(n=n):
                    assert m0own[0] == ("e", l, ph, n // 4)
                    e(f"buffer_load_dwordx4 v{vL0}, {SWS}, s{sTMP2} offen offset:{(n%4)*1024} {P['XSC']} lds")
                    blk_tag[(l, ph)] = VM.issue(); return 1
                at_post(m, ld)
    sched_dma(0, 1, P["B1M"], P["B1S"])
    def sched_sdma(n, prev, m0):
        at_post(m0, lambda: wait(lg=self_lg[prev]))
        for ch in range(8): at_post(m0 + P["UDS"] * ch, lambda ch=ch: self_dma1(n, ch))
    sched_sdma(3, 0, P["U3D"])
    if P["NSELF"] > 4:
        sched_sdma(5, 1, P["U5D"]); sched_sdma(4, 2, P["U4D"])
        assert P["U2M"] + 16 < P["U4D"]
    mc = M(0, P["C12"]) + 10
    at_post(mc, lambda: wait(lg=self_lg[4 if P["NSELF"] > 4 else 2]))
    for i, (l, n) in enumerate([(1, 0), (1, 1), (2, 0), (2, 1)]): at_post(mc + 16 * i, lambda l=l, n=n: coop_dma(l, n))
    for i, (l, h, u) in enumerate([(l, h, u) for l in (1, 2) for h in range(2) for u in range(2)]):
        at_post(mc + 224 + 2 * i, lambda l=l, h=h, u=u: coop_read(l, h, u))
    for i, (l, h) in enumerate([(l, h) for l in (1, 2) for h in range(2)]): at_post(mc + 250 + 16 * i, lambda l=l, h=h: coop_store(l, h))
    PH12 = P["C12"] // 2 + 2
    G12 = RB(0, PH12 + 1)
    assert mc + 250 + 48 + 100 < 32 * G12
    at_post(32 * G12, lambda: setflag(1))
    for ph in range(P["DLEAD"], 8):
        if ph == 2:
            at_pre(P["B2"], lambda: wait(lg=self_lg[3]))
            sched_dma(0, ph, P["B2"], P["B2S"])
        elif ph == 3 and P["NSELF"] > 4:
            at_pre(P["B3"], lambda: wait(lg=self_lg[5]))
            sched_dma(0, ph, P["B3"], P["B3S"])
        elif ph == 4 and P["D4"]: sched_dma(0, ph, P["D4"], (P["D5"] - P["D4"]) // 8)
        elif ph == 5 and P["D5"]: sched_dma(0, ph, P["D5"], P["DSPREAD"])
        else: sched_dma(0, ph, M(0, 2 * (ph - P["DLEAD"])) + P["DOFF"], P["DSPREAD"])
    def sched_self(n, m0):
        for a in range(8):
            for u in range(2): at_post(m0 + 2 * a + u, lambda a=a, u=u: self_read1(n, a, u))
    sched_self(2, P["U2M"]); sched_self(3, P["U3M"])
    if P["NSELF"] > 4:
        sched_self(5, P["U5M"]); sched_self(4, P["U4M"])
        assert P["U5M"] + 16 < P["B3"]
    assert P["U3M"] + 16 < P["B2"]
    if P["FB"]:
        def fbar():
            wait(vm=pack_tag[0]); e("s_barrier"); return 2 + setflag(0)
        at_pre(P["FB"], fbar)
    wp = [None]
    def wpoll0():
        e(f"v_and_b32 v{vP}, 0x1f0, v{vL0}"); e(f"v_lshlrev_b32 v{vP}, 6, v{vP}")
        e(f"buffer_load_dwordx2 {rng('v', vP, 2)}, v{vP}, {SWS}, s59 offen sc1")
    def wpoll():
        wpoll0(); wp[0] = VM.issue(); return 3
    def wflagchk(val, lab):
        e(f"s_add_u32 s{sTMP}, s{sT}, {val}")
        e(f"v_subrev_u32 v{vP}, s{sTMP}, v{vP}"); e(f"v_xor_b32 v{vP+1}, s{sT+1}, v{vP+1}"); e("s_nop 0")
        e(f"v_cmp_gt_u64 vcc, {16-val}, {rng('v', vP, 2)}"); e("s_nop 3")
        e("s_cmp_lg_u64 vcc, -1"); e(f"s_cbranch_scc1 {lab}")
    def wchk(val):
        wait(vm=wp[0])
        wflagchk(val, f"L_wspin{val}")
        e(f"L_wback{val}:")
        wok[0] = 256 if val == 0 else 768
        return 8
    m12 = P["M12"] * 128 + 48
    for val, mm in ((0, P["WCHK"]), (1, m12)):
        at_post(mm - P["WPOLL"], wpoll)
        at_post(mm, lambda val=val: wchk(val))
    x0l_lg = [None]
    for bt in range(8):
        def wr(bt=bt):
            e(f"ds_write_b128 v{vLX}, {rng('a', breg(0, bt))} offset:{bt*1024}")
            x0l_lg[0] = LG.issue(); return 1
        at_post(M(0, 14, 0, bt) + 5, wr)
    ptag = {}
    def flagchk(val, lab):
        e(f"v_readfirstlane_b32 s{sTMP}, v{vP}"); e(f"v_readfirstlane_b32 s{sS2}, v{vP+1}")
        e(f"s_xor_b32 s{sTMP}, s{sTMP}, s{sT}"); e(f"s_sub_u32 s{sTMP}, s{sTMP}, {val}")
        e(f"s_cmp_lg_u32 s{sS2}, s{sT+1}"); e(f"s_cbranch_scc1 {lab}")
        e(f"s_cmp_gt_u32 s{sTMP}, {15-val}"); e(f"s_cbranch_scc1 {lab}")
    spins = []
    FLAGBAR = {}
    busy = []
    def add_poll(val, mchk):
        def poll():
            e(f"buffer_load_dwordx2 {rng('v', vP, 2)}, off, {SWS}, s{sPFLAG} sc1")
            ptag[val] = VM.issue(); return 1
        busy.append((mchk - P["POLL_M"], mchk))
        at_post(mchk - P["POLL_M"], poll)
        def chk():
            wait(vm=ptag[val])
            flagchk(val, f"L_spin{val}")
            e(f"L_back{val}:")
            return 8
        at_post(mchk, chk)
        spins.append(val)
    FV = 4 if P["XOUT"] else 2
    gate = {}
    if P["XOUT"]:
        for l in (1, 2):
            for hb in range(2):
                val = 4 * l + hb
                gb = RB(l, 5 + 2 * hb)
                at_post(32 * gb, lambda val=val: setflag(val)); busy.append((32 * gb, 32 * gb))
                gate[(l, hb)] = 2048 * l + P[("CA", "CB")[hb] + str(l)]
                add_poll(val, gate[(l, hb)])
    for l in (1, 2):
        sp = P["XDS"] if l == 1 else P["XDL"]
        mm = 2048 * l + P["XD0"]
        for hb in range(2):
            val = FV * (l - 1) + hb + 2
            gb = 64 * l + P["XBA"] if hb == 0 else RB(l, 2)
            FLAGBAR[gb] = (l, 2 * hb + 1)
            mchk = max(mm, free_at(l, 4 + 2 * hb)) + 2
            if not P["NOSYNC"]:
                at_post(32 * gb, lambda val=val: setflag(val)); busy.append((32 * gb, 32 * gb))
                add_poll(val, mchk)
            mm = mchk + 1
            for jj in (2 * hb, 2 * hb + 1):
                mm = max(mm, free_at(l, 4 + jj) + 1)
                sched_dma(l, 4 + jj, mm, sp)
                mm += 8 * sp
        busy.sort()
        for x, y in zip(busy, busy[1:]): assert x[1] < y[0], (x, y)
        if l == 1 and not P['SAMEX'] and not P['XOUT']:
            def bump():
                for k in range(4): e(f"s_add_u32 s{sXST+k}, s{sXST+k}, {256*P['XSTR']}")
                return 4
            at_post(M(1, 9, 1), bump)
    for l in (0, 1, 2):
        bt_tags = {}
        Tn = P["TT"] if l < 2 else P["TL"]
        for j in range(4):
            sb = (P["BS0"] if l == 0 else P["HH"] - 1) if j < 2 else 15 - Tn
            rdy = M(l, sb, j) + 36
            if l > 0 and j < 2: rdy = max(rdy, M(l, 0, 3) + 32 + 100)
            def ld(j=j, l=l):
                if l == 2 and j == 0: e(f"s_add_u32 s{sBOFF}, s{sBOFF}, 4096")
                bt_tags[j] = bias_load(l, j); return 1
            at_post((rdy - 96 if j % 2 == 0 else prev_ld + 4), ld)
            prev_ld = rdy - 96
            items = []
            for h in range(2):
                def first(j=j, h=h): wait(vm=bt_tags[j]); e(f"v_lshlrev_b32 v{UB}, 16, v{T+4*j+2*h}")
                items.append(first)
                items.append(lambda j=j, h=h: e(f"v_and_b32 v{UB+1}, s{sMASK}, v{T+4*j+2*h}"))
                items.append(lambda j=j, h=h: e(f"v_lshlrev_b32 v{UB+2}, 16, v{T+4*j+2*h+1}"))
                items.append(lambda j=j, h=h: e(f"v_and_b32 v{UB+3}, s{sMASK}, v{T+4*j+2*h+1}"))
                for bt in range(8):
                    k, b = acc(2 * j + h, bt)
                    if k == "v":
                        for r in range(4):
                            items.append(lambda b=b, r=r: e(f"v_add_f32 v{b+r}, v{b+r}, v{UB+r}"))
                    else:
                        for r in range(4): items.append(lambda b=b, r=r: e(f"v_accvgpr_read_b32 v{T+r}, a{b+r}"))
                        for r in range(4): items.append(lambda r=r: e(f"v_add_f32 v{T+r}, v{T+r}, v{UB+r}"))
                        for r in range(4): items.append(lambda b=b, r=r: e(f"v_accvgpr_write_b32 a{b+r}, v{T+r}"))
            dlb = M(l, sb + 1, j) - 1
            if j >= 2: dlb = min(dlb, M(l, 15, 0) + 7)
            add_task(rdy, dlb, items)
    xl_tag = {}
    U = T + 12; A = T + 16
    for l in range(3):
        last = l == 2
        seq = [divmod(u, 8) for u in range(32)]
        if last and P["OI"] >= 1: seq[:16] = [(u % 2, u // 2) for u in range(16)]
        if last and P["OI"] >= 2: seq[16:] = [(2 + u % 2, u // 2) for u in range(16)]
        prev_ready = 0
        for u in range(32):
            j, bt = seq[u]
            ot = last and P["OT"]
            ts = T + 4 * (u % (2 if ot else 3))
            items = []
            vWA, vRA, vGA = T + 8, T + 10, T + 11
            if ot:
                assert P["OI"] == 2 and not P["DEEPT"]
                if u == 0:
                    for ins in (f"v_lshrrev_b32 v{U}, 7, v{vL0}", f"v_lshlrev_b32 v{U+1}, 4, v{U}", f"v_xor_b32 v{vRA}, v{U+1}, v{vLX}",
                                f"v_and_b32 v{U+1}, 0x70, v{vL0}", f"v_lshl_add_u32 v{vGA}, v{U}, 11, v{U+1}",
                                f"v_lshrrev_b32 v{U}, 4, v{vL0}", f"v_and_b32 v{U}, 0x30, v{U}", f"v_xor_b32 v{U}, v{U}, v{U+1}",
                                f"v_and_b32 v{U+1}, 0xf0, v{vL0}", f"v_lshl_add_u32 v{U}, v{U+1}, 3, v{U}",
                                f"v_sub_u32 v{U+1}, v{vLX}, v{vL0}", f"v_add_u32 v{vWA}, v{U}, v{U+1}", f"v_xor_b32 v{vWA+1}, 64, v{vWA}"):
                        items.append(lambda ins=ins: e(ins))
            xsrc = acc(bt % 4, bt // 4)[1] if (ot and j == 3) else ts
            def xl_prefetch(uu, seq=seq):
                def f():
                    wait(lg=x0l_lg[0])
                    e(f"ds_read_b128 {rng('v', T + 4*(uu % 3))}, v{vLX} offset:{seq[uu][1]*1024}")
                    xl_tag[uu] = LG.issue()
                return f
            if j < 3:
                for d in range(4): items.append(lambda d=d, j=j, bt=bt, ts=ts: e(f"v_accvgpr_read_b32 v{ts+d}, a{x0r(j, bt)+d}"))
            for h in range(2):
                k, b = acc(2 * j + h, bt)
                def first(h=h, ts=xsrc, u=u, j=j, ot=ot, bt=bt):
                    if j == 3: wait(lg=xl_tag[("m", bt) if ot else u])
                    e(f"v_lshlrev_b32 v{U}, 16, v{ts+2*h}")
                items.append(first)
                items.append(lambda h=h, ts=xsrc: e(f"v_and_b32 v{U+1}, s{sMASK}, v{ts+2*h}"))
                items.append(lambda h=h, ts=xsrc: e(f"v_lshlrev_b32 v{U+2}, 16, v{ts+2*h+1}"))
                items.append(lambda h=h, ts=xsrc: e(f"v_and_b32 v{U+3}, s{sMASK}, v{ts+2*h+1}"))
                if h == 0 and u + 2 < 32 and seq[u + 2][0] == 3 and not ot: items.append(xl_prefetch(u + 2))
                for r in range(4):
                    if k == "v":
                        items.append(lambda b=b, r=r: e(f"v_mul_f32 v{U+r}, v{U+r}, v{b+r}"))
                    else:
                        items.append(lambda b=b, r=r: e(f"v_accvgpr_read_b32 v{A+r}, a{b+r}"))
                        items.append(lambda r=r: e(f"v_mul_f32 v{U+r}, v{U+r}, v{A+r}"))
                items.append(lambda h=h, ts=ts: e(f"v_cvt_pk_bf16_f32 v{ts+2*h}, v{U}, v{U+1}"))
                items.append(lambda h=h, ts=ts: e(f"v_cvt_pk_bf16_f32 v{ts+2*h+1}, v{U+2}, v{U+3}"))
            if ot:
                def rbreg(j, bt, k): return ("a", x0r(k, bt)) if j < 2 else acc(4 + k, bt)
                def ost(j, bt, k):
                    def f():
                        wait(lg=xl_tag[("r", j // 2, bt, k)])
                        so = sXO + bt
                        if k: e(f"s_add_u32 s{sXST+2}, s{so}, 16384"); so = sXST + 2
                        e(f"buffer_store_dwordx4 {rng(*rbreg(j, bt, k))}, v{vGA}, {SOUT}, s{so} offen offset:{(j//2)*128} {P['OSC'] if (j < 2 or not P['OSC2']) else ''}")
                        VM.issue()
                    return f
                if u < 4:
                    for k in range(2):
                        def mv(b2=2 * u + k):
                            e(f"ds_read_b128 {rng(*acc(b2 % 4, b2 // 4))}, v{vLX} offset:{b2*1024}")
                            xl_tag[("m", b2)] = LG.issue()
                        items.append(mv)
                def dwo(j=j, bt=bt, ts=ts):
                    e(f"ds_write_b128 v{vWA + j % 2}, {rng('v', ts)} offset:{(bt % 4)*2048}"); LG.issue()
                items.append(dwo)
                if j % 2 == 1:
                    for k in range(2):
                        def rb(j=j, bt=bt, k=k):
                            e(f"ds_read_b128 {rng(*rbreg(j, bt, k))}, v{vRA} offset:{(bt % 4)*2048 + k*1024}")
                            xl_tag[("r", j // 2, bt, k)] = LG.issue()
                        items.append(rb)
                    if u in (15, 31): items += [lambda: e("s_nop 0")] * (0 if u == 31 else 6) + [ost(j, bt, 0), ost(j, bt, 1)]
                elif u not in (0, 16): items += [ost(*seq[u - 1], 0), ost(*seq[u - 1], 1)]
            elif last:
                def st(j=j, bt=bt, ts=ts):
                    if P['NOOUT'] == 1 and not (j == 3 and bt == 7): return
                    if P['NOOUT'] == 2:
                        e(f"buffer_store_dwordx4 {rng('v', ts)}, v{vW0 if j < 2 else vW1}, {SWS}, s{sXST + (j%2)*2 + bt//4} offen offset:{(bt%4)*1024}")
                    else: e(f"buffer_store_dwordx4 {rng('v', ts)}, v{vXR}, {SOUT}, s{sXO+bt} offen offset:{j*64} {P['OSC']}")
                    VM.issue()
                    if P["DEEPT"] and j < 2:
                        pool.extend([(acc(2 * j, bt), NM), (acc(2 * j + 1, bt), NM), (("a", x0r(j, bt)), NM)])
                items.append(st)
            else:
                def dw(j=j, bt=bt, ts=ts, l=l):
                    off = j * 32768 + bt * 1024
                    e(f"ds_write_b128 v{vW0 if off < 65536 else vW1}, {rng('v', ts)} offset:{off % 65536}")
                    blk_lg[(l + 1, j)] = LG.issue()
                items.append(dw)
                def xs(j=j, bt=bt, ts=ts, l=l):
                    if P['NOST']: return
                    if P['XOUT']:
                        e(f"s_xor_b32 s{sXST+1}, s{sXST}, {(j*32 + bt)*2048}")
                        e(f"buffer_store_dwordx4 {rng('v', ts)}, v{vL0}, {SOUT}, s{sXST+1} offen {P['SSC']}")
                        st_tag[(l + 1, j)] = VM.issue()
                        return
                    e(f"buffer_store_dwordx4 {rng('v', ts)}, v{vW0 if j < 2 else vW1}, {SWS}, s{sXST + (j%2)*2 + bt//4} offen offset:{(bt%4)*1024} {P['SSC']}")
                    st_tag[(l + 1, j)] = VM.issue()
                items.append(xs)
            ready = max(M(l, 15, j, bt) + 8, prev_ready + (P["OPACE"] if (last and j < 2 and u > 0) else 0))
            if P["XOUT"] and l >= 1: ready = max(ready, gate[(l, (bt // 4) if last else (j // 2))] + 1)
            if last: prev_ready = ready
            dl = min(M(l + 1, 0, j, bt), 32 * RB(l + 1, j)) if not last else NM + 1
            if not last: ready = max(ready, free_at(l + 1, j))
            add_task(ready, dl, items)
    tasks.sort(key=lambda t: (t[0], t[1]))

    def run_items(m, n):
        k = 0
        while k < n and tasks and tasks[0][0] <= m:
            t = tasks[0]
            t[2].pop(0)(); k += 1
            if not t[2]: tasks.pop(0)
        return k
    def flush_deadlines(m):
        lastidx = -1
        for i, t in enumerate(tasks):
            if t[1] <= m: lastidx = i
            if t[0] > m: break
        n = 0
        for _ in range(lastidx + 1):
            t = tasks.pop(0)
            assert t[0] <= m, (t[0], m)
            for f in t[2]: f(); n += 1
        return n

    stall = 0
    CT = {1: {417: 2, 801: 3, 1057: 4, 1441: 5, 2593: 6, 2721: 7, 3105: 8, 3489: 9, 4641: 10, 4769: 11},
          2: {417: 2, 801: 3, 1057: 4, 1313: 5, 1441: 6, 2593: 7, 2977: 8, 3233: 9, 3489: 10, 4641: 11}}.get(P["CTM"])
    for m in range(NM):
        g, r = divmod(m, 32); l, s, rp = ORDER[g]; bt, sub = divmod(r, 4); h, c = divmod(sub, 2)
        ph = s // 2
        npre = 0
        stall += flush_deadlines(m)
        if m % 512 == 0: e(f"L_q{m//512}:")
        cur_m[0] = m
        if P["CTM"] == 0:
            if P["CPF"] and m % 512 == 33: npre += code_touch(m // 512 + P["CPF"]); touch_m.append(m)
        elif m in CT: npre += code_touch(CT[m]); touch_m.append(m)
        if P["STAMPS"] == 1 and m % 512 == 0: stamp()
        if 2 <= P["STAMPS"] < 9 and m % 128 == 0 and P["SG0"] <= m // 128 < P["SG0"] + 12: stamp()
        if P["STAMPS"] == 10 and r == 0 and P["SG0"] <= m // 32 < P["SG0"] + 12: stamp()
        if P["STAMPS"] == 9 and r == 0 and rp == 0 and l == 0 and 1 <= s < 6: stamp()
        if r == 0 and g in BARS:
            vms = []; lgt = None
            for nl in range(3):
                for nph in range(8):
                    if (nl, nph) != (0, 0) and RB(nl, nph) == g:
                        vms.append(half_tag[nph] if (nl == 0 and nph < P["HB"]) else blk_tag.get((nl, nph)))
                        lgt = blk_lg.get((nl, nph))
            for nph in range(P["HB"]):
                if RDG[(0, 2 * nph + 1)][0] == g: vms.append(blk_tag[(0, nph)])
            if g == G12: vms.append(pack_tag[2])
            if g in FLAGBAR: vms.append(st_tag.get(FLAGBAR[g]))
            vms = [t for t in vms if t is not None]
            wait(vm=max(vms) if vms else None, lg=lgt)
            if not P["NOBAR"]: e("s_barrier")
            npre += 2
        for f in pre_ev.get(m, []): npre += f()
        vmt = wtag[g * 4 + 3] if r == 0 else None
        lgt = btag[(1, bt)] if sub == 0 else None
        if r == 0:
            lw = [wlg[f] for f in range(g * 4, g * 4 + 4) if f in wlg]
            if lw: lgt = max(lw + ([lgt] if lgt is not None else []))
        npre += wait(vm=vmt, lg=lgt)
        k, b = acc(2 * rp + h, bt)
        d = rng(k, b)
        e(f"v_mfma_f32_16x16x32_bf16 {d}, {rng(*wslot[g*4 + sub][0])}, {rng('a', bop(l, s, c, bt))}, {'1.0' if (l == 0 and s == 0 and c == 0) else d}")
        npost = 0
        if bt == 7:
            pool.append(wslot[g * 4 + sub])
            npost += wload()
        elif m % P["RAMP"] == 1:
            npost += wload()
        if h == 1 and g < 191 and ORDER[g + 1][:2] != (l, s) and not P['NOJIT']:
            npost += bread(ORDER[g + 1][0], ORDER[g + 1][1], c, bt)
        for f in post_ev.get(m, []): npost += f()
        run_items(m, CAP - npost - npre)
    e("s_nop 7")
    n = 0
    while tasks: n += run_items(NM + 100, 1000)
    sys.stderr.write(f"forced items {stall}, tail items {n}\n")
    if P["STAMPS"]:
        stamp()
        e("s_waitcnt lgkmcnt(0)")
        ns = nstamp[0]
        assert ns <= 16
        for i in range(ns): e(f"v_mov_b32 v{32+i}, s{sSTAMP+2*i}")
        e(f"s_lshl_b32 s{sTMP}, s2, 8"); e(f"s_lshl_b32 s3, s{sW}, 6"); e(f"s_add_u32 s{sTMP}, s{sTMP}, s3")
        for i in range(0, 16, 4):
            e(f"buffer_store_dwordx4 {rng('v', 32+i)}, off, {SWS}, s{sTMP} offset:{i*4}")
    e("s_cmp_lg_u32 s2, 0"); e("s_cbranch_scc1 L_end")
    e(f"s_cmp_lg_u32 s{sW}, 0"); e("s_cbranch_scc1 L_end")
    e(f"v_mov_b32 v{vP}, s{sT}"); e(f"v_mov_b32 v{vP+1}, s{sT+1}"); e("s_mov_b64 exec, 1")
    e(f"s_mov_b32 s{sTMP}, {EPOCH_OFF}")
    e(f"buffer_store_dwordx2 {rng('v', vP, 2)}, off, {SWS}, s{sTMP}")
    e("L_end:")
    e("s_endpgm")
    for val in spins:
        e(f"L_spin{val}:")
        e(f"s_mov_b32 s{sSPIN}, 0x40000")
        e(f"L_spinl{val}:")
        e("s_sleep 1")
        e(f"buffer_load_dwordx2 {rng('v', vP, 2)}, off, {SWS}, s{sPFLAG} sc1")
        e(f"s_sub_u32 s{sSPIN}, s{sSPIN}, 1")
        e("s_waitcnt vmcnt(0)")
        e(f"s_cmp_eq_u32 s{sSPIN}, 0"); e(f"s_cbranch_scc1 L_back{val}")
        flagchk(val, f"L_spinl{val}")
        e(f"s_branch L_back{val}")
    for val in (0, 1):
        e(f"L_wspin{val}:")
        e(f"s_mov_b32 s{sSPIN}, 0x40000")
        e(f"L_wspinl{val}:")
        e("s_sleep 2")
        wpoll0()
        e(f"s_sub_u32 s{sSPIN}, s{sSPIN}, 1")
        e("s_waitcnt vmcnt(0)")
        e(f"s_cmp_eq_u32 s{sSPIN}, 0"); e(f"s_cbranch_scc1 L_wback{val}")
        wflagchk(val, f"L_wspinl{val}")
        e(f"s_branch L_wback{val}")

LAUNCH = "; @launch grid=(256,1,1) block=(256,1,1) lds=163840"
hdr = f"""; DCN-v2 cross network, 3 layers, B=16384, D=1024, bf16.  Generated by dev/gen.py (hand-written generator).
{LAUNCH}
.amdgcn_target "amdgcn-amd-amdhsa--gfx950"
.text"""
main_kernel()
if P['CPF']: e('.fill 4096, 4, 0xBF800000')
def kd(name, vg, ao, sg):
    return f""".p2align 6
.amdhsa_kernel {name}
  .amdhsa_next_free_vgpr {vg}
  .amdhsa_next_free_sgpr {sg}
  .amdhsa_accum_offset {ao}
  .amdhsa_group_segment_fixed_size 0
  .amdhsa_kernarg_size 48
  .amdhsa_user_sgpr_count 2
  .amdhsa_user_sgpr_kernarg_segment_ptr 1
  .amdhsa_system_sgpr_workgroup_id_x 1
.end_amdhsa_kernel
"""
tail = '\n.section .rodata,"a"\n' + kd(KN, 512, 256, 102)
open(out, "w").write(hdr + "\n" + "\n".join(L) + tail)
```

```python
import sys
out = sys.argv[1]
P = dict(CAP=2, DLEAD=2, DSPREAD=32, STAMPS=0, XSC="sc1", SSC="sc1", POLL_M=64, BIAS_S=11, NOSYNC=0, XDSPREAD=24,
         DOFF=2, NODMA=0, NOBAR=0, NOW=0, NOJIT=0, NOST=0, DEEP=1, XCHK=192, STOFF=5, STSPREAD=20, RAMP=4, XSMALL=0, NOOUT=0, XSTR=131072+1024, CPF=2, ONLY=0, RT=0, WSC=1, XP=0, OT=0, OSC2=0, XOUT=0, XMASK=31, CA1=1600, CB1=1960, CA2=1470, CB2=1640, SAMEX=0, PORD=0, D4=0, D5=0, CTM=0, XALT=0, OI=0, OPACE=0, DEEPT=0, OSC="", SG0=1, HH=4, TT=4, TL=8, TL2=4, XBA=9, XD0=550, XDS=30, XDL=24, BS0=9,  PTOUCH=0, HB=4, C12=5, B1M=34, B1S=8, UDS=4, U3D=0, U5D=64, U4D=98, B3=262, B3S=24, M12=14,  NSELF=6, FB=0, WCHK=280, WPOLL=64, B2=132, B2S=16, BLK1E=1, U2M=40, U3M=100, U5M=200, U4M=226)
for kv in sys.argv[2:]:
    k, v = kv.split("=")
    P[k] = v.replace("+", " ").replace("none", "") if k in ("XSC", "SSC", "OSC") else int(v)
CAP = P["CAP"]

KN = "standalone__cross_network_dcn__recsys_kernel"
PK = "dcn_pack_kernel"
WP_OFF = 0x100000
FLAG_OFF = 0x800000
X_OFF = P.get("XOFF", 0x1000000)
L = []
def e(s): L.append(s)

class Ctr:
    def __init__(s, name, mx): s.name, s.mx, s.n, s.done = name, mx, 0, 0
    def issue(s):
        s.n += 1
        return s.n - 1
    def need(s, idx):
        if idx is None or idx < s.done: return None
        N = min(s.n - 1 - idx, s.mx)
        s.done = max(s.done, s.n - N)
        return N
cur_m = [0]; touch_m = []
VM = Ctr("vmcnt", 63); LG = Ctr("lgkmcnt", 15)
def wait(vm=None, lg=None):
    a = VM.need(vm); b = LG.need(lg)
    parts = []
    if a is not None: parts.append(f"vmcnt({a})")
    if b is not None:
        parts.append(f"lgkmcnt({b})")
        if touch_m: sys.stderr.write(f"touch at {touch_m[0]}: next lgkm wait after {cur_m[0] - touch_m[0]} (N={b})\n"); touch_m.clear()
    if parts:
        e("s_waitcnt " + " ".join(parts)); return 1
    return 0
def wait_lg_all():
    e("s_waitcnt lgkmcnt(0)"); LG.done = LG.n

vL0, vK, vXR, vW0, vW1, vLX, vB, vP = 0, 1, 5, 6, 7, 8, 9, 10
T = 12
def acc(a, bt):
    if a < 7:
        b = 32 + (a * 8 + bt) * 4
        return ("v", b)
    return ("a", 224 + bt * 4)
def rng(k, b, n=4): return f"{k}[{b}:{b+n-1}]"
def x0r(j, bt): return (j * 8 + bt) * 4
def breg(c, bt): return 96 + (c * 8 + bt) * 4
SX0, SOUT, SWS, SBS, SWR = "s[12:15]", "s[16:19]", "s[20:23]", "s[24:27]", "s[4:7]"
sT, sSELF, sS2 = 8, 10, 11
EPOCH_OFF = 0x810000
sW, sHF, sWOFF, sW2048, sW8192, sMASK, sTMP, sFLAG, sPFLAG, sBOFF, sSPIN, sTMP2 = 28, 29, 30, 31, 32, 33, 34, 35, 36, 37, 38, 39
sXO = 40
sXOWN = 48
sXOTH = 50
sXST = 52
sXLD = 56
sSTAMP = 60
nstamp = [0]
def pstamp():
    if P["STAMPS"] == 9: stamp()
def stamp():
    if P["STAMPS"]:
        e(f"{'s_memrealtime' if P['RT'] else 's_memtime'} s[{sSTAMP+2*nstamp[0]}:{sSTAMP+2*nstamp[0]+1}]"); nstamp[0] += 1
NM = 3 * 2048
ORDER = []
for l in range(3):
    H = P["HH"] if l > 0 else 0
    Tn = P["TT"] if l < 2 else P["TL"]
    T2 = P["TL2"] if l == 2 else 0
    ORDER += [(l, s, rp) for s in range(H) for rp in (0, 1)] + [(l, s, rp) for s in range(H) for rp in (2, 3)]
    ORDER += [(l, s, rp) for s in range(H, 16 - Tn) for rp in range(4)]
    ORDER += [(l, s, rp) for s in range(16 - Tn, 16) for rp in (0, 1)]
    ORDER += [(l, s, rp) for s in range(16 - Tn, 16 - T2) for rp in (2, 3)]
    ORDER += [(l, s, 2) for s in range(16 - T2, 16)] + [(l, s, 3) for s in range(16 - T2, 16)]
assert len(set(ORDER)) == 192
GPOS = {k: i for i, k in enumerate(ORDER)}
M = lambda l, s, rp=0, bt=0, sub=0: GPOS[(l, s, rp)] * 32 + bt * 4 + sub
RDG = {}
for i in range(1, 192):
    if ORDER[i][:2] != ORDER[i - 1][:2]: RDG.setdefault(ORDER[i][:2], []).append(i - 1)
def RB(l, ph): return min(RDG[(l, 2 * ph)] + RDG[(l, 2 * ph + 1)])
def LRD(l, ph): return max(RDG.get((l, 2 * ph), [-1]) + RDG[(l, 2 * ph + 1)])
BARS = set(RB(l, ph) for l in range(3) for ph in range(8) if (l, ph) != (0, 0))
BARS |= set(RDG[(0, 2 * ph + 1)][0] for ph in range(P["HB"]))
BARS |= set(64 * l + P["XBA"] for l in (1, 2))
def free_at(l, ph):
    pl, pp = (l, ph - 4) if ph >= 4 else (l - 1, ph + 4)
    if pl < 0: return 0
    return 32 * min(b for b in BARS if b >= LRD(pl, pp) + 2)

CAPS = (4, 6, 12, 14) if P["XALT"] == 3 else (8, 10, 12, 14)
def own0(ph): return ph % 4 >= 2 if P["XALT"] == 3 else ph >= 4
def bop(l, s, c, bt):
    if P['DEEP'] < 2 and l == 0 and c == 0 and s in CAPS[:3]: return x0r(CAPS.index(s), bt)
    return breg(c, bt)

def main_kernel():
    e(f".globl {KN}"); e(".p2align 8"); e(f".type {KN},@function"); e(f"{KN}:")
    e("s_cmp_ge_u32 s2, 256"); e("s_cbranch_scc1 L_end")
    if P["PTOUCH"]:
        e("s_getpc_b64 s[92:93]")
        e("v_lshrrev_b32 v12, 6, v0"); e("s_lshr_b32 s94, s2, 3"); e("v_readfirstlane_b32 s95, v12")
        e("s_and_b32 s94, s94, 15"); e("s_lshl_b32 s94, s94, 2"); e("s_add_u32 s94, s94, s95"); e("s_lshl_b32 s94, s94, 7")
        e("s_add_u32 s92, s92, s94"); e("s_addc_u32 s93, s93, 0")
        e("s_load_dword s98, s[92:93], 0")
    e("s_load_dwordx4 s[4:7], s[0:1], 0")
    e("s_load_dwordx4 s[8:11], s[0:1], 16")
    e("s_load_dwordx4 s[40:43], s[0:1], 32")
    stamp()
    e("v_lshrrev_b32 v12, 6, v0")
    e("v_and_b32 v13, 63, v0")
    e(f"v_readfirstlane_b32 s{sW}, v12")
    e(f"v_lshlrev_b32 v{vL0}, 4, v13")
    for k in range(4): e(f"v_add_u32 v{vK+k}, {k*8192}, v{vL0}")
    e(f"v_lshl_add_u32 v{vW0}, v12, 13, v{vL0}")
    e(f"v_add_u32 v{vW1}, 0x10000, v{vW0}")
    e(f"v_add_u32 v{vLX}, 0x20000, v{vW0}")
    e("v_and_b32 v14, 15, v13"); e("v_lshrrev_b32 v15, 4, v13")
    e(f"v_lshlrev_b32 v{vB}, 4, v15")
    e(f"v_lshl_add_u32 v{vXR}, v14, 11, v{vB}")
    if P["XP"]:
        assert P["OT"] and P["XALT"] == 3
        e("v_lshrrev_b32 v16, 2, v13"); e("v_and_b32 v17, 3, v13"); e("v_xor_b32 v17, v17, v15"); e("v_lshlrev_b32 v17, 4, v17")
        e(f"v_lshl_add_u32 v{vXR}, v16, 11, v17")
        e("v_lshrrev_b32 v16, 2, v14"); e("v_xor_b32 v16, v16, v15"); e("v_lshlrev_b32 v16, 4, v16"); e("v_lshl_add_u32 v16, v14, 6, v16")
        for k in range(4): e(f"v_add_u32 v{vK+k}, {k*8192}, v16")
    e("s_and_b32 s3, s2, 7"); e(f"s_lshr_b32 s{sTMP}, s2, 4"); e(f"s_lshl_b32 s{sTMP}, s{sTMP}, 3"); e(f"s_or_b32 s3, s3, s{sTMP}")
    e(f"s_lshr_b32 s{sHF}, s2, 3"); e(f"s_and_b32 s{sHF}, s{sHF}, 1")
    e(f"s_lshl_b32 s{sW2048}, s{sW}, 11"); e(f"s_lshl_b32 s{sW8192}, s{sW}, 13")
    e(f"s_mov_b32 s{sMASK}, 0xffff0000")
    if P["XP"]: e(f"s_add_u32 s101, s{sW8192}, 0x10000")
    e("s_lshl_b32 s3, s3, 18")
    e(f"s_lshl_b32 s{sTMP2}, s{sHF}, 2"); e(f"s_add_u32 s{sTMP2}, s{sTMP2}, s{sW}")
    e(f"s_lshl_b32 s{sBOFF}, s{sTMP2}, 8")
    e(f"s_lshl_b32 s{sTMP}, s{sW}, 16"); e(f"s_add_u32 s{sTMP}, s{sTMP}, s3")
    e(f"s_lshl_b32 s{sXOWN}, s{sHF}, 10"); e(f"s_xor_b32 s{sXOTH}, s{sXOWN}, 1024")
    e(f"s_add_u32 s{sXOWN}, s{sXOWN}, s{sTMP}"); e(f"s_add_u32 s{sXOTH}, s{sXOTH}, s{sTMP}")
    e(f"s_add_u32 s{sXOWN+1}, s{sXOWN}, 32768"); e(f"s_add_u32 s{sXOTH+1}, s{sXOTH}, 32768")
    e(f"s_mul_i32 s{sWOFF}, s{sTMP2}, {3*8*32768}"); e(f"s_add_u32 s{sWOFF}, s{sWOFF}, {WP_OFF + P['NSELF']*8192}")
    e("s_waitcnt lgkmcnt(0)")
    pstamp()
    for (s, ptr, n) in ((24, 8, 6144), (12, 4, 0x2000000), (20, 42, 0x10000000), (16, 10, 0x2000000), (4, 6, 0x600000)):
        e(f"s_mov_b32 s{s}, s{ptr}"); e(f"s_and_b32 s{s+1}, s{ptr+1}, 0xffff"); e(f"s_mov_b32 s{s+2}, {hex(n)}"); e(f"s_mov_b32 s{s+3}, 0x20000")

    def bias_load(l, j):
        e(f"buffer_load_dwordx4 {rng('v', T+4*j)}, v{vB}, {SBS}, s{sBOFF} offen offset:{(l*2048 + j*64) % 4096}")
        return VM.issue()
    wtag = {}; wslot = {}; wlg = {}
    wok = [0]
    wload_n = [0]
    pool = [(("a", 160 + 4 * i), NM) for i in range(16)]
    if P["DEEP"]:
        for j in ((0, 1, 2) if P["PORD"] else (2, 1, 0)):
            if P["DEEP"] >= 2 and j >= P["DEEP"] - 1: continue
            pool += [(("a", x0r(j, bt)), 32 * RDG[(0, CAPS[j])][0] if P["DEEP"] < 2 else NM) for bt in range(8)]
    def last_use(f): return 32 * (f // 4) + 28 + f % 4
    def wload():
        f = wload_n[0]
        if f >= wok[0]: return 0
        while pool and pool[0][1] <= last_use(f): pool.pop(0)
        if not pool: return 0
        sl = pool.pop(0)
        wslot[f] = sl
        wload_n[0] += 1
        if P['NOW'] and f >= 16:
            wtag[f] = None; return 0
        k = f % 4
        e(f"buffer_load_dwordx4 {rng(*sl[0])}, v{vL0}, {SWS}, s{sWOFF} offen offset:{k*1024}{' sc1' if P['WSC'] else ''}")
        wtag[f] = VM.issue()
        n = 1
        if k == 3 and f + 1 < 768:
            lin = lambda g: ORDER[g][0] * 64 + ORDER[g][1] * 4 + ORDER[g][2]
            e(f"s_add_u32 s{sWOFF}, s{sWOFF}, {hex(((lin(f // 4 + 1) - lin(f // 4)) * 4096) & 0xffffffff)}"); n += 1
        return n
    def x0_io(ph, ksl):
        if P["XALT"] == 3:
            if own0(ph): return ksl * 256 + ((ph // 4) * 2 + ph % 2) * 64
            return (2 * (ph % 2) + (ksl >> 1)) * 256 + (2 * (ph // 4) + (ksl & 1)) * 64
        if P["XALT"] == 1: return (ph // 2) * 256 + ksl * 64
        if P["XALT"] == 2: return ((ph // 4) * 2 + ph % 2) * 256 + ksl * 64
        return ph * 256 + ksl * 64 if ph < 4 else ksl * 256 + (ph - 4) * 64
    m0own = [None]
    def dma_x0_m0(ph, ksl, i):
        m0own[0] = ("x", ph, ksl, i)
        lo = (ph % 4)*32768 + ksl*8192 + i*1024
        e(f"s_add_u32 m0, s{sW2048}, {lo - x0_io(ph, ksl) if lo >= x0_io(ph, ksl) else lo}")
    def dma_x0_ld(ph, ksl, i):
        assert m0own[0] == ("x", ph, ksl, i)
        so = (sXOWN if own0(ph) else sXOTH) + i
        if P["XALT"] == 1: so = (sXOTH if ph % 2 == 0 else sXOWN) + i
        if P["XALT"] == 2: so = (sXOTH if ph % 4 < 2 else sXOWN) + i
        io = x0_io(ph, ksl)
        if (ph % 4)*32768 + ksl*8192 + i*1024 < io:
            e(f"s_add_u32 s{sS2}, s{so}, {io}"); so = sS2; io = 0
        e(f"buffer_load_dwordx4 v{vXR}, {SX0}, s{so} offen offset:{io} lds")
        return VM.issue()
    blk_tag = {}
    blk_lg = {}
    st_tag = {}

    UB = T + 16
    vSG, vCG, vCT, vFL, vTR, vTR4 = 12, 13, 14, 15, 16, 20
    def code_touch(q):
        if q > 11: return 0
        e(f"s_add_u32 s96, s92, L_q{q}-L_pc"); e("s_addc_u32 s97, s93, 0")
        e("s_load_dword s98, s[96:97], 0")
        return 3
    e(f"s_add_u32 s96, s42, {EPOCH_OFF}"); e("s_addc_u32 s97, s43, 0")
    e(f"s_load_dwordx2 s[{sT}:{sT+1}], s[96:97], 0")
    e("v_mov_b32 v24, v12"); e("v_mov_b32 v25, v13"); e("v_mov_b32 v26, v14"); e("v_mov_b32 v27, v15")
    e("v_lshrrev_b32 v28, 2, v25"); e("v_and_b32 v29, 3, v25")
    e(f"v_lshlrev_b32 v{vCG}, 11, v28"); e(f"v_lshl_add_u32 v{vCG}, v29, 4, v{vCG}")
    e(f"s_lshr_b32 s44, s2, 3"); e("s_and_b32 s45, s2, 7")
    e("s_lshl_b32 s46, s44, 16"); e("s_lshl_b32 s47, s45, 8"); e("s_add_u32 s46, s46, s47")
    e(f"s_lshl_b32 s47, s{sW}, 6"); e("s_add_u32 s100, s46, s47")
    coop_tag = {}
    def coop_dma(l, n):
        m0own[0] = None
        e(f"s_add_u32 m0, s{sW2048}, {(32768 if l == 0 else 131072) + l*8192 + n*1024}")
        e(f"s_add_u32 s{sS2}, s100, {l*0x200000 + n*32768}")
        e(f"buffer_load_dwordx4 v{vCG}, {SWR}, s{sS2} offen lds"); coop_tag[l] = VM.issue()
        return 3
    coop_dma(0, 0); coop_dma(0, 1)
    pstamp()
    e(f"v_lshlrev_b32 v30, 2, v27"); e("v_xor_b32 v30, v30, v26"); e("v_lshlrev_b32 v30, 4, v30")
    e(f"v_lshl_add_u32 v{vSG}, v27, 11, v30")
    e(f"s_xor_b32 s{sSELF}, s{sHF}, 1"); e(f"s_lshl_b32 s{sSELF}, s{sSELF}, 20"); e(f"s_add_u32 s{sSELF}, s{sSELF}, s{sBOFF}")
    REG = {0: 2, 1: 3, 2: 4, 3: 2, 4: 4, 5: 3}
    self_tag = {}; self_lg = {}
    def self_dma1(n, ch):
        m0own[0] = None
        e(f"s_add_u32 m0, s{sW2048}, {REG[n]*32768 + (ch>>1)*8192 + (ch&1)*1024}")
        rb = (n >> 1) * 4 + (n & 1) if P["XALT"] == 3 else n
        e(f"s_add_u32 s{sS2}, s{sSELF}, {rb*65536 + ch*8192}")
        e(f"buffer_load_dwordx4 v{vSG}, {SWR}, s{sS2} offen lds"); self_tag[n] = VM.issue()
        return 3
    def self_dma(n):
        for ch in range(8): self_dma1(n, ch)
    def self_read1(n, a, u):
        j, h = divmod(a, 2)
        f = ((n // 2) * 4 + j) * 4 + 2 * h + n % 2
        w_ = 0
        if a == 0 and u == 0: w_ = wait(vm=self_tag[n])
        if u == 0:
            while pool[0][1] <= last_use(f): pool.pop(0)
            wslot[f] = pool.pop(0)
        k, b = wslot[f][0]
        R = REG[n]
        e(f"ds_read_b64_tr_b16 {rng(k, b+2*u, 2)}, v{(vTR4 if R == 4 else vTR)+j} offset:{(R % 2)*32768 + u*1024 + 8*h}")
        self_lg[n] = wlg[f] = LG.issue(); wtag[f] = None
        return 1 + w_
    half_tag = {}
    def blk_dma(ph, hv):
        for ksl in (2 * hv, 2 * hv + 1):
            for i in range(2):
                dma_x0_m0(ph, ksl, i); e("s_nop 0")
                blk_tag[(0, ph)] = dma_x0_ld(ph, ksl, i)
        if hv == 0: half_tag[ph] = blk_tag[(0, ph)]
    self_dma(0); self_dma(1); blk_dma(0, 0)
    pstamp()
    e("v_bfe_u32 v28, v25, 2, 2")
    e(f"v_lshlrev_b32 v30, 11, v24"); e("v_lshl_add_u32 v30, v29, 4, v30")
    e("v_lshrrev_b32 v31, 1, v27"); e(f"v_lshl_add_u32 v{vCT}, v31, 10, v30")
    e("v_and_b32 v31, 1, v27"); e("v_lshl_add_u32 v31, v31, 3, v28"); e(f"v_lshl_add_u32 v{vCT}, v31, 6, v{vCT}")
    e(f"v_add_u32 v{vCT}, 0x8000, v{vCT}")
    e("v_lshl_add_u32 v30, v27, 13, v30"); e("v_lshl_add_u32 v30, v28, 8, v30"); e("v_add_u32 v30, 0x10000, v30")
    for j in range(4):
        e(f"v_xor_b32 v31, {j}, v28"); e(f"v_lshl_add_u32 v{vTR+j}, v31, 6, v30"); e(f"v_add_u32 v{vTR4+j}, 0x10000, v{vTR+j}")
    e("s_lshr_b32 s40, s44, 2"); e("s_and_b32 s41, s44, 3"); e("s_and_b32 s42, s45, 4")
    e("s_xor_b32 s42, s40, s42")
    e("s_and_b32 s43, s42, 3")
    e("s_and_b32 s46, s45, 3"); e("s_xor_b32 s46, s43, s46")
    e("s_and_b32 s47, s42, 4"); e("s_or_b32 s47, s47, s41")
    def dcalc(d, ph, ka):
        e(f"s_lshl_b32 s{d}, s{ph}, 15")
        e(f"s_lshr_b32 s{sTMP}, s{ka}, 1"); e(f"s_lshl_b32 s{sTMP}, s{sTMP}, 14"); e(f"s_add_u32 s{d}, s{d}, s{sTMP}")
        e(f"s_and_b32 s{sTMP}, s{ka}, 1"); e(f"s_lshl_b32 s{sTMP}, s{sTMP}, 10"); e(f"s_add_u32 s{d}, s{d}, s{sTMP}")
    dcalc(57, 47, 46)
    if P["XALT"] == 3:
        e("s_and_b32 s47, s41, 1"); e("s_and_b32 s40, s43, 1"); e("s_lshl_b32 s40, s40, 1"); e("s_or_b32 s40, s40, s47")
        e("s_or_b32 s47, s47, 2"); e("s_lshr_b32 s43, s43, 1")
        e("s_cmp_lt_u32 s42, 4")
        e("s_cselect_b32 s47, s47, s43"); e("s_cselect_b32 s46, s46, s40")
        e("s_lshr_b32 s40, s41, 1"); e("s_lshl_b32 s40, s40, 2"); e("s_or_b32 s47, s47, s40")
    else:
        e("s_xor_b32 s47, s47, 4")
        e("s_cmp_lt_u32 s42, 4")
        e("s_cselect_b32 s47, s47, s43"); e("s_cselect_b32 s46, s46, s41")
    dcalc(58, 47, 46)
    e(f"s_mul_i32 s40, s45, {3*262144}"); e(f"s_lshl_b32 s41, s{sW}, 12"); e("s_add_u32 s40, s40, s41"); e(f"s_add_u32 s40, s40, {WP_OFF}")
    e("s_add_u32 s57, s40, s57"); e("s_add_u32 s58, s40, s58")
    e("s_add_u32 s57, s57, 262144"); e("s_add_u32 s99, s57, 262144")
    CD = {0: 58, 1: 57, 2: 99}
    e("s_getpc_b64 s[92:93]")
    e("L_pc:")
    e(f"s_lshr_b32 s94, s2, 3"); e(f"s_lshl_b32 s94, s94, 2"); e(f"s_add_u32 s94, s94, s{sW}")
    e(f"s_lshl_b32 s94, s94, 7")
    e("s_add_u32 s92, s92, s94"); e("s_addc_u32 s93, s93, 0")
    for q in range(P["CPF"]): code_touch(q)
    e(f"s_xor_b32 s{sPFLAG}, s2, 8")
    e(f"s_mul_i32 s{sXST}, s2, {P['XSTR']}"); e(f"s_add_u32 s{sXST}, s{sXST}, {X_OFF}")
    e(f"s_mul_i32 s{sXLD}, s{sPFLAG}, {P['XSTR']}"); e(f"s_add_u32 s{sXLD}, s{sXLD}, {X_OFF}")
    e(f"s_add_u32 s{sXLD}, s{sXLD}, s{sW8192}")
    for k in range(1, 4): e(f"s_add_u32 s{sXST+k}, s{sXST}, {(k//2)*32768 + (k%2)*4096}")
    if P["XOUT"]:
        e(f"s_lshr_b32 s{sXST}, s3, 7"); e(f"s_and_b32 s{sXST}, s{sXST}, {P['XMASK'] << 11}")
        e(f"s_lshl_b32 s{sXLD}, s{sW}, 14"); e(f"s_xor_b32 s{sXST}, s{sXST}, s{sXLD}")
        e(f"s_lshl_b32 s{sXLD}, s{sHF}, 10"); e(f"s_or_b32 s{sXST}, s{sXST}, s{sXLD}"); e(f"s_or_b32 s{sXST}, s{sXST}, s3")
        e(f"s_xor_b32 s{sXLD}, s{sXST}, 1024")
    e(f"s_lshl_b32 s{sFLAG}, s2, 7"); e(f"s_add_u32 s{sFLAG}, s{sFLAG}, {FLAG_OFF}")
    e(f"s_xor_b32 s{sPFLAG}, s{sFLAG}, {8*128}")
    e(f"s_lshr_b32 s59, s{sBOFF}, 1"); e(f"s_add_u32 s59, s59, {FLAG_OFF}")
    stamp()
    ct = {}; pack_tag = {}
    def creg(l, h): return ('a', 96 + h * 4) if l == 0 else ('v', 16 + ((l - 1) * 2 + h) * 4)
    def coop_read(l, h, u):
        w_ = wait(vm=coop_tag[l])
        k, b = creg(l, h)
        e(f"ds_read_b64_tr_b16 {rng(k, b + 2*u, 2)}, v{vCT} offset:{l*8192 + u*256 + h*8}")
        ct[(l, h)] = LG.issue(); return 1 + w_
    def coop_store(l, h):
        w_ = wait(lg=ct[(l, h)])
        e(f"buffer_store_dwordx4 {rng(*creg(l, h))}, v{vL0}, {SWS}, s{CD[l]} offen offset:{h*2048} sc1")
        pack_tag[l] = VM.issue(); return 1 + w_
    wait(vm=coop_tag[0])
    pstamp()
    for h in range(2):
        for u in range(2): coop_read(0, h, u)
    for h in range(2): coop_store(0, h)
    e(f"v_add_u32 v{vCT}, 0x18000, v{vCT}")
    blk_dma(0, 1); self_dma(2)
    pstamp()
    wait_lg_all()
    e(f"s_add_u32 s{sT}, s{sT}, 16"); e(f"s_addc_u32 s{sT+1}, s{sT+1}, 0")
    e(f"s_and_b32 s{sT}, s{sT}, -16"); e(f"s_and_b32 s{sT+1}, s{sT+1}, 0x7fffffff")
    e(f"s_add_u32 s{sXO}, s3, s{sBOFF}")
    for bt in range(1, 8): e(f"s_add_u32 s{sXO+bt}, s{sXO}, {bt*32768}")
    pstamp()
    for n in (0, 1):
        for a in range(8):
            for u in range(2): self_read1(n, a, u)
    pstamp()
    wait(vm=half_tag[0] if P["HB"] else blk_tag[(0, 0)])
    if P["FB"] == 0: wait(vm=pack_tag[0])
    e("s_barrier")
    stamp()
    def setflag(val):
        e(f"s_cmp_lg_u32 s{sW}, 0"); e(f"s_cbranch_scc1 L_nf{val}")
        e(f"s_add_u32 s{sTMP}, s{sT}, {val}")
        e(f"v_mov_b32 v{vP}, s{sTMP}"); e(f"v_mov_b32 v{vP+1}, s{sT+1}"); e("s_mov_b64 exec, 1")
        e(f"buffer_store_dwordx2 {rng('v', vP, 2)}, off, {SWS}, s{sFLAG} sc1")
        e("s_mov_b64 exec, -1")
        e(f"L_nf{val}:")
        return 2
    if P["FB"] == 0: setflag(0)
    wload_n[0] = 8 * P["NSELF"]
    btag = {}
    kst = {k: (0, 0) for k in range(4)}
    capt = set()
    def bread(l, s, c, bt):
        kap = (s % 2) * 2 + c
        if bop(l, s, c, bt) < 96:
            if (s, bt) in capt: return 0
            capt.add((s, bt))
        n = 1
        want = (0 if (l == 0 and not own0(s // 2)) else 1, (s // 4) % 2)
        if kst[kap] != want and P["XP"] and l == 0:
            assert kst[kap] == (1 - want[0], 1 - want[1])
            e(f"v_xor_b32 v{vK+kap}, s101, v{vK+kap}"); kst[kap] = want; n += 1
        elif kst[kap] != want:
            e(f"v_xor_b32 v{vK+kap}, {hex(kap*8192 + want[1]*65536)}, v{vW0 if want[0] else vL0}"); kst[kap] = want; n += 1
        off = ((s // 2) % 2) * 32768 + bt * 1024
        e(f"ds_read_b128 {rng('a', bop(l, s, c, bt))}, v{vK+kap} offset:{off}")
        btag[(c, bt)] = LG.issue()
        return n
    for bt in range(8):
        for c in range(2): bread(0, 0, c, bt)

    tasks = []
    def add_task(ready, deadline, items): tasks.append([ready, deadline, list(items)])
    pre_ev = {}; post_ev = {}
    def at_pre(m, f): pre_ev.setdefault(m, []).append(f)
    def at_post(m, f): post_ev.setdefault(m, []).append(f)

    def sched_dma(l, ph, m0, spread):
        if P['NODMA']: return
        assert m0 >= free_at(l, ph), (l, ph, m0, free_at(l, ph))
        assert m0 + 7 * spread < 32 * RB(l, ph), (l, ph)
        sys.stderr.write(f"dma ({l},{ph}) {m0 % 2048}..{(m0 + 7 * spread) % 2048} free {free_at(l, ph) % 2048} need {32 * RB(l, ph) % 2048}\n")
        if l == 0:
            seq = [(j, i) for j in range(4) for i in range(2)]
            for n, (j, i) in enumerate(seq):
                m = m0 + n * spread
                at_pre(m, lambda j=j, i=i: (dma_x0_m0(ph, j, i), 1)[1])
                def ld(j=j, i=i):
                    blk_tag[(l, ph)] = dma_x0_ld(ph, j, i)
                    if (j, i) == (1, 1): half_tag[ph] = blk_tag[(l, ph)]
                    return 1
                at_post(m, ld)
        else:
            j = ph % 4
            for n in range(8):
                m = m0 + n * spread
                if P["XOUT"]:
                    def setm1(n=n):
                        m0own[0] = ("e", l, ph, n)
                        e(f"s_add_u32 m0, s{sW8192}, {j*32768 + n*1024}")
                        e(f"s_xor_b32 s{sTMP2}, s{sXLD}, {(j*32 + n)*2048}")
                        return 2
                    at_pre(m, setm1)
                    def ld1(n=n):
                        assert m0own[0] == ("e", l, ph, n)
                        e(f"buffer_load_dwordx4 v{vL0}, {SOUT}, s{sTMP2} offen {P['XSC']} lds")
                        blk_tag[(l, ph)] = VM.issue(); return 1
                    at_post(m, ld1)
                    continue
                if n % 4 == 0:
                    def setm(n=n):
                        m0own[0] = ("e", l, ph, n // 4)
                        e(f"s_add_u32 m0, s{sW8192}, {j*32768 + (n//4)*4096}")
                        if P['XSMALL'] == 2: e(f"s_add_u32 s{sTMP2}, s{sXLD}, {(j%2)*32768 + (n//4)*4096}")
                        else: e(f"s_add_u32 s{sTMP2}, s{sXLD}, {(0 if P['SAMEX'] else (l-1)*256*P['XSTR']) + j*32768 + (n//4)*4096}")
                        return 2
                    at_pre(m, setm)
                def ld(n=n):
                    assert m0own[0] == ("e", l, ph, n // 4)
                    e(f"buffer_load_dwordx4 v{vL0}, {SWS}, s{sTMP2} offen offset:{(n%4)*1024} {P['XSC']} lds")
                    blk_tag[(l, ph)] = VM.issue(); return 1
                at_post(m, ld)
    sched_dma(0, 1, P["B1M"], P["B1S"])
    def sched_sdma(n, prev, m0):
        at_post(m0, lambda: wait(lg=self_lg[prev]))
        for ch in range(8): at_post(m0 + P["UDS"] * ch, lambda ch=ch: self_dma1(n, ch))
    sched_sdma(3, 0, P["U3D"])
    if P["NSELF"] > 4:
        sched_sdma(5, 1, P["U5D"]); sched_sdma(4, 2, P["U4D"])
        assert P["U2M"] + 16 < P["U4D"]
    mc = M(0, P["C12"]) + 10
    at_post(mc, lambda: wait(lg=self_lg[4 if P["NSELF"] > 4 else 2]))
    for i, (l, n) in enumerate([(1, 0), (1, 1), (2, 0), (2, 1)]): at_post(mc + 16 * i, lambda l=l, n=n: coop_dma(l, n))
    for i, (l, h, u) in enumerate([(l, h, u) for l in (1, 2) for h in range(2) for u in range(2)]):
        at_post(mc + 224 + 2 * i, lambda l=l, h=h, u=u: coop_read(l, h, u))
    for i, (l, h) in enumerate([(l, h) for l in (1, 2) for h in range(2)]): at_post(mc + 250 + 16 * i, lambda l=l, h=h: coop_store(l, h))
    PH12 = P["C12"] // 2 + 2
    G12 = RB(0, PH12 + 1)
    assert mc + 250 + 48 + 100 < 32 * G12
    at_post(32 * G12, lambda: setflag(1))
    for ph in range(P["DLEAD"], 8):
        if ph == 2:
            at_pre(P["B2"], lambda: wait(lg=self_lg[3]))
            sched_dma(0, ph, P["B2"], P["B2S"])
        elif ph == 3 and P["NSELF"] > 4:
            at_pre(P["B3"], lambda: wait(lg=self_lg[5]))
            sched_dma(0, ph, P["B3"], P["B3S"])
        elif ph == 4 and P["D4"]: sched_dma(0, ph, P["D4"], (P["D5"] - P["D4"]) // 8)
        elif ph == 5 and P["D5"]: sched_dma(0, ph, P["D5"], P["DSPREAD"])
        else: sched_dma(0, ph, M(0, 2 * (ph - P["DLEAD"])) + P["DOFF"], P["DSPREAD"])
    def sched_self(n, m0):
        for a in range(8):
            for u in range(2): at_post(m0 + 2 * a + u, lambda a=a, u=u: self_read1(n, a, u))
    sched_self(2, P["U2M"]); sched_self(3, P["U3M"])
    if P["NSELF"] > 4:
        sched_self(5, P["U5M"]); sched_self(4, P["U4M"])
        assert P["U5M"] + 16 < P["B3"]
    assert P["U3M"] + 16 < P["B2"]
    if P["FB"]:
        def fbar():
            wait(vm=pack_tag[0]); e("s_barrier"); return 2 + setflag(0)
        at_pre(P["FB"], fbar)
    wp = [None]
    def wpoll0():
        e(f"v_and_b32 v{vP}, 0x1f0, v{vL0}"); e(f"v_lshlrev_b32 v{vP}, 6, v{vP}")
        e(f"buffer_load_dwordx2 {rng('v', vP, 2)}, v{vP}, {SWS}, s59 offen sc1")
    def wpoll():
        wpoll0(); wp[0] = VM.issue(); return 3
    def wflagchk(val, lab):
        e(f"s_add_u32 s{sTMP}, s{sT}, {val}")
        e(f"v_subrev_u32 v{vP}, s{sTMP}, v{vP}"); e(f"v_xor_b32 v{vP+1}, s{sT+1}, v{vP+1}"); e("s_nop 0")
        e(f"v_cmp_gt_u64 vcc, {16-val}, {rng('v', vP, 2)}"); e("s_nop 3")
        e("s_cmp_lg_u64 vcc, -1"); e(f"s_cbranch_scc1 {lab}")
    def wchk(val):
        wait(vm=wp[0])
        wflagchk(val, f"L_wspin{val}")
        e(f"L_wback{val}:")
        wok[0] = 256 if val == 0 else 768
        return 8
    m12 = P["M12"] * 128 + 48
    for val, mm in ((0, P["WCHK"]), (1, m12)):
        at_post(mm - P["WPOLL"], wpoll)
        at_post(mm, lambda val=val: wchk(val))
    x0l_lg = [None]
    for bt in range(8):
        def wr(bt=bt):
            e(f"ds_write_b128 v{vLX}, {rng('a', breg(0, bt))} offset:{bt*1024}")
            x0l_lg[0] = LG.issue(); return 1
        at_post(M(0, 14, 0, bt) + 5, wr)
    ptag = {}
    def flagchk(val, lab):
        e(f"v_readfirstlane_b32 s{sTMP}, v{vP}"); e(f"v_readfirstlane_b32 s{sS2}, v{vP+1}")
        e(f"s_xor_b32 s{sTMP}, s{sTMP}, s{sT}"); e(f"s_sub_u32 s{sTMP}, s{sTMP}, {val}")
        e(f"s_cmp_lg_u32 s{sS2}, s{sT+1}"); e(f"s_cbranch_scc1 {lab}")
        e(f"s_cmp_gt_u32 s{sTMP}, {15-val}"); e(f"s_cbranch_scc1 {lab}")
    spins = []
    FLAGBAR = {}
    busy = []
    def add_poll(val, mchk):
        def poll():
            e(f"buffer_load_dwordx2 {rng('v', vP, 2)}, off, {SWS}, s{sPFLAG} sc1")
            ptag[val] = VM.issue(); return 1
        busy.append((mchk - P["POLL_M"], mchk))
        at_post(mchk - P["POLL_M"], poll)
        def chk():
            wait(vm=ptag[val])
            flagchk(val, f"L_spin{val}")
            e(f"L_back{val}:")
            return 8
        at_post(mchk, chk)
        spins.append(val)
    FV = 4 if (P["XOUT"] or P["SAMEX"]) else 2
    gate = {}
    if P["XOUT"] or P["SAMEX"]:
        for l in ((1, 2) if P["XOUT"] else (1,)):
            for hb in range(2):
                val = 4 * l + hb
                gb = RB(l, 5 + 2 * hb)
                at_post(32 * gb, lambda val=val: setflag(val)); busy.append((32 * gb, 32 * gb))
                gate[(l, hb)] = 2048 * l + P[("CA", "CB")[hb] + str(l)]
                add_poll(val, gate[(l, hb)])
    for l in (1, 2):
        sp = P["XDS"] if l == 1 else P["XDL"]
        mm = 2048 * l + P["XD0"]
        for hb in range(2):
            val = FV * (l - 1) + hb + 2
            gb = 64 * l + P["XBA"] if hb == 0 else RB(l, 2)
            FLAGBAR[gb] = (l, 2 * hb + 1)
            mchk = max(mm, free_at(l, 4 + 2 * hb)) + 2
            if not P["NOSYNC"]:
                at_post(32 * gb, lambda val=val: setflag(val)); busy.append((32 * gb, 32 * gb))
                add_poll(val, mchk)
            mm = mchk + 1
            for jj in (2 * hb, 2 * hb + 1):
                mm = max(mm, free_at(l, 4 + jj) + 1)
                sched_dma(l, 4 + jj, mm, sp)
                mm += 8 * sp
        busy.sort()
        for x, y in zip(busy, busy[1:]): assert x[1] < y[0], (x, y)
        if l == 1 and not P['SAMEX'] and not P['XOUT']:
            def bump():
                for k in range(4): e(f"s_add_u32 s{sXST+k}, s{sXST+k}, {256*P['XSTR']}")
                return 4
            at_post(M(1, 9, 1), bump)
    for l in (0, 1, 2):
        bt_tags = {}
        Tn = P["TT"] if l < 2 else P["TL"]
        for j in range(4):
            sb = (P["BS0"] if l == 0 else P["HH"] - 1) if j < 2 else 15 - Tn
            rdy = M(l, sb, j) + 36
            if l > 0 and j < 2: rdy = max(rdy, M(l, 0, 3) + 32 + 100)
            def ld(j=j, l=l):
                if l == 2 and j == 0: e(f"s_add_u32 s{sBOFF}, s{sBOFF}, 4096")
                bt_tags[j] = bias_load(l, j); return 1
            at_post((rdy - 96 if j % 2 == 0 else prev_ld + 4), ld)
            prev_ld = rdy - 96
            items = []
            for h in range(2):
                def first(j=j, h=h): wait(vm=bt_tags[j]); e(f"v_lshlrev_b32 v{UB}, 16, v{T+4*j+2*h}")
                items.append(first)
                items.append(lambda j=j, h=h: e(f"v_and_b32 v{UB+1}, s{sMASK}, v{T+4*j+2*h}"))
                items.append(lambda j=j, h=h: e(f"v_lshlrev_b32 v{UB+2}, 16, v{T+4*j+2*h+1}"))
                items.append(lambda j=j, h=h: e(f"v_and_b32 v{UB+3}, s{sMASK}, v{T+4*j+2*h+1}"))
                for bt in range(8):
                    k, b = acc(2 * j + h, bt)
                    if k == "v":
                        for r in range(4):
                            items.append(lambda b=b, r=r: e(f"v_add_f32 v{b+r}, v{b+r}, v{UB+r}"))
                    else:
                        for r in range(4): items.append(lambda b=b, r=r: e(f"v_accvgpr_read_b32 v{T+r}, a{b+r}"))
                        for r in range(4): items.append(lambda r=r: e(f"v_add_f32 v{T+r}, v{T+r}, v{UB+r}"))
                        for r in range(4): items.append(lambda b=b, r=r: e(f"v_accvgpr_write_b32 a{b+r}, v{T+r}"))
            dlb = M(l, sb + 1, j) - 1
            if j >= 2: dlb = min(dlb, M(l, 15, 0) + 7)
            add_task(rdy, dlb, items)
    xl_tag = {}
    U = T + 12; A = T + 16
    for l in range(3):
        last = l == 2
        seq = [divmod(u, 8) for u in range(32)]
        if last and P["OI"] >= 1: seq[:16] = [(u % 2, u // 2) for u in range(16)]
        if last and P["OI"] >= 2: seq[16:] = [(2 + u % 2, u // 2) for u in range(16)]
        prev_ready = 0
        for u in range(32):
            j, bt = seq[u]
            ot = last and P["OT"]
            ts = T + 4 * (u % (2 if ot else 3))
            items = []
            vWA, vRA, vGA = T + 8, T + 10, T + 11
            if ot:
                assert P["OI"] == 2 and not P["DEEPT"]
                if u == 0:
                    for ins in (f"v_lshrrev_b32 v{U}, 7, v{vL0}", f"v_lshlrev_b32 v{U+1}, 4, v{U}", f"v_xor_b32 v{vRA}, v{U+1}, v{vLX}",
                                f"v_and_b32 v{U+1}, 0x70, v{vL0}", f"v_lshl_add_u32 v{vGA}, v{U}, 11, v{U+1}",
                                f"v_lshrrev_b32 v{U}, 4, v{vL0}", f"v_and_b32 v{U}, 0x30, v{U}", f"v_xor_b32 v{U}, v{U}, v{U+1}",
                                f"v_and_b32 v{U+1}, 0xf0, v{vL0}", f"v_lshl_add_u32 v{U}, v{U+1}, 3, v{U}",
                                f"v_sub_u32 v{U+1}, v{vLX}, v{vL0}", f"v_add_u32 v{vWA}, v{U}, v{U+1}", f"v_xor_b32 v{vWA+1}, 64, v{vWA}"):
                        items.append(lambda ins=ins: e(ins))
            xsrc = acc(bt % 4, bt // 4)[1] if (ot and j == 3) else ts
            def xl_prefetch(uu, seq=seq):
                def f():
                    wait(lg=x0l_lg[0])
                    e(f"ds_read_b128 {rng('v', T + 4*(uu % 3))}, v{vLX} offset:{seq[uu][1]*1024}")
                    xl_tag[uu] = LG.issue()
                return f
            if j < 3:
                for d in range(4): items.append(lambda d=d, j=j, bt=bt, ts=ts: e(f"v_accvgpr_read_b32 v{ts+d}, a{x0r(j, bt)+d}"))
            for h in range(2):
                k, b = acc(2 * j + h, bt)
                def first(h=h, ts=xsrc, u=u, j=j, ot=ot, bt=bt):
                    if j == 3: wait(lg=xl_tag[("m", bt) if ot else u])
                    e(f"v_lshlrev_b32 v{U}, 16, v{ts+2*h}")
                items.append(first)
                items.append(lambda h=h, ts=xsrc: e(f"v_and_b32 v{U+1}, s{sMASK}, v{ts+2*h}"))
                items.append(lambda h=h, ts=xsrc: e(f"v_lshlrev_b32 v{U+2}, 16, v{ts+2*h+1}"))
                items.append(lambda h=h, ts=xsrc: e(f"v_and_b32 v{U+3}, s{sMASK}, v{ts+2*h+1}"))
                if h == 0 and u + 2 < 32 and seq[u + 2][0] == 3 and not ot: items.append(xl_prefetch(u + 2))
                for r in range(4):
                    if k == "v":
                        items.append(lambda b=b, r=r: e(f"v_mul_f32 v{U+r}, v{U+r}, v{b+r}"))
                    else:
                        items.append(lambda b=b, r=r: e(f"v_accvgpr_read_b32 v{A+r}, a{b+r}"))
                        items.append(lambda r=r: e(f"v_mul_f32 v{U+r}, v{U+r}, v{A+r}"))
                items.append(lambda h=h, ts=ts: e(f"v_cvt_pk_bf16_f32 v{ts+2*h}, v{U}, v{U+1}"))
                items.append(lambda h=h, ts=ts: e(f"v_cvt_pk_bf16_f32 v{ts+2*h+1}, v{U+2}, v{U+3}"))
            if ot:
                def rbreg(j, bt, k): return ("a", x0r(k, bt)) if j < 2 else acc(4 + k, bt)
                def ost(j, bt, k):
                    def f():
                        wait(lg=xl_tag[("r", j // 2, bt, k)])
                        so = sXO + bt
                        if k: e(f"s_add_u32 s{sXST+2}, s{so}, 16384"); so = sXST + 2
                        e(f"buffer_store_dwordx4 {rng(*rbreg(j, bt, k))}, v{vGA}, {SOUT}, s{so} offen offset:{(j//2)*128} {P['OSC'] if (j < 2 or not P['OSC2']) else ''}")
                        VM.issue()
                    return f
                if u < 4:
                    for k in range(2):
                        def mv(b2=2 * u + k):
                            e(f"ds_read_b128 {rng(*acc(b2 % 4, b2 // 4))}, v{vLX} offset:{b2*1024}")
                            xl_tag[("m", b2)] = LG.issue()
                        items.append(mv)
                def dwo(j=j, bt=bt, ts=ts):
                    e(f"ds_write_b128 v{vWA + j % 2}, {rng('v', ts)} offset:{(bt % 4)*2048}"); LG.issue()
                items.append(dwo)
                if j % 2 == 1:
                    for k in range(2):
                        def rb(j=j, bt=bt, k=k):
                            e(f"ds_read_b128 {rng(*rbreg(j, bt, k))}, v{vRA} offset:{(bt % 4)*2048 + k*1024}")
                            xl_tag[("r", j // 2, bt, k)] = LG.issue()
                        items.append(rb)
                    if u in (15, 31): items += [lambda: e("s_nop 0")] * (0 if u == 31 else 6) + [ost(j, bt, 0), ost(j, bt, 1)]
                elif u not in (0, 16): items += [ost(*seq[u - 1], 0), ost(*seq[u - 1], 1)]
            elif last:
                def st(j=j, bt=bt, ts=ts):
                    if P['NOOUT'] == 1 and not (j == 3 and bt == 7): return
                    if P['NOOUT'] == 2:
                        e(f"buffer_store_dwordx4 {rng('v', ts)}, v{vW0 if j < 2 else vW1}, {SWS}, s{sXST + (j%2)*2 + bt//4} offen offset:{(bt%4)*1024}")
                    else: e(f"buffer_store_dwordx4 {rng('v', ts)}, v{vXR}, {SOUT}, s{sXO+bt} offen offset:{j*64} {P['OSC']}")
                    VM.issue()
                    if P["DEEPT"] and j < 2:
                        pool.extend([(acc(2 * j, bt), NM), (acc(2 * j + 1, bt), NM), (("a", x0r(j, bt)), NM)])
                items.append(st)
            else:
                def dw(j=j, bt=bt, ts=ts, l=l):
                    off = j * 32768 + bt * 1024
                    e(f"ds_write_b128 v{vW0 if off < 65536 else vW1}, {rng('v', ts)} offset:{off % 65536}")
                    blk_lg[(l + 1, j)] = LG.issue()
                items.append(dw)
                def xs(j=j, bt=bt, ts=ts, l=l):
                    if P['NOST']: return
                    if P['XOUT']:
                        e(f"s_xor_b32 s{sXST+1}, s{sXST}, {(j*32 + bt)*2048}")
                        e(f"buffer_store_dwordx4 {rng('v', ts)}, v{vL0}, {SOUT}, s{sXST+1} offen {P['SSC']}")
                        st_tag[(l + 1, j)] = VM.issue()
                        return
                    e(f"buffer_store_dwordx4 {rng('v', ts)}, v{vW0 if j < 2 else vW1}, {SWS}, s{sXST + (j%2)*2 + bt//4} offen offset:{(bt%4)*1024} {P['SSC']}")
                    st_tag[(l + 1, j)] = VM.issue()
                items.append(xs)
            ready = max(M(l, 15, j, bt) + 8, prev_ready + (P["OPACE"] if (last and j < 2 and u > 0) else 0))
            if (P["XOUT"] and l >= 1) or (P["SAMEX"] and l == 1): ready = max(ready, gate[(l, (bt // 4) if last else (j // 2))] + 1)
            if last: prev_ready = ready
            dl = min(M(l + 1, 0, j, bt), 32 * RB(l + 1, j)) if not last else NM + 1
            if not last: ready = max(ready, free_at(l + 1, j))
            add_task(ready, dl, items)
    tasks.sort(key=lambda t: (t[0], t[1]))

    def run_items(m, n):
        k = 0
        while k < n and tasks and tasks[0][0] <= m:
            t = tasks[0]
            t[2].pop(0)(); k += 1
            if not t[2]: tasks.pop(0)
        return k
    def flush_deadlines(m):
        lastidx = -1
        for i, t in enumerate(tasks):
            if t[1] <= m: lastidx = i
            if t[0] > m: break
        n = 0
        for _ in range(lastidx + 1):
            t = tasks.pop(0)
            assert t[0] <= m, (t[0], m)
            for f in t[2]: f(); n += 1
        return n

    stall = 0
    CT = {1: {417: 2, 801: 3, 1057: 4, 1441: 5, 2593: 6, 2721: 7, 3105: 8, 3489: 9, 4641: 10, 4769: 11},
          2: {417: 2, 801: 3, 1057: 4, 1313: 5, 1441: 6, 2593: 7, 2977: 8, 3233: 9, 3489: 10, 4641: 11}}.get(P["CTM"])
    for m in range(NM):
        g, r = divmod(m, 32); l, s, rp = ORDER[g]; bt, sub = divmod(r, 4); h, c = divmod(sub, 2)
        ph = s // 2
        npre = 0
        stall += flush_deadlines(m)
        if m % 512 == 0: e(f"L_q{m//512}:")
        cur_m[0] = m
        if P["CTM"] == 0:
            if P["CPF"] and m % 512 == 33: npre += code_touch(m // 512 + P["CPF"]); touch_m.append(m)
        elif m in CT: npre += code_touch(CT[m]); touch_m.append(m)
        if P["STAMPS"] == 1 and m % 512 == 0: stamp()
        if 2 <= P["STAMPS"] < 9 and m % 128 == 0 and P["SG0"] <= m // 128 < P["SG0"] + 12: stamp()
        if P["STAMPS"] == 10 and r == 0 and P["SG0"] <= m // 32 < P["SG0"] + 12: stamp()
        if P["STAMPS"] == 9 and r == 0 and rp == 0 and l == 0 and 1 <= s < 6: stamp()
        if r == 0 and g in BARS:
            vms = []; lgt = None
            for nl in range(3):
                for nph in range(8):
                    if (nl, nph) != (0, 0) and RB(nl, nph) == g:
                        vms.append(half_tag[nph] if (nl == 0 and nph < P["HB"]) else blk_tag.get((nl, nph)))
                        lgt = blk_lg.get((nl, nph))
            for nph in range(P["HB"]):
                if RDG[(0, 2 * nph + 1)][0] == g: vms.append(blk_tag[(0, nph)])
            if g == G12: vms.append(pack_tag[2])
            if g in FLAGBAR: vms.append(st_tag.get(FLAGBAR[g]))
            vms = [t for t in vms if t is not None]
            wait(vm=max(vms) if vms else None, lg=lgt)
            if not P["NOBAR"]: e("s_barrier")
            npre += 2
        for f in pre_ev.get(m, []): npre += f()
        vmt = wtag[g * 4 + 3] if r == 0 else None
        lgt = btag[(1, bt)] if sub == 0 else None
        if r == 0:
            lw = [wlg[f] for f in range(g * 4, g * 4 + 4) if f in wlg]
            if lw: lgt = max(lw + ([lgt] if lgt is not None else []))
        npre += wait(vm=vmt, lg=lgt)
        k, b = acc(2 * rp + h, bt)
        d = rng(k, b)
        e(f"v_mfma_f32_16x16x32_bf16 {d}, {rng(*wslot[g*4 + sub][0])}, {rng('a', bop(l, s, c, bt))}, {'1.0' if (l == 0 and s == 0 and c == 0) else d}")
        npost = 0
        if bt == 7:
            pool.append(wslot[g * 4 + sub])
            npost += wload()
        elif m % P["RAMP"] == 1:
            npost += wload()
        if h == 1 and g < 191 and ORDER[g + 1][:2] != (l, s) and not P['NOJIT']:
            npost += bread(ORDER[g + 1][0], ORDER[g + 1][1], c, bt)
        for f in post_ev.get(m, []): npost += f()
        run_items(m, CAP - npost - npre)
    e("s_nop 7")
    n = 0
    while tasks: n += run_items(NM + 100, 1000)
    sys.stderr.write(f"forced items {stall}, tail items {n}\n")
    if P["STAMPS"]:
        stamp()
        e("s_waitcnt lgkmcnt(0)")
        ns = nstamp[0]
        assert ns <= 16
        for i in range(ns): e(f"v_mov_b32 v{32+i}, s{sSTAMP+2*i}")
        e(f"s_lshl_b32 s{sTMP}, s2, 8"); e(f"s_lshl_b32 s3, s{sW}, 6"); e(f"s_add_u32 s{sTMP}, s{sTMP}, s3")
        for i in range(0, 16, 4):
            e(f"buffer_store_dwordx4 {rng('v', 32+i)}, off, {SWS}, s{sTMP} offset:{i*4}")
    e("s_cmp_lg_u32 s2, 0"); e("s_cbranch_scc1 L_end")
    e(f"s_cmp_lg_u32 s{sW}, 0"); e("s_cbranch_scc1 L_end")
    e(f"v_mov_b32 v{vP}, s{sT}"); e(f"v_mov_b32 v{vP+1}, s{sT+1}"); e("s_mov_b64 exec, 1")
    e(f"s_mov_b32 s{sTMP}, {EPOCH_OFF}")
    e(f"buffer_store_dwordx2 {rng('v', vP, 2)}, off, {SWS}, s{sTMP}")
    e("L_end:")
    e("s_endpgm")
    for val in spins:
        e(f"L_spin{val}:")
        e(f"s_mov_b32 s{sSPIN}, 0x40000")
        e(f"L_spinl{val}:")
        e("s_sleep 1")
        e(f"buffer_load_dwordx2 {rng('v', vP, 2)}, off, {SWS}, s{sPFLAG} sc1")
        e(f"s_sub_u32 s{sSPIN}, s{sSPIN}, 1")
        e("s_waitcnt vmcnt(0)")
        e(f"s_cmp_eq_u32 s{sSPIN}, 0"); e(f"s_cbranch_scc1 L_back{val}")
        flagchk(val, f"L_spinl{val}")
        e(f"s_branch L_back{val}")
    for val in (0, 1):
        e(f"L_wspin{val}:")
        e(f"s_mov_b32 s{sSPIN}, 0x40000")
        e(f"L_wspinl{val}:")
        e("s_sleep 2")
        wpoll0()
        e(f"s_sub_u32 s{sSPIN}, s{sSPIN}, 1")
        e("s_waitcnt vmcnt(0)")
        e(f"s_cmp_eq_u32 s{sSPIN}, 0"); e(f"s_cbranch_scc1 L_wback{val}")
        wflagchk(val, f"L_wspinl{val}")
        e(f"s_branch L_wback{val}")

LAUNCH = "; @launch grid=(256,1,1) block=(256,1,1) lds=163840"
hdr = f"""; DCN-v2 cross network, 3 layers, B=16384, D=1024, bf16.  Generated by dev/gen.py (hand-written generator).
{LAUNCH}
.amdgcn_target "amdgcn-amd-amdhsa--gfx950"
.text"""
main_kernel()
if P['CPF']: e('.fill 4096, 4, 0xBF800000')
def kd(name, vg, ao, sg):
    return f""".p2align 6
.amdhsa_kernel {name}
  .amdhsa_next_free_vgpr {vg}
  .amdhsa_next_free_sgpr {sg}
  .amdhsa_accum_offset {ao}
  .amdhsa_group_segment_fixed_size 0
  .amdhsa_kernarg_size 48
  .amdhsa_user_sgpr_count 2
  .amdhsa_user_sgpr_kernarg_segment_ptr 1
  .amdhsa_system_sgpr_workgroup_id_x 1
.end_amdhsa_kernel
"""
tail = '\n.section .rodata,"a"\n' + kd(KN, 512, 256, 102)
open(out, "w").write(hdr + "\n" + "\n".join(L) + tail)
```

```python
import sys
out = sys.argv[1]
P = dict(CAP=2, DLEAD=2, DSPREAD=32, STAMPS=0, XSC="sc1", SSC="sc1", POLL_M=64, BIAS_S=11, NOSYNC=0, XDSPREAD=24,
         DOFF=2, NODMA=0, NOBAR=0, NOW=0, NOJIT=0, NOST=0, DEEP=1, XCHK=192, STOFF=5, STSPREAD=20, RAMP=4, XSMALL=0, NOOUT=0, XSTR=131072+1024, CPF=2, ONLY=0, RT=0, WSC=1, T3=0, XP=0, OT=0, OSC2=0, XOUT=0, XMASK=31, CA1=1600, CB1=1960, CA2=1470, CB2=1640, SAMEX=0, PORD=0, D4=0, D5=0, CTM=0, XALT=0, OI=0, OPACE=0, DEEPT=0, OSC="", SG0=1, HH=4, TT=4, TL=8, TL2=4, XBA=9, XD0=550, XDS=30, XDL=24, BS0=9,  PTOUCH=0, HB=4, C12=5, B1M=34, B1S=8, UDS=4, U3D=0, U5D=64, U4D=98, B3=262, B3S=24, M12=14,  NSELF=6, FB=0, WCHK=280, WPOLL=64, B2=132, B2S=16, BLK1E=1, U2M=40, U3M=100, U5M=200, U4M=226)
for kv in sys.argv[2:]:
    k, v = kv.split("=")
    P[k] = v.replace("+", " ").replace("none", "") if k in ("XSC", "SSC", "OSC") else int(v)
CAP = P["CAP"]

KN = "standalone__cross_network_dcn__recsys_kernel"
PK = "dcn_pack_kernel"
WP_OFF = 0x100000
FLAG_OFF = 0x800000
X_OFF = P.get("XOFF", 0x1000000)
L = []
def e(s): L.append(s)

class Ctr:
    def __init__(s, name, mx): s.name, s.mx, s.n, s.done = name, mx, 0, 0
    def issue(s):
        s.n += 1
        return s.n - 1
    def need(s, idx):
        if idx is None or idx < s.done: return None
        N = min(s.n - 1 - idx, s.mx)
        s.done = max(s.done, s.n - N)
        return N
cur_m = [0]; touch_m = []
VM = Ctr("vmcnt", 63); LG = Ctr("lgkmcnt", 15)
def wait(vm=None, lg=None):
    a = VM.need(vm); b = LG.need(lg)
    parts = []
    if a is not None: parts.append(f"vmcnt({a})")
    if b is not None:
        parts.append(f"lgkmcnt({b})")
        if touch_m: sys.stderr.write(f"touch at {touch_m[0]}: next lgkm wait after {cur_m[0] - touch_m[0]} (N={b})\n"); touch_m.clear()
    if parts:
        e("s_waitcnt " + " ".join(parts)); return 1
    return 0
def wait_lg_all():
    e("s_waitcnt lgkmcnt(0)"); LG.done = LG.n

vL0, vK, vXR, vW0, vW1, vLX, vB, vP = 0, 1, 5, 6, 7, 8, 9, 10
T = 12
def acc(a, bt):
    if a < 7:
        b = 32 + (a * 8 + bt) * 4
        return ("v", b)
    return ("a", 224 + bt * 4)
def rng(k, b, n=4): return f"{k}[{b}:{b+n-1}]"
def x0r(j, bt): return (j * 8 + bt) * 4
def breg(c, bt): return 96 + (c * 8 + bt) * 4
SX0, SOUT, SWS, SBS, SWR = "s[12:15]", "s[16:19]", "s[20:23]", "s[24:27]", "s[4:7]"
sT, sSELF, sS2 = 8, 10, 11
EPOCH_OFF = 0x810000
sW, sHF, sWOFF, sW2048, sW8192, sMASK, sTMP, sFLAG, sPFLAG, sBOFF, sSPIN, sTMP2 = 28, 29, 30, 31, 32, 33, 34, 35, 36, 37, 38, 39
sXO = 40
sXOWN = 48
sXOTH = 50
sXST = 52
sXLD = 56
sSTAMP = 60
nstamp = [0]
def pstamp():
    if P["STAMPS"] == 9: stamp()
def stamp():
    if P["STAMPS"]:
        e(f"{'s_memrealtime' if P['RT'] else 's_memtime'} s[{sSTAMP+2*nstamp[0]}:{sSTAMP+2*nstamp[0]+1}]"); nstamp[0] += 1
NM = 3 * 2048
ORDER = []
for l in range(3):
    H = P["HH"] if l > 0 else 0
    Tn = P["TT"] if l < 2 else P["TL"]
    T2 = P["TL2"] if l == 2 else 0
    ORDER += [(l, s, rp) for s in range(H) for rp in (0, 1)] + [(l, s, rp) for s in range(H) for rp in (2, 3)]
    ORDER += [(l, s, rp) for s in range(H, 16 - Tn) for rp in range(4)]
    ORDER += [(l, s, rp) for s in range(16 - Tn, 16) for rp in (0, 1)]
    ORDER += [(l, s, rp) for s in range(16 - Tn, 16 - T2) for rp in (2, 3)]
    ORDER += [(l, s, 2) for s in range(16 - T2, 16)] + [(l, s, 3) for s in range(16 - T2, 16)]
assert len(set(ORDER)) == 192
GPOS = {k: i for i, k in enumerate(ORDER)}
SEQ = [(l, s, rp, bt, sub) for (l, s, rp) in ORDER[:192 - 2 * P["T3"]] for bt in range(8) for sub in range(4)]
if P["T3"]:
    assert P["TL2"] == 0 and P["T3"] <= P["TL"]
    SEQ += [(2, s, rp, bt, sub) for hb in range(2) for s in range(16 - P["T3"], 16) for bt in range(4 * hb, 4 * hb + 4) for rp in (2, 3) for sub in range(4)]
assert len(set(SEQ)) == NM
POS = {k: i for i, k in enumerate(SEQ)}
M = lambda l, s, rp=0, bt=0, sub=0: POS[(l, s, rp, bt, sub)]
FU = {}; LU = {}
for m_, (l_, s_, rp_, bt_, sub_) in enumerate(SEQ):
    FU.setdefault(GPOS[(l_, s_, rp_)], m_); LU[GPOS[(l_, s_, rp_)] * 4 + sub_] = m_
BRD = {}; RDG = {}; _last = {}
for m_, (l_, s_, rp_, bt_, sub_) in enumerate(SEQ):
    k_ = (sub_ % 2, bt_)
    if k_ in _last and _last[k_][1] != (l_, s_):
        BRD[_last[k_][0]] = (l_, s_)
        if _last[k_][0] // 32 not in RDG.setdefault((l_, s_), []): RDG[(l_, s_)].append(_last[k_][0] // 32)
    _last[k_] = (m_, (l_, s_))
for v_ in RDG.values(): v_.sort()
def RB(l, ph): return min(RDG[(l, 2 * ph)] + RDG[(l, 2 * ph + 1)])
def LRD(l, ph): return max(RDG.get((l, 2 * ph), [-1]) + RDG[(l, 2 * ph + 1)])
BARS = set(RB(l, ph) for l in range(3) for ph in range(8) if (l, ph) != (0, 0))
BARS |= set(RDG[(0, 2 * ph + 1)][0] for ph in range(P["HB"]))
BARS |= set(64 * l + P["XBA"] for l in (1, 2))
def free_at(l, ph):
    pl, pp = (l, ph - 4) if ph >= 4 else (l - 1, ph + 4)
    if pl < 0: return 0
    return 32 * min(b for b in BARS if b >= LRD(pl, pp) + 2)

CAPS = (4, 6, 12, 14) if P["XALT"] == 3 else (8, 10, 12, 14)
def own0(ph): return ph % 4 >= 2 if P["XALT"] == 3 else ph >= 4
def bop(l, s, c, bt):
    if P['DEEP'] < 2 and l == 0 and c == 0 and s in CAPS[:3]: return x0r(CAPS.index(s), bt)
    return breg(c, bt)

def main_kernel():
    e(f".globl {KN}"); e(".p2align 8"); e(f".type {KN},@function"); e(f"{KN}:")
    e("s_cmp_ge_u32 s2, 256"); e("s_cbranch_scc1 L_end")
    if P["PTOUCH"]:
        e("s_getpc_b64 s[92:93]")
        e("v_lshrrev_b32 v12, 6, v0"); e("s_lshr_b32 s94, s2, 3"); e("v_readfirstlane_b32 s95, v12")
        e("s_and_b32 s94, s94, 15"); e("s_lshl_b32 s94, s94, 2"); e("s_add_u32 s94, s94, s95"); e("s_lshl_b32 s94, s94, 7")
        e("s_add_u32 s92, s92, s94"); e("s_addc_u32 s93, s93, 0")
        e("s_load_dword s98, s[92:93], 0")
    e("s_load_dwordx4 s[4:7], s[0:1], 0")
    e("s_load_dwordx4 s[8:11], s[0:1], 16")
    e("s_load_dwordx4 s[40:43], s[0:1], 32")
    stamp()
    e("v_lshrrev_b32 v12, 6, v0")
    e("v_and_b32 v13, 63, v0")
    e(f"v_readfirstlane_b32 s{sW}, v12")
    e(f"v_lshlrev_b32 v{vL0}, 4, v13")
    for k in range(4): e(f"v_add_u32 v{vK+k}, {k*8192}, v{vL0}")
    e(f"v_lshl_add_u32 v{vW0}, v12, 13, v{vL0}")
    e(f"v_add_u32 v{vW1}, 0x10000, v{vW0}")
    e(f"v_add_u32 v{vLX}, 0x20000, v{vW0}")
    e("v_and_b32 v14, 15, v13"); e("v_lshrrev_b32 v15, 4, v13")
    e(f"v_lshlrev_b32 v{vB}, 4, v15")
    e(f"v_lshl_add_u32 v{vXR}, v14, 11, v{vB}")
    if P["XP"]:
        assert P["OT"] and P["XALT"] == 3
        e("v_lshrrev_b32 v16, 2, v13"); e("v_and_b32 v17, 3, v13"); e("v_xor_b32 v17, v17, v15"); e("v_lshlrev_b32 v17, 4, v17")
        e(f"v_lshl_add_u32 v{vXR}, v16, 11, v17")
        e("v_lshrrev_b32 v16, 2, v14"); e("v_xor_b32 v16, v16, v15"); e("v_lshlrev_b32 v16, 4, v16"); e("v_lshl_add_u32 v16, v14, 6, v16")
        for k in range(4): e(f"v_add_u32 v{vK+k}, {k*8192}, v16")
    e("s_and_b32 s3, s2, 7"); e(f"s_lshr_b32 s{sTMP}, s2, 4"); e(f"s_lshl_b32 s{sTMP}, s{sTMP}, 3"); e(f"s_or_b32 s3, s3, s{sTMP}")
    e(f"s_lshr_b32 s{sHF}, s2, 3"); e(f"s_and_b32 s{sHF}, s{sHF}, 1")
    e(f"s_lshl_b32 s{sW2048}, s{sW}, 11"); e(f"s_lshl_b32 s{sW8192}, s{sW}, 13")
    e(f"s_mov_b32 s{sMASK}, 0xffff0000")
    if P["XP"]: e(f"s_add_u32 s101, s{sW8192}, 0x10000")
    e("s_lshl_b32 s3, s3, 18")
    e(f"s_lshl_b32 s{sTMP2}, s{sHF}, 2"); e(f"s_add_u32 s{sTMP2}, s{sTMP2}, s{sW}")
    e(f"s_lshl_b32 s{sBOFF}, s{sTMP2}, 8")
    e(f"s_lshl_b32 s{sTMP}, s{sW}, 16"); e(f"s_add_u32 s{sTMP}, s{sTMP}, s3")
    e(f"s_lshl_b32 s{sXOWN}, s{sHF}, 10"); e(f"s_xor_b32 s{sXOTH}, s{sXOWN}, 1024")
    e(f"s_add_u32 s{sXOWN}, s{sXOWN}, s{sTMP}"); e(f"s_add_u32 s{sXOTH}, s{sXOTH}, s{sTMP}")
    e(f"s_add_u32 s{sXOWN+1}, s{sXOWN}, 32768"); e(f"s_add_u32 s{sXOTH+1}, s{sXOTH}, 32768")
    e(f"s_mul_i32 s{sWOFF}, s{sTMP2}, {3*8*32768}"); e(f"s_add_u32 s{sWOFF}, s{sWOFF}, {WP_OFF + P['NSELF']*8192}")
    e("s_waitcnt lgkmcnt(0)")
    pstamp()
    for (s, ptr, n) in ((24, 8, 6144), (12, 4, 0x2000000), (20, 42, 0x10000000), (16, 10, 0x2000000), (4, 6, 0x600000)):
        e(f"s_mov_b32 s{s}, s{ptr}"); e(f"s_and_b32 s{s+1}, s{ptr+1}, 0xffff"); e(f"s_mov_b32 s{s+2}, {hex(n)}"); e(f"s_mov_b32 s{s+3}, 0x20000")

    def bias_load(l, j):
        e(f"buffer_load_dwordx4 {rng('v', T+4*j)}, v{vB}, {SBS}, s{sBOFF} offen offset:{(l*2048 + j*64) % 4096}")
        return VM.issue()
    wtag = {}; wslot = {}; wlg = {}
    wok = [0]
    wload_n = [0]
    pool = [(("a", 160 + 4 * i), NM) for i in range(16)]
    if P["DEEP"]:
        for j in ((0, 1, 2) if P["PORD"] else (2, 1, 0)):
            if P["DEEP"] >= 2 and j >= P["DEEP"] - 1: continue
            pool += [(("a", x0r(j, bt)), 32 * RDG[(0, CAPS[j])][0] if P["DEEP"] < 2 else NM) for bt in range(8)]
    def last_use(f): return LU[f]
    def wload():
        f = wload_n[0]
        if f >= wok[0]: return 0
        while pool and pool[0][1] <= last_use(f): pool.pop(0)
        if not pool: return 0
        sl = pool.pop(0)
        wslot[f] = sl
        wload_n[0] += 1
        if P['NOW'] and f >= 16:
            wtag[f] = None; return 0
        k = f % 4
        e(f"buffer_load_dwordx4 {rng(*sl[0])}, v{vL0}, {SWS}, s{sWOFF} offen offset:{k*1024}{' sc1' if P['WSC'] else ''}")
        wtag[f] = VM.issue()
        n = 1
        if k == 3 and f + 1 < 768:
            lin = lambda g: ORDER[g][0] * 64 + ORDER[g][1] * 4 + ORDER[g][2]
            e(f"s_add_u32 s{sWOFF}, s{sWOFF}, {hex(((lin(f // 4 + 1) - lin(f // 4)) * 4096) & 0xffffffff)}"); n += 1
        return n
    def x0_io(ph, ksl):
        if P["XALT"] == 3:
            if own0(ph): return ksl * 256 + ((ph // 4) * 2 + ph % 2) * 64
            return (2 * (ph % 2) + (ksl >> 1)) * 256 + (2 * (ph // 4) + (ksl & 1)) * 64
        if P["XALT"] == 1: return (ph // 2) * 256 + ksl * 64
        if P["XALT"] == 2: return ((ph // 4) * 2 + ph % 2) * 256 + ksl * 64
        return ph * 256 + ksl * 64 if ph < 4 else ksl * 256 + (ph - 4) * 64
    m0own = [None]
    def dma_x0_m0(ph, ksl, i):
        m0own[0] = ("x", ph, ksl, i)
        lo = (ph % 4)*32768 + ksl*8192 + i*1024
        e(f"s_add_u32 m0, s{sW2048}, {lo - x0_io(ph, ksl) if lo >= x0_io(ph, ksl) else lo}")
    def dma_x0_ld(ph, ksl, i):
        assert m0own[0] == ("x", ph, ksl, i)
        so = (sXOWN if own0(ph) else sXOTH) + i
        if P["XALT"] == 1: so = (sXOTH if ph % 2 == 0 else sXOWN) + i
        if P["XALT"] == 2: so = (sXOTH if ph % 4 < 2 else sXOWN) + i
        io = x0_io(ph, ksl)
        if (ph % 4)*32768 + ksl*8192 + i*1024 < io:
            e(f"s_add_u32 s{sS2}, s{so}, {io}"); so = sS2; io = 0
        e(f"buffer_load_dwordx4 v{vXR}, {SX0}, s{so} offen offset:{io} lds")
        return VM.issue()
    blk_tag = {}
    blk_lg = {}
    st_tag = {}

    UB = T + 16
    vSG, vCG, vCT, vFL, vTR, vTR4 = 12, 13, 14, 15, 16, 20
    def code_touch(q):
        if q > 11: return 0
        e(f"s_add_u32 s96, s92, L_q{q}-L_pc"); e("s_addc_u32 s97, s93, 0")
        e("s_load_dword s98, s[96:97], 0")
        return 3
    e(f"s_add_u32 s96, s42, {EPOCH_OFF}"); e("s_addc_u32 s97, s43, 0")
    e(f"s_load_dwordx2 s[{sT}:{sT+1}], s[96:97], 0")
    e("v_mov_b32 v24, v12"); e("v_mov_b32 v25, v13"); e("v_mov_b32 v26, v14"); e("v_mov_b32 v27, v15")
    e("v_lshrrev_b32 v28, 2, v25"); e("v_and_b32 v29, 3, v25")
    e(f"v_lshlrev_b32 v{vCG}, 11, v28"); e(f"v_lshl_add_u32 v{vCG}, v29, 4, v{vCG}")
    e(f"s_lshr_b32 s44, s2, 3"); e("s_and_b32 s45, s2, 7")
    e("s_lshl_b32 s46, s44, 16"); e("s_lshl_b32 s47, s45, 8"); e("s_add_u32 s46, s46, s47")
    e(f"s_lshl_b32 s47, s{sW}, 6"); e("s_add_u32 s100, s46, s47")
    coop_tag = {}
    def coop_dma(l, n):
        m0own[0] = None
        e(f"s_add_u32 m0, s{sW2048}, {(32768 if l == 0 else 131072) + l*8192 + n*1024}")
        e(f"s_add_u32 s{sS2}, s100, {l*0x200000 + n*32768}")
        e(f"buffer_load_dwordx4 v{vCG}, {SWR}, s{sS2} offen lds"); coop_tag[l] = VM.issue()
        return 3
    coop_dma(0, 0); coop_dma(0, 1)
    pstamp()
    e(f"v_lshlrev_b32 v30, 2, v27"); e("v_xor_b32 v30, v30, v26"); e("v_lshlrev_b32 v30, 4, v30")
    e(f"v_lshl_add_u32 v{vSG}, v27, 11, v30")
    e(f"s_xor_b32 s{sSELF}, s{sHF}, 1"); e(f"s_lshl_b32 s{sSELF}, s{sSELF}, 20"); e(f"s_add_u32 s{sSELF}, s{sSELF}, s{sBOFF}")
    REG = {0: 2, 1: 3, 2: 4, 3: 2, 4: 4, 5: 3}
    self_tag = {}; self_lg = {}
    def self_dma1(n, ch):
        m0own[0] = None
        e(f"s_add_u32 m0, s{sW2048}, {REG[n]*32768 + (ch>>1)*8192 + (ch&1)*1024}")
        rb = (n >> 1) * 4 + (n & 1) if P["XALT"] == 3 else n
        e(f"s_add_u32 s{sS2}, s{sSELF}, {rb*65536 + ch*8192}")
        e(f"buffer_load_dwordx4 v{vSG}, {SWR}, s{sS2} offen lds"); self_tag[n] = VM.issue()
        return 3
    def self_dma(n):
        for ch in range(8): self_dma1(n, ch)
    def self_read1(n, a, u):
        j, h = divmod(a, 2)
        f = ((n // 2) * 4 + j) * 4 + 2 * h + n % 2
        w_ = 0
        if a == 0 and u == 0: w_ = wait(vm=self_tag[n])
        if u == 0:
            while pool[0][1] <= last_use(f): pool.pop(0)
            wslot[f] = pool.pop(0)
        k, b = wslot[f][0]
        R = REG[n]
        e(f"ds_read_b64_tr_b16 {rng(k, b+2*u, 2)}, v{(vTR4 if R == 4 else vTR)+j} offset:{(R % 2)*32768 + u*1024 + 8*h}")
        self_lg[n] = wlg[f] = LG.issue(); wtag[f] = None
        return 1 + w_
    half_tag = {}
    def blk_dma(ph, hv):
        for ksl in (2 * hv, 2 * hv + 1):
            for i in range(2):
                dma_x0_m0(ph, ksl, i); e("s_nop 0")
                blk_tag[(0, ph)] = dma_x0_ld(ph, ksl, i)
        if hv == 0: half_tag[ph] = blk_tag[(0, ph)]
    self_dma(0); self_dma(1); blk_dma(0, 0)
    pstamp()
    e("v_bfe_u32 v28, v25, 2, 2")
    e(f"v_lshlrev_b32 v30, 11, v24"); e("v_lshl_add_u32 v30, v29, 4, v30")
    e("v_lshrrev_b32 v31, 1, v27"); e(f"v_lshl_add_u32 v{vCT}, v31, 10, v30")
    e("v_and_b32 v31, 1, v27"); e("v_lshl_add_u32 v31, v31, 3, v28"); e(f"v_lshl_add_u32 v{vCT}, v31, 6, v{vCT}")
    e(f"v_add_u32 v{vCT}, 0x8000, v{vCT}")
    e("v_lshl_add_u32 v30, v27, 13, v30"); e("v_lshl_add_u32 v30, v28, 8, v30"); e("v_add_u32 v30, 0x10000, v30")
    for j in range(4):
        e(f"v_xor_b32 v31, {j}, v28"); e(f"v_lshl_add_u32 v{vTR+j}, v31, 6, v30"); e(f"v_add_u32 v{vTR4+j}, 0x10000, v{vTR+j}")
    e("s_lshr_b32 s40, s44, 2"); e("s_and_b32 s41, s44, 3"); e("s_and_b32 s42, s45, 4")
    e("s_xor_b32 s42, s40, s42")
    e("s_and_b32 s43, s42, 3")
    e("s_and_b32 s46, s45, 3"); e("s_xor_b32 s46, s43, s46")
    e("s_and_b32 s47, s42, 4"); e("s_or_b32 s47, s47, s41")
    def dcalc(d, ph, ka):
        e(f"s_lshl_b32 s{d}, s{ph}, 15")
        e(f"s_lshr_b32 s{sTMP}, s{ka}, 1"); e(f"s_lshl_b32 s{sTMP}, s{sTMP}, 14"); e(f"s_add_u32 s{d}, s{d}, s{sTMP}")
        e(f"s_and_b32 s{sTMP}, s{ka}, 1"); e(f"s_lshl_b32 s{sTMP}, s{sTMP}, 10"); e(f"s_add_u32 s{d}, s{d}, s{sTMP}")
    dcalc(57, 47, 46)
    if P["XALT"] == 3:
        e("s_and_b32 s47, s41, 1"); e("s_and_b32 s40, s43, 1"); e("s_lshl_b32 s40, s40, 1"); e("s_or_b32 s40, s40, s47")
        e("s_or_b32 s47, s47, 2"); e("s_lshr_b32 s43, s43, 1")
        e("s_cmp_lt_u32 s42, 4")
        e("s_cselect_b32 s47, s47, s43"); e("s_cselect_b32 s46, s46, s40")
        e("s_lshr_b32 s40, s41, 1"); e("s_lshl_b32 s40, s40, 2"); e("s_or_b32 s47, s47, s40")
    else:
        e("s_xor_b32 s47, s47, 4")
        e("s_cmp_lt_u32 s42, 4")
        e("s_cselect_b32 s47, s47, s43"); e("s_cselect_b32 s46, s46, s41")
    dcalc(58, 47, 46)
    e(f"s_mul_i32 s40, s45, {3*262144}"); e(f"s_lshl_b32 s41, s{sW}, 12"); e("s_add_u32 s40, s40, s41"); e(f"s_add_u32 s40, s40, {WP_OFF}")
    e("s_add_u32 s57, s40, s57"); e("s_add_u32 s58, s40, s58")
    e("s_add_u32 s57, s57, 262144"); e("s_add_u32 s99, s57, 262144")
    CD = {0: 58, 1: 57, 2: 99}
    e("s_getpc_b64 s[92:93]")
    e("L_pc:")
    e(f"s_lshr_b32 s94, s2, 3"); e(f"s_lshl_b32 s94, s94, 2"); e(f"s_add_u32 s94, s94, s{sW}")
    e(f"s_lshl_b32 s94, s94, 7")
    e("s_add_u32 s92, s92, s94"); e("s_addc_u32 s93, s93, 0")
    for q in range(P["CPF"]): code_touch(q)
    e(f"s_xor_b32 s{sPFLAG}, s2, 8")
    e(f"s_mul_i32 s{sXST}, s2, {P['XSTR']}"); e(f"s_add_u32 s{sXST}, s{sXST}, {X_OFF}")
    e(f"s_mul_i32 s{sXLD}, s{sPFLAG}, {P['XSTR']}"); e(f"s_add_u32 s{sXLD}, s{sXLD}, {X_OFF}")
    e(f"s_add_u32 s{sXLD}, s{sXLD}, s{sW8192}")
    for k in range(1, 4): e(f"s_add_u32 s{sXST+k}, s{sXST}, {(k//2)*32768 + (k%2)*4096}")
    if P["XOUT"]:
        e(f"s_lshr_b32 s{sXST}, s3, 7"); e(f"s_and_b32 s{sXST}, s{sXST}, {P['XMASK'] << 11}")
        e(f"s_lshl_b32 s{sXLD}, s{sW}, 14"); e(f"s_xor_b32 s{sXST}, s{sXST}, s{sXLD}")
        e(f"s_lshl_b32 s{sXLD}, s{sHF}, 10"); e(f"s_or_b32 s{sXST}, s{sXST}, s{sXLD}"); e(f"s_or_b32 s{sXST}, s{sXST}, s3")
        e(f"s_xor_b32 s{sXLD}, s{sXST}, 1024")
    e(f"s_lshl_b32 s{sFLAG}, s2, 7"); e(f"s_add_u32 s{sFLAG}, s{sFLAG}, {FLAG_OFF}")
    e(f"s_xor_b32 s{sPFLAG}, s{sFLAG}, {8*128}")
    e(f"s_lshr_b32 s59, s{sBOFF}, 1"); e(f"s_add_u32 s59, s59, {FLAG_OFF}")
    stamp()
    ct = {}; pack_tag = {}
    def creg(l, h): return ('a', 96 + h * 4) if l == 0 else ('v', 16 + ((l - 1) * 2 + h) * 4)
    def coop_read(l, h, u):
        w_ = wait(vm=coop_tag[l])
        k, b = creg(l, h)
        e(f"ds_read_b64_tr_b16 {rng(k, b + 2*u, 2)}, v{vCT} offset:{l*8192 + u*256 + h*8}")
        ct[(l, h)] = LG.issue(); return 1 + w_
    def coop_store(l, h):
        w_ = wait(lg=ct[(l, h)])
        e(f"buffer_store_dwordx4 {rng(*creg(l, h))}, v{vL0}, {SWS}, s{CD[l]} offen offset:{h*2048} sc1")
        pack_tag[l] = VM.issue(); return 1 + w_
    wait(vm=coop_tag[0])
    pstamp()
    for h in range(2):
        for u in range(2): coop_read(0, h, u)
    for h in range(2): coop_store(0, h)
    e(f"v_add_u32 v{vCT}, 0x18000, v{vCT}")
    blk_dma(0, 1); self_dma(2)
    pstamp()
    wait_lg_all()
    e(f"s_add_u32 s{sT}, s{sT}, 16"); e(f"s_addc_u32 s{sT+1}, s{sT+1}, 0")
    e(f"s_and_b32 s{sT}, s{sT}, -16"); e(f"s_and_b32 s{sT+1}, s{sT+1}, 0x7fffffff")
    e(f"s_add_u32 s{sXO}, s3, s{sBOFF}")
    for bt in range(1, 8): e(f"s_add_u32 s{sXO+bt}, s{sXO}, {bt*32768}")
    pstamp()
    for n in (0, 1):
        for a in range(8):
            for u in range(2): self_read1(n, a, u)
    pstamp()
    wait(vm=half_tag[0] if P["HB"] else blk_tag[(0, 0)])
    if P["FB"] == 0: wait(vm=pack_tag[0])
    e("s_barrier")
    stamp()
    def setflag(val):
        e(f"s_cmp_lg_u32 s{sW}, 0"); e(f"s_cbranch_scc1 L_nf{val}")
        e(f"s_add_u32 s{sTMP}, s{sT}, {val}")
        e(f"v_mov_b32 v{vP}, s{sTMP}"); e(f"v_mov_b32 v{vP+1}, s{sT+1}"); e("s_mov_b64 exec, 1")
        e(f"buffer_store_dwordx2 {rng('v', vP, 2)}, off, {SWS}, s{sFLAG} sc1")
        e("s_mov_b64 exec, -1")
        e(f"L_nf{val}:")
        return 2
    if P["FB"] == 0: setflag(0)
    wload_n[0] = 8 * P["NSELF"]
    btag = {}
    kst = {k: (0, 0) for k in range(4)}
    capt = set()
    def bread(l, s, c, bt):
        kap = (s % 2) * 2 + c
        if bop(l, s, c, bt) < 96:
            if (s, bt) in capt: return 0
            capt.add((s, bt))
        n = 1
        want = (0 if (l == 0 and not own0(s // 2)) else 1, (s // 4) % 2)
        if kst[kap] != want and P["XP"] and l == 0:
            assert kst[kap] == (1 - want[0], 1 - want[1])
            e(f"v_xor_b32 v{vK+kap}, s101, v{vK+kap}"); kst[kap] = want; n += 1
        elif kst[kap] != want:
            e(f"v_xor_b32 v{vK+kap}, {hex(kap*8192 + want[1]*65536)}, v{vW0 if want[0] else vL0}"); kst[kap] = want; n += 1
        off = ((s // 2) % 2) * 32768 + bt * 1024
        e(f"ds_read_b128 {rng('a', bop(l, s, c, bt))}, v{vK+kap} offset:{off}")
        btag[(c, bt)] = LG.issue()
        return n
    for bt in range(8):
        for c in range(2): bread(0, 0, c, bt)

    tasks = []
    def add_task(ready, deadline, items): tasks.append([ready, deadline, list(items)])
    pre_ev = {}; post_ev = {}
    def at_pre(m, f): pre_ev.setdefault(m, []).append(f)
    def at_post(m, f): post_ev.setdefault(m, []).append(f)

    def sched_dma(l, ph, m0, spread):
        if P['NODMA']: return
        assert m0 >= free_at(l, ph), (l, ph, m0, free_at(l, ph))
        assert m0 + 7 * spread < 32 * RB(l, ph), (l, ph)
        sys.stderr.write(f"dma ({l},{ph}) {m0 % 2048}..{(m0 + 7 * spread) % 2048} free {free_at(l, ph) % 2048} need {32 * RB(l, ph) % 2048}\n")
        if l == 0:
            seq = [(j, i) for j in range(4) for i in range(2)]
            for n, (j, i) in enumerate(seq):
                m = m0 + n * spread
                at_pre(m, lambda j=j, i=i: (dma_x0_m0(ph, j, i), 1)[1])
                def ld(j=j, i=i):
                    blk_tag[(l, ph)] = dma_x0_ld(ph, j, i)
                    if (j, i) == (1, 1): half_tag[ph] = blk_tag[(l, ph)]
                    return 1
                at_post(m, ld)
        else:
            j = ph % 4
            for n in range(8):
                m = m0 + n * spread
                if P["XOUT"]:
                    def setm1(n=n):
                        m0own[0] = ("e", l, ph, n)
                        e(f"s_add_u32 m0, s{sW8192}, {j*32768 + n*1024}")
                        e(f"s_xor_b32 s{sTMP2}, s{sXLD}, {(j*32 + n)*2048}")
                        return 2
                    at_pre(m, setm1)
                    def ld1(n=n):
                        assert m0own[0] == ("e", l, ph, n)
                        e(f"buffer_load_dwordx4 v{vL0}, {SOUT}, s{sTMP2} offen {P['XSC']} lds")
                        blk_tag[(l, ph)] = VM.issue(); return 1
                    at_post(m, ld1)
                    continue
                if n % 4 == 0:
                    def setm(n=n):
                        m0own[0] = ("e", l, ph, n // 4)
                        e(f"s_add_u32 m0, s{sW8192}, {j*32768 + (n//4)*4096}")
                        if P['XSMALL'] == 2: e(f"s_add_u32 s{sTMP2}, s{sXLD}, {(j%2)*32768 + (n//4)*4096}")
                        else: e(f"s_add_u32 s{sTMP2}, s{sXLD}, {(0 if P['SAMEX'] else (l-1)*256*P['XSTR']) + j*32768 + (n//4)*4096}")
                        return 2
                    at_pre(m, setm)
                def ld(n=n):
                    assert m0own[0] == ("e", l, ph, n // 4)
                    e(f"buffer_load_dwordx4 v{vL0}, {SWS}, s{sTMP2} offen offset:{(n%4)*1024} {P['XSC']} lds")
                    blk_tag[(l, ph)] = VM.issue(); return 1
                at_post(m, ld)
    sched_dma(0, 1, P["B1M"], P["B1S"])
    def sched_sdma(n, prev, m0):
        at_post(m0, lambda: wait(lg=self_lg[prev]))
        for ch in range(8): at_post(m0 + P["UDS"] * ch, lambda ch=ch: self_dma1(n, ch))
    sched_sdma(3, 0, P["U3D"])
    if P["NSELF"] > 4:
        sched_sdma(5, 1, P["U5D"]); sched_sdma(4, 2, P["U4D"])
        assert P["U2M"] + 16 < P["U4D"]
    mc = M(0, P["C12"]) + 10
    at_post(mc, lambda: wait(lg=self_lg[4 if P["NSELF"] > 4 else 2]))
    for i, (l, n) in enumerate([(1, 0), (1, 1), (2, 0), (2, 1)]): at_post(mc + 16 * i, lambda l=l, n=n: coop_dma(l, n))
    for i, (l, h, u) in enumerate([(l, h, u) for l in (1, 2) for h in range(2) for u in range(2)]):
        at_post(mc + 224 + 2 * i, lambda l=l, h=h, u=u: coop_read(l, h, u))
    for i, (l, h) in enumerate([(l, h) for l in (1, 2) for h in range(2)]): at_post(mc + 250 + 16 * i, lambda l=l, h=h: coop_store(l, h))
    PH12 = P["C12"] // 2 + 2
    G12 = RB(0, PH12 + 1)
    assert mc + 250 + 48 + 100 < 32 * G12
    at_post(32 * G12, lambda: setflag(1))
    for ph in range(P["DLEAD"], 8):
        if ph == 2:
            at_pre(P["B2"], lambda: wait(lg=self_lg[3]))
            sched_dma(0, ph, P["B2"], P["B2S"])
        elif ph == 3 and P["NSELF"] > 4:
            at_pre(P["B3"], lambda: wait(lg=self_lg[5]))
            sched_dma(0, ph, P["B3"], P["B3S"])
        elif ph == 4 and P["D4"]: sched_dma(0, ph, P["D4"], (P["D5"] - P["D4"]) // 8)
        elif ph == 5 and P["D5"]: sched_dma(0, ph, P["D5"], P["DSPREAD"])
        else: sched_dma(0, ph, M(0, 2 * (ph - P["DLEAD"])) + P["DOFF"], P["DSPREAD"])
    def sched_self(n, m0):
        for a in range(8):
            for u in range(2): at_post(m0 + 2 * a + u, lambda a=a, u=u: self_read1(n, a, u))
    sched_self(2, P["U2M"]); sched_self(3, P["U3M"])
    if P["NSELF"] > 4:
        sched_self(5, P["U5M"]); sched_self(4, P["U4M"])
        assert P["U5M"] + 16 < P["B3"]
    assert P["U3M"] + 16 < P["B2"]
    if P["FB"]:
        def fbar():
            wait(vm=pack_tag[0]); e("s_barrier"); return 2 + setflag(0)
        at_pre(P["FB"], fbar)
    wp = [None]
    def wpoll0():
        e(f"v_and_b32 v{vP}, 0x1f0, v{vL0}"); e(f"v_lshlrev_b32 v{vP}, 6, v{vP}")
        e(f"buffer_load_dwordx2 {rng('v', vP, 2)}, v{vP}, {SWS}, s59 offen sc1")
    def wpoll():
        wpoll0(); wp[0] = VM.issue(); return 3
    def wflagchk(val, lab):
        e(f"s_add_u32 s{sTMP}, s{sT}, {val}")
        e(f"v_subrev_u32 v{vP}, s{sTMP}, v{vP}"); e(f"v_xor_b32 v{vP+1}, s{sT+1}, v{vP+1}"); e("s_nop 0")
        e(f"v_cmp_gt_u64 vcc, {16-val}, {rng('v', vP, 2)}"); e("s_nop 3")
        e("s_cmp_lg_u64 vcc, -1"); e(f"s_cbranch_scc1 {lab}")
    def wchk(val):
        wait(vm=wp[0])
        wflagchk(val, f"L_wspin{val}")
        e(f"L_wback{val}:")
        wok[0] = 256 if val == 0 else 768
        return 8
    m12 = P["M12"] * 128 + 48
    for val, mm in ((0, P["WCHK"]), (1, m12)):
        at_post(mm - P["WPOLL"], wpoll)
        at_post(mm, lambda val=val: wchk(val))
    x0l_lg = [None]
    for bt in range(8):
        def wr(bt=bt):
            e(f"ds_write_b128 v{vLX}, {rng('a', breg(0, bt))} offset:{bt*1024}")
            x0l_lg[0] = LG.issue(); return 1
        at_post(M(0, 14, 0, bt) + 5, wr)
    ptag = {}
    def flagchk(val, lab):
        e(f"v_readfirstlane_b32 s{sTMP}, v{vP}"); e(f"v_readfirstlane_b32 s{sS2}, v{vP+1}")
        e(f"s_xor_b32 s{sTMP}, s{sTMP}, s{sT}"); e(f"s_sub_u32 s{sTMP}, s{sTMP}, {val}")
        e(f"s_cmp_lg_u32 s{sS2}, s{sT+1}"); e(f"s_cbranch_scc1 {lab}")
        e(f"s_cmp_gt_u32 s{sTMP}, {15-val}"); e(f"s_cbranch_scc1 {lab}")
    spins = []
    FLAGBAR = {}
    busy = []
    def add_poll(val, mchk):
        def poll():
            e(f"buffer_load_dwordx2 {rng('v', vP, 2)}, off, {SWS}, s{sPFLAG} sc1")
            ptag[val] = VM.issue(); return 1
        busy.append((mchk - P["POLL_M"], mchk))
        at_post(mchk - P["POLL_M"], poll)
        def chk():
            wait(vm=ptag[val])
            flagchk(val, f"L_spin{val}")
            e(f"L_back{val}:")
            return 8
        at_post(mchk, chk)
        spins.append(val)
    FV = 4 if (P["XOUT"] or P["SAMEX"]) else 2
    gate = {}
    if P["XOUT"] or P["SAMEX"]:
        for l in ((1, 2) if P["XOUT"] else (1,)):
            for hb in range(2):
                val = 4 * l + hb
                gb = RB(l, 5 + 2 * hb)
                at_post(32 * gb, lambda val=val: setflag(val)); busy.append((32 * gb, 32 * gb))
                gate[(l, hb)] = 2048 * l + P[("CA", "CB")[hb] + str(l)]
                add_poll(val, gate[(l, hb)])
    for l in (1, 2):
        sp = P["XDS"] if l == 1 else P["XDL"]
        mm = 2048 * l + P["XD0"]
        for hb in range(2):
            val = FV * (l - 1) + hb + 2
            gb = 64 * l + P["XBA"] if hb == 0 else RB(l, 2)
            FLAGBAR[gb] = (l, 2 * hb + 1)
            mchk = max(mm, free_at(l, 4 + 2 * hb)) + 2
            if not P["NOSYNC"]:
                at_post(32 * gb, lambda val=val: setflag(val)); busy.append((32 * gb, 32 * gb))
                add_poll(val, mchk)
            mm = mchk + 1
            for jj in (2 * hb, 2 * hb + 1):
                mm = max(mm, free_at(l, 4 + jj) + 1)
                sched_dma(l, 4 + jj, mm, sp)
                mm += 8 * sp
        busy.sort()
        for x, y in zip(busy, busy[1:]): assert x[1] < y[0], (x, y)
        if l == 1 and not P['SAMEX'] and not P['XOUT']:
            def bump():
                for k in range(4): e(f"s_add_u32 s{sXST+k}, s{sXST+k}, {256*P['XSTR']}")
                return 4
            at_post(M(1, 9, 1), bump)
    for l in (0, 1, 2):
        bt_tags = {}
        Tn = P["TT"] if l < 2 else P["TL"]
        for j in range(4):
            sb = (P["BS0"] if l == 0 else P["HH"] - 1) if j < 2 else 15 - Tn
            rdy = M(l, sb, j) + 36
            if l > 0 and j < 2: rdy = max(rdy, M(l, 0, 3) + 32 + 100)
            def ld(j=j, l=l):
                if l == 2 and j == 0: e(f"s_add_u32 s{sBOFF}, s{sBOFF}, 4096")
                bt_tags[j] = bias_load(l, j); return 1
            at_post((rdy - 96 if j % 2 == 0 else prev_ld + 4), ld)
            prev_ld = rdy - 96
            items = []
            for h in range(2):
                def first(j=j, h=h): wait(vm=bt_tags[j]); e(f"v_lshlrev_b32 v{UB}, 16, v{T+4*j+2*h}")
                items.append(first)
                items.append(lambda j=j, h=h: e(f"v_and_b32 v{UB+1}, s{sMASK}, v{T+4*j+2*h}"))
                items.append(lambda j=j, h=h: e(f"v_lshlrev_b32 v{UB+2}, 16, v{T+4*j+2*h+1}"))
                items.append(lambda j=j, h=h: e(f"v_and_b32 v{UB+3}, s{sMASK}, v{T+4*j+2*h+1}"))
                for bt in range(8):
                    k, b = acc(2 * j + h, bt)
                    if k == "v":
                        for r in range(4):
                            items.append(lambda b=b, r=r: e(f"v_add_f32 v{b+r}, v{b+r}, v{UB+r}"))
                    else:
                        for r in range(4): items.append(lambda b=b, r=r: e(f"v_accvgpr_read_b32 v{T+r}, a{b+r}"))
                        for r in range(4): items.append(lambda r=r: e(f"v_add_f32 v{T+r}, v{T+r}, v{UB+r}"))
                        for r in range(4): items.append(lambda b=b, r=r: e(f"v_accvgpr_write_b32 a{b+r}, v{T+r}"))
            dlb = M(l, sb + 1, j) - 1
            if j >= 2: dlb = min(dlb, M(l, 15, 0) + 7)
            add_task(rdy, dlb, items)
    xl_tag = {}
    U = T + 12; A = T + 16
    for l in range(3):
        last = l == 2
        seq = [divmod(u, 8) for u in range(32)]
        if last and P["OI"] >= 1: seq[:16] = [(u % 2, u // 2) for u in range(16)]
        if last and P["OI"] >= 2: seq[16:] = [(2 + u % 2, u // 2) for u in range(16)]
        prev_ready = 0
        for u in range(32):
            j, bt = seq[u]
            ot = last and P["OT"]
            ts = T + 4 * (u % (2 if ot else 3))
            items = []
            vWA, vRA, vGA = T + 8, T + 10, T + 11
            if ot:
                assert P["OI"] == 2
                if u == 0:
                    for ins in (f"v_lshrrev_b32 v{U}, 7, v{vL0}", f"v_lshlrev_b32 v{U+1}, 4, v{U}", f"v_xor_b32 v{vRA}, v{U+1}, v{vLX}",
                                f"v_and_b32 v{U+1}, 0x70, v{vL0}", f"v_lshl_add_u32 v{vGA}, v{U}, 11, v{U+1}",
                                f"v_lshrrev_b32 v{U}, 4, v{vL0}", f"v_and_b32 v{U}, 0x30, v{U}", f"v_xor_b32 v{U}, v{U}, v{U+1}",
                                f"v_and_b32 v{U+1}, 0xf0, v{vL0}", f"v_lshl_add_u32 v{U}, v{U+1}, 3, v{U}",
                                f"v_sub_u32 v{U+1}, v{vLX}, v{vL0}", f"v_add_u32 v{vWA}, v{U}, v{U+1}", f"v_xor_b32 v{vWA+1}, 64, v{vWA}"):
                        items.append(lambda ins=ins: e(ins))
            xsrc = acc(bt % 4, bt // 4)[1] if (ot and j == 3) else ts
            def xl_prefetch(uu, seq=seq):
                def f():
                    wait(lg=x0l_lg[0])
                    e(f"ds_read_b128 {rng('v', T + 4*(uu % 3))}, v{vLX} offset:{seq[uu][1]*1024}")
                    xl_tag[uu] = LG.issue()
                return f
            if j < 3:
                for d in range(4): items.append(lambda d=d, j=j, bt=bt, ts=ts: e(f"v_accvgpr_read_b32 v{ts+d}, a{x0r(j, bt)+d}"))
            for h in range(2):
                k, b = acc(2 * j + h, bt)
                def first(h=h, ts=xsrc, u=u, j=j, ot=ot, bt=bt):
                    if j == 3: wait(lg=xl_tag[("m", bt) if ot else u])
                    e(f"v_lshlrev_b32 v{U}, 16, v{ts+2*h}")
                items.append(first)
                items.append(lambda h=h, ts=xsrc: e(f"v_and_b32 v{U+1}, s{sMASK}, v{ts+2*h}"))
                items.append(lambda h=h, ts=xsrc: e(f"v_lshlrev_b32 v{U+2}, 16, v{ts+2*h+1}"))
                items.append(lambda h=h, ts=xsrc: e(f"v_and_b32 v{U+3}, s{sMASK}, v{ts+2*h+1}"))
                if h == 0 and u + 2 < 32 and seq[u + 2][0] == 3 and not ot: items.append(xl_prefetch(u + 2))
                for r in range(4):
                    if k == "v":
                        items.append(lambda b=b, r=r: e(f"v_mul_f32 v{U+r}, v{U+r}, v{b+r}"))
                    else:
                        items.append(lambda b=b, r=r: e(f"v_accvgpr_read_b32 v{A+r}, a{b+r}"))
                        items.append(lambda r=r: e(f"v_mul_f32 v{U+r}, v{U+r}, v{A+r}"))
                items.append(lambda h=h, ts=ts: e(f"v_cvt_pk_bf16_f32 v{ts+2*h}, v{U}, v{U+1}"))
                items.append(lambda h=h, ts=ts: e(f"v_cvt_pk_bf16_f32 v{ts+2*h+1}, v{U+2}, v{U+3}"))
            if ot:
                def rbreg(j, bt, k): return ("a", x0r(k, bt)) if j < 2 else acc(4 + k, bt)
                def ost(j, bt, k):
                    def f():
                        wait(lg=xl_tag[("r", j // 2, bt, k)])
                        so = sXO + bt
                        if k: e(f"s_add_u32 s{sXST+2}, s{so}, 16384"); so = sXST + 2
                        e(f"buffer_store_dwordx4 {rng(*rbreg(j, bt, k))}, v{vGA}, {SOUT}, s{so} offen offset:{(j//2)*128} {P['OSC'] if (j < 2 or not P['OSC2']) else ''}")
                        VM.issue()
                        if P["DEEPT"] and j < 2: pool.append((rbreg(j, bt, k), NM))
                    return f
                if u < 4:
                    for k in range(2):
                        def mv(b2=2 * u + k):
                            e(f"ds_read_b128 {rng(*acc(b2 % 4, b2 // 4))}, v{vLX} offset:{b2*1024}")
                            xl_tag[("m", b2)] = LG.issue()
                        items.append(mv)
                def dwo(j=j, bt=bt, ts=ts):
                    e(f"ds_write_b128 v{vWA + j % 2}, {rng('v', ts)} offset:{(bt % 4)*2048}"); LG.issue()
                    if P["DEEPT"] and j < 2 and bt >= 2: pool.extend([(acc(2 * j, bt), NM), (acc(2 * j + 1, bt), NM)])
                items.append(dwo)
                if j % 2 == 1:
                    for k in range(2):
                        def rb(j=j, bt=bt, k=k):
                            e(f"ds_read_b128 {rng(*rbreg(j, bt, k))}, v{vRA} offset:{(bt % 4)*2048 + k*1024}")
                            xl_tag[("r", j // 2, bt, k)] = LG.issue()
                        items.append(rb)
                    if u in (15, 31): items += [lambda: e("s_nop 0")] * (0 if u == 31 else 6) + [ost(j, bt, 0), ost(j, bt, 1)]
                elif u not in (0, 16): items += [ost(*seq[u - 1], 0), ost(*seq[u - 1], 1)]
            elif last:
                def st(j=j, bt=bt, ts=ts):
                    if P['NOOUT'] == 1 and not (j == 3 and bt == 7): return
                    if P['NOOUT'] == 2:
                        e(f"buffer_store_dwordx4 {rng('v', ts)}, v{vW0 if j < 2 else vW1}, {SWS}, s{sXST + (j%2)*2 + bt//4} offen offset:{(bt%4)*1024}")
                    else: e(f"buffer_store_dwordx4 {rng('v', ts)}, v{vXR}, {SOUT}, s{sXO+bt} offen offset:{j*64} {P['OSC']}")
                    VM.issue()
                    if P["DEEPT"] and j < 2:
                        pool.extend([(acc(2 * j, bt), NM), (acc(2 * j + 1, bt), NM), (("a", x0r(j, bt)), NM)])
                items.append(st)
            else:
                def dw(j=j, bt=bt, ts=ts, l=l):
                    off = j * 32768 + bt * 1024
                    e(f"ds_write_b128 v{vW0 if off < 65536 else vW1}, {rng('v', ts)} offset:{off % 65536}")
                    blk_lg[(l + 1, j)] = LG.issue()
                items.append(dw)
                def xs(j=j, bt=bt, ts=ts, l=l):
                    if P['NOST']: return
                    if P['XOUT']:
                        e(f"s_xor_b32 s{sXST+1}, s{sXST}, {(j*32 + bt)*2048}")
                        e(f"buffer_store_dwordx4 {rng('v', ts)}, v{vL0}, {SOUT}, s{sXST+1} offen {P['SSC']}")
                        st_tag[(l + 1, j)] = VM.issue()
                        return
                    e(f"buffer_store_dwordx4 {rng('v', ts)}, v{vW0 if j < 2 else vW1}, {SWS}, s{sXST + (j%2)*2 + bt//4} offen offset:{(bt%4)*1024} {P['SSC']}")
                    st_tag[(l + 1, j)] = VM.issue()
                items.append(xs)
            ready = max(M(l, 15, j, bt) + 8, prev_ready + (P["OPACE"] if (last and j < 2 and u > 0) else 0))
            if (P["XOUT"] and l >= 1) or (P["SAMEX"] and l == 1): ready = max(ready, gate[(l, (bt // 4) if last else (j // 2))] + 1)
            if last: prev_ready = ready
            dl = min(M(l + 1, 0, j, bt), 32 * RB(l + 1, j)) if not last else NM + 1
            if not last: ready = max(ready, free_at(l + 1, j))
            add_task(ready, dl, items)
    tasks.sort(key=lambda t: (t[0], t[1]))

    def run_items(m, n):
        k = 0
        while k < n and tasks and tasks[0][0] <= m:
            t = tasks[0]
            t[2].pop(0)(); k += 1
            if not t[2]: tasks.pop(0)
        return k
    def flush_deadlines(m):
        lastidx = -1
        for i, t in enumerate(tasks):
            if t[1] <= m: lastidx = i
            if t[0] > m: break
        n = 0
        for _ in range(lastidx + 1):
            t = tasks.pop(0)
            assert t[0] <= m, (t[0], m)
            for f in t[2]: f(); n += 1
        return n

    stall = 0
    CT = {1: {417: 2, 801: 3, 1057: 4, 1441: 5, 2593: 6, 2721: 7, 3105: 8, 3489: 9, 4641: 10, 4769: 11},
          2: {417: 2, 801: 3, 1057: 4, 1313: 5, 1441: 6, 2593: 7, 2977: 8, 3233: 9, 3489: 10, 4641: 11}}.get(P["CTM"])
    for m in range(NM):
        g, r = divmod(m, 32); l, s, rp, bt, sub = SEQ[m]; h, c = divmod(sub, 2); wg = GPOS[(l, s, rp)]
        ph = s // 2
        npre = 0
        stall += flush_deadlines(m)
        if m % 512 == 0: e(f"L_q{m//512}:")
        cur_m[0] = m
        if P["CTM"] == 0:
            if P["CPF"] and m % 512 == 33: npre += code_touch(m // 512 + P["CPF"]); touch_m.append(m)
        elif m in CT: npre += code_touch(CT[m]); touch_m.append(m)
        if P["STAMPS"] == 1 and m % 512 == 0: stamp()
        if 2 <= P["STAMPS"] < 9 and m % 128 == 0 and P["SG0"] <= m // 128 < P["SG0"] + 12: stamp()
        if P["STAMPS"] == 10 and r == 0 and P["SG0"] <= m // 32 < P["SG0"] + 12: stamp()
        if P["STAMPS"] == 9 and r == 0 and rp == 0 and l == 0 and 1 <= s < 6: stamp()
        if r == 0 and g in BARS:
            vms = []; lgt = None
            for nl in range(3):
                for nph in range(8):
                    if (nl, nph) != (0, 0) and RB(nl, nph) == g:
                        vms.append(half_tag[nph] if (nl == 0 and nph < P["HB"]) else blk_tag.get((nl, nph)))
                        lgt = blk_lg.get((nl, nph))
            for nph in range(P["HB"]):
                if RDG[(0, 2 * nph + 1)][0] == g: vms.append(blk_tag[(0, nph)])
            if g == G12: vms.append(pack_tag[2])
            if g in FLAGBAR: vms.append(st_tag.get(FLAGBAR[g]))
            vms = [t for t in vms if t is not None]
            wait(vm=max(vms) if vms else None, lg=lgt)
            if not P["NOBAR"]: e("s_barrier")
            npre += 2
        for f in pre_ev.get(m, []): npre += f()
        vmt = wtag[wg * 4 + 3] if FU[wg] == m else None
        lgt = btag[(1, bt)] if sub == 0 else None
        if FU[wg] == m:
            lw = [wlg[f] for f in range(wg * 4, wg * 4 + 4) if f in wlg]
            if lw: lgt = max(lw + ([lgt] if lgt is not None else []))
        npre += wait(vm=vmt, lg=lgt)
        k, b = acc(2 * rp + h, bt)
        d = rng(k, b)
        e(f"v_mfma_f32_16x16x32_bf16 {d}, {rng(*wslot[wg*4 + sub][0])}, {rng('a', bop(l, s, c, bt))}, {'1.0' if (l == 0 and s == 0 and c == 0) else d}")
        npost = 0
        if LU[wg * 4 + sub] == m:
            pool.append(wslot[wg * 4 + sub])
            npost += wload()
        elif m % P["RAMP"] == 1:
            npost += wload()
        if m in BRD and not P['NOJIT']:
            npost += bread(BRD[m][0], BRD[m][1], c, bt)
        for f in post_ev.get(m, []): npost += f()
        run_items(m, CAP - npost - npre)
    e("s_nop 7")
    n = 0
    while tasks: n += run_items(NM + 100, 1000)
    sys.stderr.write(f"forced items {stall}, tail items {n}\n")
    if P["STAMPS"]:
        stamp()
        e("s_waitcnt lgkmcnt(0)")
        ns = nstamp[0]
        assert ns <= 16
        for i in range(ns): e(f"v_mov_b32 v{32+i}, s{sSTAMP+2*i}")
        e(f"s_lshl_b32 s{sTMP}, s2, 8"); e(f"s_lshl_b32 s3, s{sW}, 6"); e(f"s_add_u32 s{sTMP}, s{sTMP}, s3")
        for i in range(0, 16, 4):
            e(f"buffer_store_dwordx4 {rng('v', 32+i)}, off, {SWS}, s{sTMP} offset:{i*4}")
    e("s_cmp_lg_u32 s2, 0"); e("s_cbranch_scc1 L_end")
    e(f"s_cmp_lg_u32 s{sW}, 0"); e("s_cbranch_scc1 L_end")
    e(f"v_mov_b32 v{vP}, s{sT}"); e(f"v_mov_b32 v{vP+1}, s{sT+1}"); e("s_mov_b64 exec, 1")
    e(f"s_mov_b32 s{sTMP}, {EPOCH_OFF}")
    e(f"buffer_store_dwordx2 {rng('v', vP, 2)}, off, {SWS}, s{sTMP}")
    e("L_end:")
    e("s_endpgm")
    for val in spins:
        e(f"L_spin{val}:")
        e(f"s_mov_b32 s{sSPIN}, 0x40000")
        e(f"L_spinl{val}:")
        e("s_sleep 1")
        e(f"buffer_load_dwordx2 {rng('v', vP, 2)}, off, {SWS}, s{sPFLAG} sc1")
        e(f"s_sub_u32 s{sSPIN}, s{sSPIN}, 1")
        e("s_waitcnt vmcnt(0)")
        e(f"s_cmp_eq_u32 s{sSPIN}, 0"); e(f"s_cbranch_scc1 L_back{val}")
        flagchk(val, f"L_spinl{val}")
        e(f"s_branch L_back{val}")
    for val in (0, 1):
        e(f"L_wspin{val}:")
        e(f"s_mov_b32 s{sSPIN}, 0x40000")
        e(f"L_wspinl{val}:")
        e("s_sleep 2")
        wpoll0()
        e(f"s_sub_u32 s{sSPIN}, s{sSPIN}, 1")
        e("s_waitcnt vmcnt(0)")
        e(f"s_cmp_eq_u32 s{sSPIN}, 0"); e(f"s_cbranch_scc1 L_wback{val}")
        wflagchk(val, f"L_wspinl{val}")
        e(f"s_branch L_wback{val}")

LAUNCH = "; @launch grid=(256,1,1) block=(256,1,1) lds=163840"
hdr = f"""; DCN-v2 cross network, 3 layers, B=16384, D=1024, bf16.  Generated by dev/gen.py (hand-written generator).
{LAUNCH}
.amdgcn_target "amdgcn-amd-amdhsa--gfx950"
.text"""
main_kernel()
if P['CPF']: e('.fill 4096, 4, 0xBF800000')
def kd(name, vg, ao, sg):
    return f""".p2align 6
.amdhsa_kernel {name}
  .amdhsa_next_free_vgpr {vg}
  .amdhsa_next_free_sgpr {sg}
  .amdhsa_accum_offset {ao}
  .amdhsa_group_segment_fixed_size 0
  .amdhsa_kernarg_size 48
  .amdhsa_user_sgpr_count 2
  .amdhsa_user_sgpr_kernarg_segment_ptr 1
  .amdhsa_system_sgpr_workgroup_id_x 1
.end_amdhsa_kernel
"""
tail = '\n.section .rodata,"a"\n' + kd(KN, 512, 256, 102)
open(out, "w").write(hdr + "\n" + "\n".join(L) + tail)
```

```python
import sys
out = sys.argv[1]
P = dict(CAP=2, DLEAD=2, DSPREAD=32, STAMPS=0, XSC="sc1", SSC="sc1", POLL_M=64, BIAS_S=11, NOSYNC=0, XDSPREAD=24,
         DOFF=2, NODMA=0, NOBAR=0, NOW=0, NOJIT=0, NOST=0, DEEP=1, XCHK=192, STOFF=5, STSPREAD=20, RAMP=4, XSMALL=0, NOOUT=0, XSTR=131072+1024, CPF=2, ONLY=0, RT=0, WSC=1, TX=0, XD2=550, XC2=0, RFS=16, SPACE=0, SPACE2=0, T3=0, XP=0, OT=0, OSC2=0, XOUT=0, XMASK=31, CA1=1600, CB1=1960, CA2=1470, CB2=1640, SAMEX=0, PORD=0, D4=0, D5=0, CTM=0, XALT=0, OI=0, OPACE=0, DEEPT=0, OSC="", SG0=1, HH=4, TT=4, TL=8, TL2=4, XBA=9, XD0=550, XDS=30, XDL=24, BS0=9,  PTOUCH=0, HB=4, C12=5, B1M=34, B1S=8, UDS=4, U3D=0, U5D=64, U4D=98, B3=262, B3S=24, M12=14,  NSELF=6, FB=0, WCHK=280, WPOLL=64, B2=132, B2S=16, BLK1E=1, U2M=40, U3M=100, U5M=200, U4M=226)
for kv in sys.argv[2:]:
    k, v = kv.split("=")
    P[k] = v.replace("+", " ").replace("none", "") if k in ("XSC", "SSC", "OSC") else int(v)
CAP = P["CAP"]

KN = "standalone__cross_network_dcn__recsys_kernel"
PK = "dcn_pack_kernel"
WP_OFF = 0x100000
FLAG_OFF = 0x800000
X_OFF = P.get("XOFF", 0x1000000)
L = []
def e(s): L.append(s)

class Ctr:
    def __init__(s, name, mx): s.name, s.mx, s.n, s.done = name, mx, 0, 0
    def issue(s):
        s.n += 1
        return s.n - 1
    def need(s, idx):
        if idx is None or idx < s.done: return None
        N = min(s.n - 1 - idx, s.mx)
        s.done = max(s.done, s.n - N)
        return N
cur_m = [0]; touch_m = []
VM = Ctr("vmcnt", 63); LG = Ctr("lgkmcnt", 15)
def wait(vm=None, lg=None):
    a = VM.need(vm); b = LG.need(lg)
    parts = []
    if a is not None: parts.append(f"vmcnt({a})")
    if b is not None:
        parts.append(f"lgkmcnt({b})")
        if touch_m: sys.stderr.write(f"touch at {touch_m[0]}: next lgkm wait after {cur_m[0] - touch_m[0]} (N={b})\n"); touch_m.clear()
    if parts:
        e("s_waitcnt " + " ".join(parts)); return 1
    return 0
def wait_lg_all():
    e("s_waitcnt lgkmcnt(0)"); LG.done = LG.n

vL0, vK, vXR, vW0, vW1, vLX, vB, vP = 0, 1, 5, 6, 7, 8, 9, 10
T = 12
def acc(a, bt):
    if a < 7:
        b = 32 + (a * 8 + bt) * 4
        return ("v", b)
    return ("a", 224 + bt * 4)
def rng(k, b, n=4): return f"{k}[{b}:{b+n-1}]"
def x0r(j, bt): return (j * 8 + bt) * 4
def breg(c, bt): return 96 + (c * 8 + bt) * 4
SX0, SOUT, SWS, SBS, SWR = "s[12:15]", "s[16:19]", "s[20:23]", "s[24:27]", "s[4:7]"
sT, sSELF, sS2 = 8, 10, 11
EPOCH_OFF = 0x810000
sW, sHF, sWOFF, sW2048, sW8192, sMASK, sTMP, sFLAG, sPFLAG, sBOFF, sSPIN, sTMP2 = 28, 29, 30, 31, 32, 33, 34, 35, 36, 37, 38, 39
sXO = 40
sXOWN = 48
sXOTH = 50
sXST = 52
sXLD = 56
sSTAMP = 60
nstamp = [0]
def pstamp():
    if P["STAMPS"] == 9: stamp()
def stamp():
    if P["STAMPS"]:
        e(f"{'s_memrealtime' if P['RT'] else 's_memtime'} s[{sSTAMP+2*nstamp[0]}:{sSTAMP+2*nstamp[0]+1}]"); nstamp[0] += 1
NM = 3 * 2048
ORDER = []
for l in range(3):
    H = P["HH"] if l > 0 else 0
    Tn = P["TT"] if l < 2 else P["TL"]
    T2 = P["TL2"] if l == 2 else 0
    ORDER += [(l, s, rp) for s in range(H) for rp in (0, 1)] + [(l, s, rp) for s in range(H) for rp in (2, 3)]
    if l == 2 and P["TX"]:
        assert H == 4 and T2 == 0
        ORDER += [(l, s, rp) for s in range(4, 16) for rp in (0, 1)]
        ORDER += [(l, s, rp) for s in list(range(8, 16)) + list(range(4, 8)) for rp in (2, 3)]
        continue
    ORDER += [(l, s, rp) for s in range(H, 16 - Tn) for rp in range(4)]
    ORDER += [(l, s, rp) for s in range(16 - Tn, 16) for rp in (0, 1)]
    ORDER += [(l, s, rp) for s in range(16 - Tn, 16 - T2) for rp in (2, 3)]
    ORDER += [(l, s, 2) for s in range(16 - T2, 16)] + [(l, s, 3) for s in range(16 - T2, 16)]
assert len(set(ORDER)) == 192
GPOS = {k: i for i, k in enumerate(ORDER)}
def LS(l, rp): return 7 if (P["TX"] and l == 2 and rp >= 2) else 15
def VS(l, s, rp): return s + 12 if (P["TX"] and l == 2 and 4 <= s < 8 and rp >= 2) else s
NPH = lambda l: 10 if (P["TX"] and l == 2) else 8
SEQ = [(l, s, rp, bt, sub) for (l, s, rp) in ORDER[:192 - 2 * P["T3"]] for bt in range(8) for sub in range(4)]
if P["T3"]:
    assert P["TL2"] == 0 and P["T3"] <= P["TL"]
    SEQ += [(2, s, rp, bt, sub) for hb in range(2) for s in range(LS(2, 3) + 1 - P["T3"], LS(2, 3) + 1) for bt in range(4 * hb, 4 * hb + 4) for rp in (2, 3) for sub in range(4)]
assert len(set(SEQ)) == NM
POS = {k: i for i, k in enumerate(SEQ)}
M = lambda l, s, rp=0, bt=0, sub=0: POS[(l, s, rp, bt, sub)]
FU = {}; LU = {}
for m_, (l_, s_, rp_, bt_, sub_) in enumerate(SEQ):
    FU.setdefault(GPOS[(l_, s_, rp_)], m_); LU[GPOS[(l_, s_, rp_)] * 4 + sub_] = m_
BRD = {}; RDG = {}; _last = {}
for m_, (l_, s_, rp_, bt_, sub_) in enumerate(SEQ):
    k_ = (sub_ % 2, bt_); s_ = VS(l_, s_, rp_)
    if k_ in _last and _last[k_][1] != (l_, s_):
        BRD[_last[k_][0]] = (l_, s_)
        if _last[k_][0] // 32 not in RDG.setdefault((l_, s_), []): RDG[(l_, s_)].append(_last[k_][0] // 32)
    _last[k_] = (m_, (l_, s_))
for v_ in RDG.values(): v_.sort()
def RB(l, ph): return min(RDG[(l, 2 * ph)] + RDG[(l, 2 * ph + 1)])
def LRD(l, ph): return max(RDG.get((l, 2 * ph), [-1]) + RDG[(l, 2 * ph + 1)])
BARS = set(RB(l, ph) for l in range(3) for ph in range(NPH(l)) if (l, ph) != (0, 0))
if P["TX"]: BARS |= {LRD(2, 4) + 2, LRD(2, 5) + 2}
BARS |= set(RDG[(0, 2 * ph + 1)][0] for ph in range(P["HB"]))
BARS |= set(64 * l + P["XBA"] for l in (1, 2))
def free_at(l, ph):
    pl, pp = (l, ph - 4) if ph >= 4 else (l - 1, ph + 4)
    if pl < 0: return 0
    return 32 * min(b for b in BARS if b >= LRD(pl, pp) + 2)

CAPS = (4, 6, 12, 14) if P["XALT"] == 3 else (8, 10, 12, 14)
def own0(ph): return ph % 4 >= 2 if P["XALT"] == 3 else ph >= 4
def bop(l, s, c, bt):
    if P['DEEP'] < 2 and l == 0 and c == 0 and s in CAPS[:3]: return x0r(CAPS.index(s), bt)
    return breg(c, bt)

def main_kernel():
    e(f".globl {KN}"); e(".p2align 8"); e(f".type {KN},@function"); e(f"{KN}:")
    e("s_cmp_ge_u32 s2, 256"); e("s_cbranch_scc1 L_end")
    if P["PTOUCH"]:
        e("s_getpc_b64 s[92:93]")
        e("v_lshrrev_b32 v12, 6, v0"); e("s_lshr_b32 s94, s2, 3"); e("v_readfirstlane_b32 s95, v12")
        e("s_and_b32 s94, s94, 15"); e("s_lshl_b32 s94, s94, 2"); e("s_add_u32 s94, s94, s95"); e("s_lshl_b32 s94, s94, 7")
        e("s_add_u32 s92, s92, s94"); e("s_addc_u32 s93, s93, 0")
        e("s_load_dword s98, s[92:93], 0")
    e("s_load_dwordx4 s[4:7], s[0:1], 0")
    e("s_load_dwordx4 s[8:11], s[0:1], 16")
    e("s_load_dwordx4 s[40:43], s[0:1], 32")
    stamp()
    e("v_lshrrev_b32 v12, 6, v0")
    e("v_and_b32 v13, 63, v0")
    e(f"v_readfirstlane_b32 s{sW}, v12")
    e(f"v_lshlrev_b32 v{vL0}, 4, v13")
    for k in range(4): e(f"v_add_u32 v{vK+k}, {k*8192}, v{vL0}")
    e(f"v_lshl_add_u32 v{vW0}, v12, 13, v{vL0}")
    e(f"v_add_u32 v{vW1}, 0x10000, v{vW0}")
    e(f"v_add_u32 v{vLX}, 0x20000, v{vW0}")
    e("v_and_b32 v14, 15, v13"); e("v_lshrrev_b32 v15, 4, v13")
    e(f"v_lshlrev_b32 v{vB}, 4, v15")
    e(f"v_lshl_add_u32 v{vXR}, v14, 11, v{vB}")
    if P["XP"]:
        assert P["OT"] and P["XALT"] == 3
        e("v_mov_b32 v18, 0x78")
        e("v_lshlrev_b32 v16, 1, v15"); e("v_lshrrev_b32 v16, v16, v18"); e("v_xor_b32 v17, v16, v13"); e("v_and_b32 v17, 3, v17"); e("v_lshlrev_b32 v17, 4, v17")
        e("v_lshrrev_b32 v16, 2, v13"); e(f"v_lshl_add_u32 v{vXR}, v16, 11, v17")
        e("v_lshrrev_b32 v16, 1, v14"); e("v_and_b32 v16, 6, v16"); e("v_lshrrev_b32 v16, v16, v18"); e("v_xor_b32 v16, v16, v15"); e("v_and_b32 v16, 3, v16")
        e("v_lshlrev_b32 v16, 4, v16"); e("v_lshl_add_u32 v16, v14, 6, v16")
        for k in range(4): e(f"v_add_u32 v{vK+k}, {k*8192}, v16")
    e("s_and_b32 s3, s2, 7"); e(f"s_lshr_b32 s{sTMP}, s2, 4"); e(f"s_lshl_b32 s{sTMP}, s{sTMP}, 3"); e(f"s_or_b32 s3, s3, s{sTMP}")
    e(f"s_lshr_b32 s{sHF}, s2, 3"); e(f"s_and_b32 s{sHF}, s{sHF}, 1")
    e(f"s_lshl_b32 s{sW2048}, s{sW}, 11"); e(f"s_lshl_b32 s{sW8192}, s{sW}, 13")
    e(f"s_mov_b32 s{sMASK}, 0xffff0000")
    if P["XP"]: e(f"s_add_u32 s101, s{sW8192}, 0x10000")
    e("s_lshl_b32 s3, s3, 18")
    e(f"s_lshl_b32 s{sTMP2}, s{sHF}, 2"); e(f"s_add_u32 s{sTMP2}, s{sTMP2}, s{sW}")
    e(f"s_lshl_b32 s{sBOFF}, s{sTMP2}, 8")
    e(f"s_lshl_b32 s{sTMP}, s{sW}, 16"); e(f"s_add_u32 s{sTMP}, s{sTMP}, s3")
    e(f"s_lshl_b32 s{sXOWN}, s{sHF}, 10"); e(f"s_xor_b32 s{sXOTH}, s{sXOWN}, 1024")
    e(f"s_add_u32 s{sXOWN}, s{sXOWN}, s{sTMP}"); e(f"s_add_u32 s{sXOTH}, s{sXOTH}, s{sTMP}")
    e(f"s_add_u32 s{sXOWN+1}, s{sXOWN}, 32768"); e(f"s_add_u32 s{sXOTH+1}, s{sXOTH}, 32768")
    e(f"s_mul_i32 s{sWOFF}, s{sTMP2}, {3*8*32768}"); e(f"s_add_u32 s{sWOFF}, s{sWOFF}, {WP_OFF + P['NSELF']*8192}")
    e("s_waitcnt lgkmcnt(0)")
    pstamp()
    for (s, ptr, n) in ((24, 8, 6144), (12, 4, 0x2000000), (20, 42, 0x10000000), (16, 10, 0x2000000), (4, 6, 0x600000)):
        e(f"s_mov_b32 s{s}, s{ptr}"); e(f"s_and_b32 s{s+1}, s{ptr+1}, 0xffff"); e(f"s_mov_b32 s{s+2}, {hex(n)}"); e(f"s_mov_b32 s{s+3}, 0x20000")

    def bias_load(l, j):
        e(f"buffer_load_dwordx4 {rng('v', T+4*j)}, v{vB}, {SBS}, s{sBOFF} offen offset:{(l*2048 + j*64) % 4096}")
        return VM.issue()
    wtag = {}; wslot = {}; wlg = {}
    wok = [0]
    wload_n = [0]
    pool = [(("a", 160 + 4 * i), NM) for i in range(16)]
    if P["DEEP"]:
        for j in ((0, 1, 2) if P["PORD"] else (2, 1, 0)):
            if P["DEEP"] >= 2 and j >= P["DEEP"] - 1: continue
            pool += [(("a", x0r(j, bt)), 32 * RDG[(0, CAPS[j])][0] if P["DEEP"] < 2 else NM) for bt in range(8)]
    def last_use(f): return LU[f]
    def wload():
        f = wload_n[0]
        if f >= wok[0]: return 0
        while pool and pool[0][1] <= last_use(f): pool.pop(0)
        if not pool: return 0
        sl = pool.pop(0)
        wslot[f] = sl
        wload_n[0] += 1
        if P['NOW'] and f >= 16:
            wtag[f] = None; return 0
        k = f % 4
        e(f"buffer_load_dwordx4 {rng(*sl[0])}, v{vL0}, {SWS}, s{sWOFF} offen offset:{k*1024}{' sc1' if P['WSC'] else ''}")
        wtag[f] = VM.issue()
        n = 1
        if k == 3 and f + 1 < 768:
            lin = lambda g: ORDER[g][0] * 64 + ORDER[g][1] * 4 + ORDER[g][2]
            e(f"s_add_u32 s{sWOFF}, s{sWOFF}, {hex(((lin(f // 4 + 1) - lin(f // 4)) * 4096) & 0xffffffff)}"); n += 1
        return n
    def x0_io(ph, ksl):
        if P["XALT"] == 3:
            if own0(ph): return ksl * 256 + ((ph // 4) * 2 + ph % 2) * 64
            return (2 * (ph % 2) + (ksl >> 1)) * 256 + (2 * (ph // 4) + (ksl & 1)) * 64
        if P["XALT"] == 1: return (ph // 2) * 256 + ksl * 64
        if P["XALT"] == 2: return ((ph // 4) * 2 + ph % 2) * 256 + ksl * 64
        return ph * 256 + ksl * 64 if ph < 4 else ksl * 256 + (ph - 4) * 64
    m0own = [None]
    def dma_x0_m0(ph, ksl, i):
        m0own[0] = ("x", ph, ksl, i)
        lo = (ph % 4)*32768 + ksl*8192 + i*1024
        e(f"s_add_u32 m0, s{sW2048}, {lo - x0_io(ph, ksl) if lo >= x0_io(ph, ksl) else lo}")
    def dma_x0_ld(ph, ksl, i):
        assert m0own[0] == ("x", ph, ksl, i)
        so = (sXOWN if own0(ph) else sXOTH) + i
        if P["XALT"] == 1: so = (sXOTH if ph % 2 == 0 else sXOWN) + i
        if P["XALT"] == 2: so = (sXOTH if ph % 4 < 2 else sXOWN) + i
        io = x0_io(ph, ksl)
        if (ph % 4)*32768 + ksl*8192 + i*1024 < io:
            e(f"s_add_u32 s{sS2}, s{so}, {io}"); so = sS2; io = 0
        e(f"buffer_load_dwordx4 v{vXR}, {SX0}, s{so} offen offset:{io} lds")
        return VM.issue()
    blk_tag = {}
    blk_lg = {}
    st_tag = {}

    UB = T + 16
    vSG, vCG, vCT, vFL, vTR, vTR4 = 12, 13, 14, 15, 16, 20
    def code_touch(q):
        if q > 11: return 0
        e(f"s_add_u32 s96, s92, L_q{q}-L_pc"); e("s_addc_u32 s97, s93, 0")
        e("s_load_dword s98, s[96:97], 0")
        return 3
    e(f"s_add_u32 s96, s42, {EPOCH_OFF}"); e("s_addc_u32 s97, s43, 0")
    e(f"s_load_dwordx2 s[{sT}:{sT+1}], s[96:97], 0")
    e("v_mov_b32 v24, v12"); e("v_mov_b32 v25, v13"); e("v_mov_b32 v26, v14"); e("v_mov_b32 v27, v15")
    e("v_lshrrev_b32 v28, 2, v25"); e("v_and_b32 v29, 3, v25")
    e(f"v_lshlrev_b32 v{vCG}, 11, v28"); e(f"v_lshl_add_u32 v{vCG}, v29, 4, v{vCG}")
    e(f"s_lshr_b32 s44, s2, 3"); e("s_and_b32 s45, s2, 7")
    e("s_lshl_b32 s46, s44, 16"); e("s_lshl_b32 s47, s45, 8"); e("s_add_u32 s46, s46, s47")
    e(f"s_lshl_b32 s47, s{sW}, 6"); e("s_add_u32 s100, s46, s47")
    coop_tag = {}
    def coop_dma(l, n):
        m0own[0] = None
        e(f"s_add_u32 m0, s{sW2048}, {(32768 if l == 0 else 131072) + l*8192 + n*1024}")
        e(f"s_add_u32 s{sS2}, s100, {l*0x200000 + n*32768}")
        e(f"buffer_load_dwordx4 v{vCG}, {SWR}, s{sS2} offen lds"); coop_tag[l] = VM.issue()
        return 3
    coop_dma(0, 0); coop_dma(0, 1)
    pstamp()
    e(f"v_lshlrev_b32 v30, 2, v27"); e("v_xor_b32 v30, v30, v26"); e("v_lshlrev_b32 v30, 4, v30")
    e(f"v_lshl_add_u32 v{vSG}, v27, 11, v30")
    e(f"s_xor_b32 s{sSELF}, s{sHF}, 1"); e(f"s_lshl_b32 s{sSELF}, s{sSELF}, 20"); e(f"s_add_u32 s{sSELF}, s{sSELF}, s{sBOFF}")
    REG = {0: 2, 1: 3, 2: 4, 3: 2, 4: 4, 5: 3}
    self_tag = {}; self_lg = {}
    def self_dma1(n, ch):
        m0own[0] = None
        e(f"s_add_u32 m0, s{sW2048}, {REG[n]*32768 + (ch>>1)*8192 + (ch&1)*1024}")
        rb = (n >> 1) * 4 + (n & 1) if P["XALT"] == 3 else n
        e(f"s_add_u32 s{sS2}, s{sSELF}, {rb*65536 + ch*8192}")
        e(f"buffer_load_dwordx4 v{vSG}, {SWR}, s{sS2} offen lds"); self_tag[n] = VM.issue()
        return 3
    def self_dma(n):
        for ch in range(8): self_dma1(n, ch)
    def self_read1(n, a, u):
        j, h = divmod(a, 2)
        f = ((n // 2) * 4 + j) * 4 + 2 * h + n % 2
        w_ = 0
        if a == 0 and u == 0: w_ = wait(vm=self_tag[n])
        if u == 0:
            while pool[0][1] <= last_use(f): pool.pop(0)
            wslot[f] = pool.pop(0)
        k, b = wslot[f][0]
        R = REG[n]
        e(f"ds_read_b64_tr_b16 {rng(k, b+2*u, 2)}, v{(vTR4 if R == 4 else vTR)+j} offset:{(R % 2)*32768 + u*1024 + 8*h}")
        self_lg[n] = wlg[f] = LG.issue(); wtag[f] = None
        return 1 + w_
    half_tag = {}
    def blk_dma(ph, hv):
        for ksl in (2 * hv, 2 * hv + 1):
            for i in range(2):
                dma_x0_m0(ph, ksl, i); e("s_nop 0")
                blk_tag[(0, ph)] = dma_x0_ld(ph, ksl, i)
        if hv == 0: half_tag[ph] = blk_tag[(0, ph)]
    self_dma(0); self_dma(1); blk_dma(0, 0)
    pstamp()
    e("v_bfe_u32 v28, v25, 2, 2")
    e(f"v_lshlrev_b32 v30, 11, v24"); e("v_lshl_add_u32 v30, v29, 4, v30")
    e("v_lshrrev_b32 v31, 1, v27"); e(f"v_lshl_add_u32 v{vCT}, v31, 10, v30")
    e("v_and_b32 v31, 1, v27"); e("v_lshl_add_u32 v31, v31, 3, v28"); e(f"v_lshl_add_u32 v{vCT}, v31, 6, v{vCT}")
    e(f"v_add_u32 v{vCT}, 0x8000, v{vCT}")
    e("v_lshl_add_u32 v30, v27, 13, v30"); e("v_lshl_add_u32 v30, v28, 8, v30"); e("v_add_u32 v30, 0x10000, v30")
    for j in range(4):
        e(f"v_xor_b32 v31, {j}, v28"); e(f"v_lshl_add_u32 v{vTR+j}, v31, 6, v30"); e(f"v_add_u32 v{vTR4+j}, 0x10000, v{vTR+j}")
    e("s_lshr_b32 s40, s44, 2"); e("s_and_b32 s41, s44, 3"); e("s_and_b32 s42, s45, 4")
    e("s_xor_b32 s42, s40, s42")
    e("s_and_b32 s43, s42, 3")
    e("s_and_b32 s46, s45, 3"); e("s_xor_b32 s46, s43, s46")
    e("s_and_b32 s47, s42, 4"); e("s_or_b32 s47, s47, s41")
    def dcalc(d, ph, ka):
        e(f"s_lshl_b32 s{d}, s{ph}, 15")
        e(f"s_lshr_b32 s{sTMP}, s{ka}, 1"); e(f"s_lshl_b32 s{sTMP}, s{sTMP}, 14"); e(f"s_add_u32 s{d}, s{d}, s{sTMP}")
        e(f"s_and_b32 s{sTMP}, s{ka}, 1"); e(f"s_lshl_b32 s{sTMP}, s{sTMP}, 10"); e(f"s_add_u32 s{d}, s{d}, s{sTMP}")
    dcalc(57, 47, 46)
    if P["XALT"] == 3:
        e("s_and_b32 s47, s41, 1"); e("s_and_b32 s40, s43, 1"); e("s_lshl_b32 s40, s40, 1"); e("s_or_b32 s40, s40, s47")
        e("s_or_b32 s47, s47, 2"); e("s_lshr_b32 s43, s43, 1")
        e("s_cmp_lt_u32 s42, 4")
        e("s_cselect_b32 s47, s47, s43"); e("s_cselect_b32 s46, s46, s40")
        e("s_lshr_b32 s40, s41, 1"); e("s_lshl_b32 s40, s40, 2"); e("s_or_b32 s47, s47, s40")
    else:
        e("s_xor_b32 s47, s47, 4")
        e("s_cmp_lt_u32 s42, 4")
        e("s_cselect_b32 s47, s47, s43"); e("s_cselect_b32 s46, s46, s41")
    dcalc(58, 47, 46)
    e(f"s_mul_i32 s40, s45, {3*262144}"); e(f"s_lshl_b32 s41, s{sW}, 12"); e("s_add_u32 s40, s40, s41"); e(f"s_add_u32 s40, s40, {WP_OFF}")
    e("s_add_u32 s57, s40, s57"); e("s_add_u32 s58, s40, s58")
    e("s_add_u32 s57, s57, 262144"); e("s_add_u32 s99, s57, 262144")
    CD = {0: 58, 1: 57, 2: 99}
    e("s_getpc_b64 s[92:93]")
    e("L_pc:")
    e(f"s_lshr_b32 s94, s2, 3"); e(f"s_lshl_b32 s94, s94, 2"); e(f"s_add_u32 s94, s94, s{sW}")
    e(f"s_lshl_b32 s94, s94, 7")
    e("s_add_u32 s92, s92, s94"); e("s_addc_u32 s93, s93, 0")
    for q in range(P["CPF"]): code_touch(q)
    e(f"s_xor_b32 s{sPFLAG}, s2, 8")
    e(f"s_mul_i32 s{sXST}, s2, {P['XSTR']}"); e(f"s_add_u32 s{sXST}, s{sXST}, {X_OFF}")
    e(f"s_mul_i32 s{sXLD}, s{sPFLAG}, {P['XSTR']}"); e(f"s_add_u32 s{sXLD}, s{sXLD}, {X_OFF}")
    e(f"s_add_u32 s{sXLD}, s{sXLD}, s{sW8192}")
    for k in range(1, 4): e(f"s_add_u32 s{sXST+k}, s{sXST}, {(k//2)*32768 + (k%2)*4096}")
    if P["XOUT"]:
        e(f"s_lshr_b32 s{sXST}, s3, 7"); e(f"s_and_b32 s{sXST}, s{sXST}, {P['XMASK'] << 11}")
        e(f"s_lshl_b32 s{sXLD}, s{sW}, 14"); e(f"s_xor_b32 s{sXST}, s{sXST}, s{sXLD}")
        e(f"s_lshl_b32 s{sXLD}, s{sHF}, 10"); e(f"s_or_b32 s{sXST}, s{sXST}, s{sXLD}"); e(f"s_or_b32 s{sXST}, s{sXST}, s3")
        e(f"s_xor_b32 s{sXLD}, s{sXST}, 1024")
    e(f"s_lshl_b32 s{sFLAG}, s2, 7"); e(f"s_add_u32 s{sFLAG}, s{sFLAG}, {FLAG_OFF}")
    e(f"s_xor_b32 s{sPFLAG}, s{sFLAG}, {8*128}")
    e(f"s_lshr_b32 s59, s{sBOFF}, 1"); e(f"s_add_u32 s59, s59, {FLAG_OFF}")
    stamp()
    ct = {}; pack_tag = {}
    def creg(l, h): return ('a', 96 + h * 4) if l == 0 else ('v', 16 + ((l - 1) * 2 + h) * 4)
    def coop_read(l, h, u):
        w_ = wait(vm=coop_tag[l])
        k, b = creg(l, h)
        e(f"ds_read_b64_tr_b16 {rng(k, b + 2*u, 2)}, v{vCT} offset:{l*8192 + u*256 + h*8}")
        ct[(l, h)] = LG.issue(); return 1 + w_
    def coop_store(l, h):
        w_ = wait(lg=ct[(l, h)])
        e(f"buffer_store_dwordx4 {rng(*creg(l, h))}, v{vL0}, {SWS}, s{CD[l]} offen offset:{h*2048} sc1")
        pack_tag[l] = VM.issue(); return 1 + w_
    wait(vm=coop_tag[0])
    pstamp()
    for h in range(2):
        for u in range(2): coop_read(0, h, u)
    for h in range(2): coop_store(0, h)
    e(f"v_add_u32 v{vCT}, 0x18000, v{vCT}")
    blk_dma(0, 1); self_dma(2)
    pstamp()
    wait_lg_all()
    e(f"s_add_u32 s{sT}, s{sT}, 16"); e(f"s_addc_u32 s{sT+1}, s{sT+1}, 0")
    e(f"s_and_b32 s{sT}, s{sT}, -16"); e(f"s_and_b32 s{sT+1}, s{sT+1}, 0x7fffffff")
    e(f"s_add_u32 s{sXO}, s3, s{sBOFF}")
    for bt in range(1, 8): e(f"s_add_u32 s{sXO+bt}, s{sXO}, {bt*32768}")
    pstamp()
    for n in (0, 1):
        for a in range(8):
            for u in range(2): self_read1(n, a, u)
    pstamp()
    wait(vm=half_tag[0] if P["HB"] else blk_tag[(0, 0)])
    if P["FB"] == 0: wait(vm=pack_tag[0])
    e("s_barrier")
    stamp()
    def setflag(val):
        e(f"s_cmp_lg_u32 s{sW}, 0"); e(f"s_cbranch_scc1 L_nf{val}")
        e(f"s_add_u32 s{sTMP}, s{sT}, {val}")
        e(f"v_mov_b32 v{vP}, s{sTMP}"); e(f"v_mov_b32 v{vP+1}, s{sT+1}"); e("s_mov_b64 exec, 1")
        e(f"buffer_store_dwordx2 {rng('v', vP, 2)}, off, {SWS}, s{sFLAG} sc1")
        e("s_mov_b64 exec, -1")
        e(f"L_nf{val}:")
        return 2
    if P["FB"] == 0: setflag(0)
    wload_n[0] = 8 * P["NSELF"]
    btag = {}
    kst = {k: (0, 0) for k in range(4)}
    capt = set()
    def bread(l, s, c, bt):
        kap = (s % 2) * 2 + c
        if bop(l, s, c, bt) < 96:
            if (s, bt) in capt: return 0
            capt.add((s, bt))
        n = 1
        want = (0 if (l == 0 and not own0(s // 2)) else 1, (s // 4) % 2)
        if kst[kap] != want and P["XP"] and l == 0:
            assert kst[kap] == (1 - want[0], 1 - want[1])
            e(f"v_xor_b32 v{vK+kap}, s101, v{vK+kap}"); kst[kap] = want; n += 1
        elif kst[kap] != want:
            e(f"v_xor_b32 v{vK+kap}, {hex(kap*8192 + want[1]*65536)}, v{vW0 if want[0] else vL0}"); kst[kap] = want; n += 1
        off = ((s // 2) % 2) * 32768 + bt * 1024
        e(f"ds_read_b128 {rng('a', bop(l, s, c, bt))}, v{vK+kap} offset:{off}")
        btag[(c, bt)] = LG.issue()
        return n
    for bt in range(8):
        for c in range(2): bread(0, 0, c, bt)

    tasks = []
    def add_task(ready, deadline, items): tasks.append([ready, deadline, list(items)])
    pre_ev = {}; post_ev = {}
    def at_pre(m, f): pre_ev.setdefault(m, []).append(f)
    def at_post(m, f): post_ev.setdefault(m, []).append(f)

    def sched_dma(l, ph, m0, spread):
        if P['NODMA']: return
        assert m0 >= free_at(l, ph), (l, ph, m0, free_at(l, ph))
        assert m0 + 7 * spread < 32 * RB(l, ph), (l, ph)
        sys.stderr.write(f"dma ({l},{ph}) {m0 % 2048}..{(m0 + 7 * spread) % 2048} free {free_at(l, ph) % 2048} need {32 * RB(l, ph) % 2048}\n")
        if l == 0:
            seq = [(j, i) for j in range(4) for i in range(2)]
            for n, (j, i) in enumerate(seq):
                m = m0 + n * spread
                at_pre(m, lambda j=j, i=i: (dma_x0_m0(ph, j, i), 1)[1])
                def ld(j=j, i=i):
                    blk_tag[(l, ph)] = dma_x0_ld(ph, j, i)
                    if (j, i) == (1, 1): half_tag[ph] = blk_tag[(l, ph)]
                    return 1
                at_post(m, ld)
        else:
            j = ph % 4
            for n in range(8):
                m = m0 + n * spread
                if P["XOUT"]:
                    def setm1(n=n):
                        m0own[0] = ("e", l, ph, n)
                        e(f"s_add_u32 m0, s{sW8192}, {j*32768 + n*1024}")
                        e(f"s_xor_b32 s{sTMP2}, s{sXLD}, {(j*32 + n)*2048}")
                        return 2
                    at_pre(m, setm1)
                    def ld1(n=n):
                        assert m0own[0] == ("e", l, ph, n)
                        e(f"buffer_load_dwordx4 v{vL0}, {SOUT}, s{sTMP2} offen {P['XSC']} lds")
                        blk_tag[(l, ph)] = VM.issue(); return 1
                    at_post(m, ld1)
                    continue
                if n % 4 == 0:
                    def setm(n=n):
                        m0own[0] = ("e", l, ph, n // 4)
                        e(f"s_add_u32 m0, s{sW8192}, {j*32768 + (n//4)*4096}")
                        if ph >= 8:
                            e(f"s_add_u32 s{sTMP2}, s{sXST}, {(j + 2)*32768 + (n//4)*4096}"); e(f"s_add_u32 s{sTMP2}, s{sTMP2}, s{sW8192}")
                        elif P['XSMALL'] == 2: e(f"s_add_u32 s{sTMP2}, s{sXLD}, {(j%2)*32768 + (n//4)*4096}")
                        else: e(f"s_add_u32 s{sTMP2}, s{sXLD}, {(0 if P['SAMEX'] else (l-1)*256*P['XSTR']) + j*32768 + (n//4)*4096}")
                        return 2
                    at_pre(m, setm)
                def ld(n=n):
                    assert m0own[0] == ("e", l, ph, n // 4)
                    e(f"buffer_load_dwordx4 v{vL0}, {SWS}, s{sTMP2} offen offset:{(n%4)*1024} {P['XSC']} lds")
                    blk_tag[(l, ph)] = VM.issue(); return 1
                at_post(m, ld)
    sched_dma(0, 1, P["B1M"], P["B1S"])
    def sched_sdma(n, prev, m0):
        at_post(m0, lambda: wait(lg=self_lg[prev]))
        for ch in range(8): at_post(m0 + P["UDS"] * ch, lambda ch=ch: self_dma1(n, ch))
    sched_sdma(3, 0, P["U3D"])
    if P["NSELF"] > 4:
        sched_sdma(5, 1, P["U5D"]); sched_sdma(4, 2, P["U4D"])
        assert P["U2M"] + 16 < P["U4D"]
    mc = M(0, P["C12"]) + 10
    at_post(mc, lambda: wait(lg=self_lg[4 if P["NSELF"] > 4 else 2]))
    for i, (l, n) in enumerate([(1, 0), (1, 1), (2, 0), (2, 1)]): at_post(mc + 16 * i, lambda l=l, n=n: coop_dma(l, n))
    for i, (l, h, u) in enumerate([(l, h, u) for l in (1, 2) for h in range(2) for u in range(2)]):
        at_post(mc + 224 + 2 * i, lambda l=l, h=h, u=u: coop_read(l, h, u))
    for i, (l, h) in enumerate([(l, h) for l in (1, 2) for h in range(2)]): at_post(mc + 250 + 16 * i, lambda l=l, h=h: coop_store(l, h))
    PH12 = P["C12"] // 2 + 2
    G12 = RB(0, PH12 + 1)
    assert mc + 250 + 48 + 100 < 32 * G12
    at_post(32 * G12, lambda: setflag(1))
    for ph in range(P["DLEAD"], 8):
        if ph == 2:
            at_pre(P["B2"], lambda: wait(lg=self_lg[3]))
            sched_dma(0, ph, P["B2"], P["B2S"])
        elif ph == 3 and P["NSELF"] > 4:
            at_pre(P["B3"], lambda: wait(lg=self_lg[5]))
            sched_dma(0, ph, P["B3"], P["B3S"])
        elif ph == 4 and P["D4"]: sched_dma(0, ph, P["D4"], (P["D5"] - P["D4"]) // 8)
        elif ph == 5 and P["D5"]: sched_dma(0, ph, P["D5"], P["DSPREAD"])
        else: sched_dma(0, ph, M(0, 2 * (ph - P["DLEAD"])) + P["DOFF"], P["DSPREAD"])
    def sched_self(n, m0):
        for a in range(8):
            for u in range(2): at_post(m0 + 2 * a + u, lambda a=a, u=u: self_read1(n, a, u))
    sched_self(2, P["U2M"]); sched_self(3, P["U3M"])
    if P["NSELF"] > 4:
        sched_self(5, P["U5M"]); sched_self(4, P["U4M"])
        assert P["U5M"] + 16 < P["B3"]
    assert P["U3M"] + 16 < P["B2"]
    if P["FB"]:
        def fbar():
            wait(vm=pack_tag[0]); e("s_barrier"); return 2 + setflag(0)
        at_pre(P["FB"], fbar)
    wp = [None]
    def wpoll0():
        e(f"v_and_b32 v{vP}, 0x1f0, v{vL0}"); e(f"v_lshlrev_b32 v{vP}, 6, v{vP}")
        e(f"buffer_load_dwordx2 {rng('v', vP, 2)}, v{vP}, {SWS}, s59 offen sc1")
    def wpoll():
        wpoll0(); wp[0] = VM.issue(); return 3
    def wflagchk(val, lab):
        e(f"s_add_u32 s{sTMP}, s{sT}, {val}")
        e(f"v_subrev_u32 v{vP}, s{sTMP}, v{vP}"); e(f"v_xor_b32 v{vP+1}, s{sT+1}, v{vP+1}"); e("s_nop 0")
        e(f"v_cmp_gt_u64 vcc, {16-val}, {rng('v', vP, 2)}"); e("s_nop 3")
        e("s_cmp_lg_u64 vcc, -1"); e(f"s_cbranch_scc1 {lab}")
    def wchk(val):
        wait(vm=wp[0])
        wflagchk(val, f"L_wspin{val}")
        e(f"L_wback{val}:")
        wok[0] = 256 if val == 0 else 768
        return 8
    m12 = P["M12"] * 128 + 48
    for val, mm in ((0, P["WCHK"]), (1, m12)):
        at_post(mm - P["WPOLL"], wpoll)
        at_post(mm, lambda val=val: wchk(val))
    x0l_lg = [None]
    for bt in range(8):
        def wr(bt=bt):
            e(f"ds_write_b128 v{vLX}, {rng('a', breg(0, bt))} offset:{bt*1024}")
            x0l_lg[0] = LG.issue(); return 1
        at_post(M(0, 14, 0, bt) + 5, wr)
    ptag = {}
    def flagchk(val, lab):
        e(f"v_readfirstlane_b32 s{sTMP}, v{vP}"); e(f"v_readfirstlane_b32 s{sS2}, v{vP+1}")
        e(f"s_xor_b32 s{sTMP}, s{sTMP}, s{sT}"); e(f"s_sub_u32 s{sTMP}, s{sTMP}, {val}")
        e(f"s_cmp_lg_u32 s{sS2}, s{sT+1}"); e(f"s_cbranch_scc1 {lab}")
        e(f"s_cmp_gt_u32 s{sTMP}, {15-val}"); e(f"s_cbranch_scc1 {lab}")
    spins = []
    FLAGBAR = {}
    busy = []
    def add_poll(val, mchk):
        def poll():
            e(f"buffer_load_dwordx2 {rng('v', vP, 2)}, off, {SWS}, s{sPFLAG} sc1")
            ptag[val] = VM.issue(); return 1
        busy.append((mchk - P["POLL_M"], mchk))
        at_post(mchk - P["POLL_M"], poll)
        def chk():
            wait(vm=ptag[val])
            flagchk(val, f"L_spin{val}")
            e(f"L_back{val}:")
            return 8
        at_post(mchk, chk)
        spins.append(val)
    FV = 4 if (P["XOUT"] or P["SAMEX"]) else 2
    gate = {}
    if P["XOUT"] or P["SAMEX"]:
        for l in ((1, 2) if P["XOUT"] else (1,)):
            for hb in range(2):
                val = 4 * l + hb
                gb = RB(l, 5 + 2 * hb)
                at_post(32 * gb, lambda val=val: setflag(val)); busy.append((32 * gb, 32 * gb))
                gate[(l, hb)] = 2048 * l + P[("CA", "CB")[hb] + str(l)]
                add_poll(val, gate[(l, hb)])
    for l in (1, 2):
        sp = P["XDS"] if l == 1 else P["XDL"]
        mm = 2048 * l + P["XD0" if l == 1 else "XD2"]
        for hb in range(2):
            val = FV * (l - 1) + hb + 2
            gb = 64 * l + P["XBA"] if hb == 0 else RB(l, 2)
            FLAGBAR[gb] = (l, 2 * hb + 1)
            mchk = max(mm, free_at(l, 4 + 2 * hb), 4096 + P["XC2"] if (l == 2 and hb == 1) else 0) + 2
            if l == 2 and hb == 0 and P["TX"]: mchk = mm
            if not P["NOSYNC"]:
                at_post(32 * gb, lambda val=val: setflag(val)); busy.append((32 * gb, 32 * gb))
                add_poll(val, mchk)
            mm = mchk + 1
            for jj in (2 * hb, 2 * hb + 1):
                mm = max(mm, free_at(l, 4 + jj) + 1)
                sched_dma(l, 4 + jj, mm, sp)
                mm += 8 * sp
        if l == 2 and P["TX"]:
            assert not P["XOUT"]
            for ph in (8, 9): sched_dma(2, ph, free_at(2, ph) + 3, P["RFS"])
        busy.sort()
        for x, y in zip(busy, busy[1:]): assert x[1] < y[0], (x, y)
        if l == 1 and not P['SAMEX'] and not P['XOUT']:
            def bump():
                for k in range(4): e(f"s_add_u32 s{sXST+k}, s{sXST+k}, {256*P['XSTR']}")
                return 4
            at_post(M(1, 9, 1), bump)
    for l in (0, 1, 2):
        bt_tags = {}
        Tn = P["TT"] if l < 2 else P["TL"]
        for j in range(4):
            sb = (P["BS0"] if l == 0 else P["HH"] - 1) if j < 2 else 15 - Tn
            sn = sb + 1
            if l == 2 and j >= 2 and P["TX"]: sb, sn = 3, 8
            rdy = M(l, sb, j) + 36
            if l > 0 and j < 2: rdy = max(rdy, M(l, 0, 3) + 32 + 100)
            def ld(j=j, l=l):
                if l == 2 and j == 0: e(f"s_add_u32 s{sBOFF}, s{sBOFF}, 4096")
                bt_tags[j] = bias_load(l, j); return 1
            at_post((rdy - 96 if j % 2 == 0 else prev_ld + 4), ld)
            prev_ld = rdy - 96
            items = []
            for h in range(2):
                def first(j=j, h=h): wait(vm=bt_tags[j]); e(f"v_lshlrev_b32 v{UB}, 16, v{T+4*j+2*h}")
                items.append(first)
                items.append(lambda j=j, h=h: e(f"v_and_b32 v{UB+1}, s{sMASK}, v{T+4*j+2*h}"))
                items.append(lambda j=j, h=h: e(f"v_lshlrev_b32 v{UB+2}, 16, v{T+4*j+2*h+1}"))
                items.append(lambda j=j, h=h: e(f"v_and_b32 v{UB+3}, s{sMASK}, v{T+4*j+2*h+1}"))
                for bt in range(8):
                    k, b = acc(2 * j + h, bt)
                    if k == "v":
                        for r in range(4):
                            items.append(lambda b=b, r=r: e(f"v_add_f32 v{b+r}, v{b+r}, v{UB+r}"))
                    else:
                        for r in range(4): items.append(lambda b=b, r=r: e(f"v_accvgpr_read_b32 v{T+r}, a{b+r}"))
                        for r in range(4): items.append(lambda r=r: e(f"v_add_f32 v{T+r}, v{T+r}, v{UB+r}"))
                        for r in range(4): items.append(lambda b=b, r=r: e(f"v_accvgpr_write_b32 a{b+r}, v{T+r}"))
            dlb = M(l, sn, j) - 1
            if j >= 2: dlb = min(dlb, M(l, 15, 0) + 7)
            add_task(rdy, dlb, items)
    xl_tag = {}; pend_st = []; next_st = [0]
    U = T + 12; A = T + 16
    for l in range(3):
        last = l == 2
        seq = [divmod(u, 8) for u in range(32)]
        if last and P["OI"] >= 1: seq[:16] = [(u % 2, u // 2) for u in range(16)]
        if last and P["OI"] >= 2: seq[16:] = [(2 + u % 2, u // 2) for u in range(16)]
        prev_ready = 0
        for u in range(32):
            j, bt = seq[u]
            ot = last and P["OT"]
            ts = T + 4 * (u % (2 if ot else 3))
            items = []
            vWA, vRA, vGA = T + 8, T + 10, T + 11
            if ot:
                assert P["OI"] == 2
                if u == 0:
                    for ins in (f"v_lshrrev_b32 v{U}, 7, v{vL0}", f"v_lshlrev_b32 v{U+1}, 4, v{U}", f"v_xor_b32 v{vRA}, v{U+1}, v{vLX}",
                                f"v_and_b32 v{U+1}, 0x70, v{vL0}", f"v_lshl_add_u32 v{vGA}, v{U}, 11, v{U+1}",
                                f"v_lshrrev_b32 v{U}, 4, v{vL0}", f"v_and_b32 v{U}, 0x30, v{U}", f"v_xor_b32 v{U}, v{U}, v{U+1}",
                                f"v_and_b32 v{U+1}, 0xf0, v{vL0}", f"v_lshl_add_u32 v{U}, v{U+1}, 3, v{U}",
                                f"v_sub_u32 v{U+1}, v{vLX}, v{vL0}", f"v_add_u32 v{vWA}, v{U}, v{U+1}", f"v_xor_b32 v{vWA+1}, 64, v{vWA}"):
                        items.append(lambda ins=ins: e(ins))
            xsrc = acc(bt % 4, bt // 4)[1] if (ot and j == 3) else ts
            def xl_prefetch(uu, seq=seq):
                def f():
                    wait(lg=x0l_lg[0])
                    e(f"ds_read_b128 {rng('v', T + 4*(uu % 3))}, v{vLX} offset:{seq[uu][1]*1024}")
                    xl_tag[uu] = LG.issue()
                return f
            if j < 3:
                for d in range(4): items.append(lambda d=d, j=j, bt=bt, ts=ts: e(f"v_accvgpr_read_b32 v{ts+d}, a{x0r(j, bt)+d}"))
            for h in range(2):
                k, b = acc(2 * j + h, bt)
                def first(h=h, ts=xsrc, u=u, j=j, ot=ot, bt=bt):
                    if j == 3: wait(lg=xl_tag[("m", bt) if ot else u])
                    e(f"v_lshlrev_b32 v{U}, 16, v{ts+2*h}")
                items.append(first)
                items.append(lambda h=h, ts=xsrc: e(f"v_and_b32 v{U+1}, s{sMASK}, v{ts+2*h}"))
                items.append(lambda h=h, ts=xsrc: e(f"v_lshlrev_b32 v{U+2}, 16, v{ts+2*h+1}"))
                items.append(lambda h=h, ts=xsrc: e(f"v_and_b32 v{U+3}, s{sMASK}, v{ts+2*h+1}"))
                if h == 0 and u + 2 < 32 and seq[u + 2][0] == 3 and not ot: items.append(xl_prefetch(u + 2))
                for r in range(4):
                    if k == "v":
                        items.append(lambda b=b, r=r: e(f"v_mul_f32 v{U+r}, v{U+r}, v{b+r}"))
                    else:
                        items.append(lambda b=b, r=r: e(f"v_accvgpr_read_b32 v{A+r}, a{b+r}"))
                        items.append(lambda r=r: e(f"v_mul_f32 v{U+r}, v{U+r}, v{A+r}"))
                items.append(lambda h=h, ts=ts: e(f"v_cvt_pk_bf16_f32 v{ts+2*h}, v{U}, v{U+1}"))
                items.append(lambda h=h, ts=ts: e(f"v_cvt_pk_bf16_f32 v{ts+2*h+1}, v{U+2}, v{U+3}"))
            if ot:
                def rbreg(j, bt, k): return ("a", x0r(k, bt)) if j < 2 else acc(4 + k, bt)
                def ost(j, bt, k):
                    def f():
                        wait(lg=xl_tag[("r", j // 2, bt, k)])
                        so = sXO + bt
                        if k: e(f"s_add_u32 s{sXST+2}, s{so}, 16384"); so = sXST + 2
                        e(f"buffer_store_dwordx4 {rng(*rbreg(j, bt, k))}, v{vGA}, {SOUT}, s{so} offen offset:{(j//2)*128} {P['OSC'] if (j < 2 or not P['OSC2']) else ''}")
                        VM.issue()
                        if P["DEEPT"] and j < 2: pool.append((rbreg(j, bt, k), NM))
                    return f
                if u < 4:
                    for k in range(2):
                        def mv(b2=2 * u + k):
                            e(f"ds_read_b128 {rng(*acc(b2 % 4, b2 // 4))}, v{vLX} offset:{b2*1024}")
                            xl_tag[("m", b2)] = LG.issue()
                        items.append(mv)
                def dwo(j=j, bt=bt, ts=ts):
                    e(f"ds_write_b128 v{vWA + j % 2}, {rng('v', ts)} offset:{(bt % 4)*2048}"); LG.issue()
                    if P["DEEPT"] and j < 2 and bt >= 2: pool.extend([(acc(2 * j, bt), NM), (acc(2 * j + 1, bt), NM)])
                items.append(dwo)
                if j % 2 == 1:
                    for k in range(2):
                        def rb(j=j, bt=bt, k=k):
                            e(f"ds_read_b128 {rng(*rbreg(j, bt, k))}, v{vRA} offset:{(bt % 4)*2048 + k*1024}")
                            xl_tag[("r", j // 2, bt, k)] = LG.issue()
                            if P["SPACE"] and j < 2: pend_st.append((cur_m[0] + 8, ost(j, bt, k)))
                        items.append(rb)
                    if P["SPACE"] and j < 2: pass
                    elif u in (15, 31): items += [lambda: e("s_nop 0")] * (0 if u == 31 else 6) + [ost(j, bt, 0), ost(j, bt, 1)]
                elif u not in (0, 16) and not (P["SPACE"] and j < 2): items += [ost(*seq[u - 1], 0), ost(*seq[u - 1], 1)]
            elif last:
                def st(j=j, bt=bt, ts=ts):
                    if P['NOOUT'] == 1 and not (j == 3 and bt == 7): return
                    if P['NOOUT'] == 2:
                        e(f"buffer_store_dwordx4 {rng('v', ts)}, v{vW0 if j < 2 else vW1}, {SWS}, s{sXST + (j%2)*2 + bt//4} offen offset:{(bt%4)*1024}")
                    else: e(f"buffer_store_dwordx4 {rng('v', ts)}, v{vXR}, {SOUT}, s{sXO+bt} offen offset:{j*64} {P['OSC']}")
                    VM.issue()
                    if P["DEEPT"] and j < 2:
                        pool.extend([(acc(2 * j, bt), NM), (acc(2 * j + 1, bt), NM), (("a", x0r(j, bt)), NM)])
                items.append(st)
            else:
                def dw(j=j, bt=bt, ts=ts, l=l):
                    off = j * 32768 + bt * 1024
                    e(f"ds_write_b128 v{vW0 if off < 65536 else vW1}, {rng('v', ts)} offset:{off % 65536}")
                    blk_lg[(l + 1, j)] = LG.issue()
                items.append(dw)
                def xs(j=j, bt=bt, ts=ts, l=l):
                    if P['NOST']: return
                    if P['XOUT']:
                        e(f"s_xor_b32 s{sXST+1}, s{sXST}, {(j*32 + bt)*2048}")
                        e(f"buffer_store_dwordx4 {rng('v', ts)}, v{vL0}, {SOUT}, s{sXST+1} offen {P['SSC']}")
                        st_tag[(l + 1, j)] = VM.issue()
                        return
                    e(f"buffer_store_dwordx4 {rng('v', ts)}, v{vW0 if j < 2 else vW1}, {SWS}, s{sXST + (j%2)*2 + bt//4} offen offset:{(bt%4)*1024} {P['SSC']}")
                    st_tag[(l + 1, j)] = VM.issue()
                items.append(xs)
            ready = max(M(l, LS(l, j), j, bt) + 8, prev_ready + (P["OPACE"] if (last and j < 2 and u > 0) else 0))
            if (P["XOUT"] and l >= 1) or (P["SAMEX"] and l == 1): ready = max(ready, gate[(l, (bt // 4) if last else (j // 2))] + 1)
            if last: prev_ready = ready
            dl = min(M(l + 1, 0, j, bt), 32 * RB(l + 1, j)) if not last else NM + 1
            if not last: ready = max(ready, free_at(l + 1, j))
            add_task(ready, dl, items)
    tasks.sort(key=lambda t: (t[0], t[1]))

    def run_items(m, n):
        k = 0
        while k < n and tasks and tasks[0][0] <= m:
            t = tasks[0]
            t[2].pop(0)(); k += 1
            if not t[2]: tasks.pop(0)
        return k
    def flush_deadlines(m):
        lastidx = -1
        for i, t in enumerate(tasks):
            if t[1] <= m: lastidx = i
            if t[0] > m: break
        n = 0
        for _ in range(lastidx + 1):
            t = tasks.pop(0)
            assert t[0] <= m, (t[0], m)
            for f in t[2]: f(); n += 1
        return n

    stall = 0
    CT = {1: {417: 2, 801: 3, 1057: 4, 1441: 5, 2593: 6, 2721: 7, 3105: 8, 3489: 9, 4641: 10, 4769: 11},
          2: {417: 2, 801: 3, 1057: 4, 1313: 5, 1441: 6, 2593: 7, 2977: 8, 3233: 9, 3489: 10, 4641: 11}}.get(P["CTM"])
    for m in range(NM):
        g, r = divmod(m, 32); l, s, rp, bt, sub = SEQ[m]; h, c = divmod(sub, 2); wg = GPOS[(l, s, rp)]
        ph = s // 2
        npre = 0
        stall += flush_deadlines(m)
        if m % 512 == 0: e(f"L_q{m//512}:")
        cur_m[0] = m
        if P["CTM"] == 0:
            if P["CPF"] and m % 512 == 33: npre += code_touch(m // 512 + P["CPF"]); touch_m.append(m)
        elif m in CT: npre += code_touch(CT[m]); touch_m.append(m)
        if P["STAMPS"] == 1 and m % 512 == 0: stamp()
        if 2 <= P["STAMPS"] < 9 and m % 128 == 0 and P["SG0"] <= m // 128 < P["SG0"] + 12: stamp()
        if P["STAMPS"] == 10 and r == 0 and P["SG0"] <= m // 32 < P["SG0"] + 12: stamp()
        if P["STAMPS"] == 9 and r == 0 and rp == 0 and l == 0 and 1 <= s < 6: stamp()
        if r == 0 and g in BARS:
            vms = []; lgt = None
            for nl in range(3):
                for nph in range(NPH(nl)):
                    if (nl, nph) != (0, 0) and RB(nl, nph) == g:
                        vms.append(half_tag[nph] if (nl == 0 and nph < P["HB"]) else blk_tag.get((nl, nph)))
                        lgt = blk_lg.get((nl, nph))
            for nph in range(P["HB"]):
                if RDG[(0, 2 * nph + 1)][0] == g: vms.append(blk_tag[(0, nph)])
            if g == G12: vms.append(pack_tag[2])
            if g in FLAGBAR: vms.append(st_tag.get(FLAGBAR[g]))
            vms = [t for t in vms if t is not None]
            wait(vm=max(vms) if vms else None, lg=lgt)
            if not P["NOBAR"]: e("s_barrier")
            npre += 2
        for f in pre_ev.get(m, []): npre += f()
        vmt = wtag[wg * 4 + 3] if FU[wg] == m else None
        lgt = btag[(1, bt)] if sub == 0 else None
        if FU[wg] == m:
            lw = [wlg[f] for f in range(wg * 4, wg * 4 + 4) if f in wlg]
            if lw: lgt = max(lw + ([lgt] if lgt is not None else []))
        npre += wait(vm=vmt, lg=lgt)
        k, b = acc(2 * rp + h, bt)
        d = rng(k, b)
        e(f"v_mfma_f32_16x16x32_bf16 {d}, {rng(*wslot[wg*4 + sub][0])}, {rng('a', bop(l, s, c, bt))}, {'1.0' if (l == 0 and s == 0 and c == 0) else d}")
        npost = 0
        if LU[wg * 4 + sub] == m:
            pool.append(wslot[wg * 4 + sub])
            npost += wload()
        elif m % P["RAMP"] == 1:
            npost += wload()
        if m in BRD and not P['NOJIT']:
            npost += bread(BRD[m][0], BRD[m][1], c, bt)
        for f in post_ev.get(m, []): npost += f()
        if pend_st and m >= next_st[0] and m >= pend_st[0][0]:
            pend_st.pop(0)[1](); npost += 1; next_st[0] = m + P["SPACE"]
        run_items(m, CAP - npost - npre)
    if P["STAMPS"] == 3: stamp()
    e("s_nop 7")
    n = 0
    assert not pend_st
    while tasks: n += run_items(NM + 100, 1000)
    sys.stderr.write(f"forced items {stall}, tail items {n}\n")
    if P["STAMPS"]:
        stamp()
        if P["STAMPS"] == 3: e("s_waitcnt vmcnt(0)"); stamp()
        e("s_waitcnt lgkmcnt(0)")
        ns = nstamp[0]
        assert ns <= 16
        for i in range(ns): e(f"v_mov_b32 v{32+i}, s{sSTAMP+2*i}")
        e(f"s_lshl_b32 s{sTMP}, s2, 8"); e(f"s_lshl_b32 s3, s{sW}, 6"); e(f"s_add_u32 s{sTMP}, s{sTMP}, s3")
        for i in range(0, 16, 4):
            e(f"buffer_store_dwordx4 {rng('v', 32+i)}, off, {SWS}, s{sTMP} offset:{i*4}")
    e("s_cmp_lg_u32 s2, 0"); e("s_cbranch_scc1 L_end")
    e(f"s_cmp_lg_u32 s{sW}, 0"); e("s_cbranch_scc1 L_end")
    e(f"v_mov_b32 v{vP}, s{sT}"); e(f"v_mov_b32 v{vP+1}, s{sT+1}"); e("s_mov_b64 exec, 1")
    e(f"s_mov_b32 s{sTMP}, {EPOCH_OFF}")
    e(f"buffer_store_dwordx2 {rng('v', vP, 2)}, off, {SWS}, s{sTMP}")
    e("L_end:")
    e("s_endpgm")
    for val in spins:
        e(f"L_spin{val}:")
        e(f"s_mov_b32 s{sSPIN}, 0x40000")
        e(f"L_spinl{val}:")
        e("s_sleep 1")
        e(f"buffer_load_dwordx2 {rng('v', vP, 2)}, off, {SWS}, s{sPFLAG} sc1")
        e(f"s_sub_u32 s{sSPIN}, s{sSPIN}, 1")
        e("s_waitcnt vmcnt(0)")
        e(f"s_cmp_eq_u32 s{sSPIN}, 0"); e(f"s_cbranch_scc1 L_back{val}")
        flagchk(val, f"L_spinl{val}")
        e(f"s_branch L_back{val}")
    for val in (0, 1):
        e(f"L_wspin{val}:")
        e(f"s_mov_b32 s{sSPIN}, 0x40000")
        e(f"L_wspinl{val}:")
        e("s_sleep 2")
        wpoll0()
        e(f"s_sub_u32 s{sSPIN}, s{sSPIN}, 1")
        e("s_waitcnt vmcnt(0)")
        e(f"s_cmp_eq_u32 s{sSPIN}, 0"); e(f"s_cbranch_scc1 L_wback{val}")
        wflagchk(val, f"L_wspinl{val}")
        e(f"s_branch L_wback{val}")

LAUNCH = "; @launch grid=(256,1,1) block=(256,1,1) lds=163840"
hdr = f"""; DCN-v2 cross network, 3 layers, B=16384, D=1024, bf16.  Generated by dev/gen.py (hand-written generator).
{LAUNCH}
.amdgcn_target "amdgcn-amd-amdhsa--gfx950"
.text"""
main_kernel()
if P['CPF']: e('.fill 4096, 4, 0xBF800000')
def kd(name, vg, ao, sg):
    return f""".p2align 6
.amdhsa_kernel {name}
  .amdhsa_next_free_vgpr {vg}
  .amdhsa_next_free_sgpr {sg}
  .amdhsa_accum_offset {ao}
  .amdhsa_group_segment_fixed_size 0
  .amdhsa_kernarg_size 48
  .amdhsa_user_sgpr_count 2
  .amdhsa_user_sgpr_kernarg_segment_ptr 1
  .amdhsa_system_sgpr_workgroup_id_x 1
.end_amdhsa_kernel
"""
tail = '\n.section .rodata,"a"\n' + kd(KN, 512, 256, 102)
open(out, "w").write(hdr + "\n" + "\n".join(L) + tail)
```

```python
import sys
out = sys.argv[1]
P = dict(CAP=2, DLEAD=2, DSPREAD=32, STAMPS=0, XSC="sc1", SSC="sc1", POLL_M=64, BIAS_S=11, NOSYNC=0, XDSPREAD=24,
         DOFF=2, NODMA=0, NOBAR=0, NOW=0, NOJIT=0, NOST=0, DEEP=1, XCHK=192, STOFF=5, STSPREAD=20, RAMP=4, XSMALL=0, NOOUT=0, XSTR=131072+1024, CPF=2, ONLY=0, RT=0, WSC=1, OX=0, XL=0, XLM=1100, TX=0, XD2=550, XC2=0, RFS=16, SPACE=0, SPACE2=0, T3=0, XP=0, OT=0, OSC2=0, XOUT=0, XMASK=31, CA1=1600, CB1=1960, CA2=1470, CB2=1640, SAMEX=0, PORD=0, D4=0, D5=0, CTM=0, XALT=0, OI=0, OPACE=0, DEEPT=0, OSC="", SG0=1, HH=4, TT=4, TL=8, TL2=4, XBA=9, XD0=550, XDS=30, XDL=24, BS0=9,  PTOUCH=0, HB=4, C12=5, B1M=34, B1S=8, UDS=4, U3D=0, U5D=64, U4D=98, B3=262, B3S=24, M12=14,  NSELF=6, FB=0, WCHK=280, WPOLL=64, B2=132, B2S=16, BLK1E=1, U2M=40, U3M=100, U5M=200, U4M=226)
for kv in sys.argv[2:]:
    k, v = kv.split("=")
    P[k] = v.replace("+", " ").replace("none", "") if k in ("XSC", "SSC", "OSC") else int(v)
CAP = P["CAP"]

KN = "standalone__cross_network_dcn__recsys_kernel"
PK = "dcn_pack_kernel"
WP_OFF = 0x100000
FLAG_OFF = 0x800000
X_OFF = P.get("XOFF", 0x1000000)
L = []
def e(s): L.append(s)

class Ctr:
    def __init__(s, name, mx): s.name, s.mx, s.n, s.done = name, mx, 0, 0
    def issue(s):
        s.n += 1
        return s.n - 1
    def need(s, idx):
        if idx is None or idx < s.done: return None
        N = min(s.n - 1 - idx, s.mx)
        s.done = max(s.done, s.n - N)
        return N
cur_m = [0]; touch_m = []
VM = Ctr("vmcnt", 63); LG = Ctr("lgkmcnt", 15)
def wait(vm=None, lg=None):
    a = VM.need(vm); b = LG.need(lg)
    parts = []
    if a is not None: parts.append(f"vmcnt({a})")
    if b is not None:
        parts.append(f"lgkmcnt({b})")
        if touch_m: sys.stderr.write(f"touch at {touch_m[0]}: next lgkm wait after {cur_m[0] - touch_m[0]} (N={b})\n"); touch_m.clear()
    if parts:
        e("s_waitcnt " + " ".join(parts)); return 1
    return 0
def wait_lg_all():
    e("s_waitcnt lgkmcnt(0)"); LG.done = LG.n

vL0, vK, vXR, vW0, vW1, vLX, vB, vP = 0, 1, 5, 6, 7, 8, 9, 10
T = 12
def acc(a, bt):
    if a < 7:
        b = 32 + (a * 8 + bt) * 4
        return ("v", b)
    return ("a", 224 + bt * 4)
def rng(k, b, n=4): return f"{k}[{b}:{b+n-1}]"
def x0r(j, bt): return (j * 8 + bt) * 4
def breg(c, bt): return 96 + (c * 8 + bt) * 4
SX0, SOUT, SWS, SBS, SWR = "s[12:15]", "s[16:19]", "s[20:23]", "s[24:27]", "s[4:7]"
sT, sSELF, sS2 = 8, 10, 11
EPOCH_OFF = 0x810000
sW, sHF, sWOFF, sW2048, sW8192, sMASK, sTMP, sFLAG, sPFLAG, sBOFF, sSPIN, sTMP2 = 28, 29, 30, 31, 32, 33, 34, 35, 36, 37, 38, 39
sXO = 40
sXOWN = 48
sXOTH = 50
sXST = 52
sXLD = 56
sSTAMP = 60
nstamp = [0]
def pstamp():
    if P["STAMPS"] == 9: stamp()
def stamp():
    if P["STAMPS"]:
        e(f"{'s_memrealtime' if P['RT'] else 's_memtime'} s[{sSTAMP+2*nstamp[0]}:{sSTAMP+2*nstamp[0]+1}]"); nstamp[0] += 1
NM = 3 * 2048
ORDER = []
for l in range(3):
    H = P["HH"] if l > 0 else 0
    Tn = P["TT"] if l < 2 else P["TL"]
    T2 = P["TL2"] if l == 2 else 0
    ORDER += [(l, s, rp) for s in range(H) for rp in (0, 1)] + [(l, s, rp) for s in range(H) for rp in (2, 3)]
    if l == 2 and P["TX"]:
        assert H == 4 and T2 == 0
        ORDER += [(l, s, rp) for s in range(4, 16) for rp in (0, 1)]
        ORDER += [(l, s, rp) for s in list(range(8, 16)) + list(range(4, 8)) for rp in (2, 3)]
        continue
    ORDER += [(l, s, rp) for s in range(H, 16 - Tn) for rp in range(4)]
    ORDER += [(l, s, rp) for s in range(16 - Tn, 16) for rp in (0, 1)]
    ORDER += [(l, s, rp) for s in range(16 - Tn, 16 - T2) for rp in (2, 3)]
    ORDER += [(l, s, 2) for s in range(16 - T2, 16)] + [(l, s, 3) for s in range(16 - T2, 16)]
assert len(set(ORDER)) == 192
GPOS = {k: i for i, k in enumerate(ORDER)}
def LS(l, rp): return 7 if (P["TX"] and l == 2 and rp >= 2) else 15
def VS(l, s, rp): return s + 12 if (P["TX"] and l == 2 and 4 <= s < 8 and rp >= 2) else s
NPH = lambda l: 10 if (P["TX"] and l == 2) else 8
SEQ = [(l, s, rp, bt, sub) for (l, s, rp) in ORDER[:192 - 2 * P["T3"]] for bt in range(8) for sub in range(4)]
if P["T3"]:
    assert P["TL2"] == 0 and P["T3"] <= P["TL"]
    SEQ += [(2, s, rp, bt, sub) for hb in range(2) for s in range(LS(2, 3) + 1 - P["T3"], LS(2, 3) + 1) for bt in range(4 * hb, 4 * hb + 4) for rp in (2, 3) for sub in range(4)]
assert len(set(SEQ)) == NM
POS = {k: i for i, k in enumerate(SEQ)}
M = lambda l, s, rp=0, bt=0, sub=0: POS[(l, s, rp, bt, sub)]
FU = {}; LU = {}
for m_, (l_, s_, rp_, bt_, sub_) in enumerate(SEQ):
    FU.setdefault(GPOS[(l_, s_, rp_)], m_); LU[GPOS[(l_, s_, rp_)] * 4 + sub_] = m_
BRD = {}; RDG = {}; _last = {}
for m_, (l_, s_, rp_, bt_, sub_) in enumerate(SEQ):
    k_ = (sub_ % 2, bt_); s_ = VS(l_, s_, rp_)
    if k_ in _last and _last[k_][1] != (l_, s_):
        BRD[_last[k_][0]] = (l_, s_)
        if _last[k_][0] // 32 not in RDG.setdefault((l_, s_), []): RDG[(l_, s_)].append(_last[k_][0] // 32)
    _last[k_] = (m_, (l_, s_))
for v_ in RDG.values(): v_.sort()
def RB(l, ph): return min(RDG[(l, 2 * ph)] + RDG[(l, 2 * ph + 1)])
def LRD(l, ph): return max(RDG.get((l, 2 * ph), [-1]) + RDG[(l, 2 * ph + 1)])
BARS = set(RB(l, ph) for l in range(3) for ph in range(NPH(l)) if (l, ph) != (0, 0))
if P["TX"]: BARS |= {LRD(2, 4) + 2, LRD(2, 5) + 2}
BARS |= set(RDG[(0, 2 * ph + 1)][0] for ph in range(P["HB"]))
BARS |= set(64 * l + P["XBA"] for l in (1, 2))
def free_at(l, ph):
    pl, pp = (l, ph - 4) if ph >= 4 else (l - 1, ph + 4)
    if pl < 0: return 0
    return 32 * min(b for b in BARS if b >= LRD(pl, pp) + 2)

CAPS = (4, 6, 12, 14) if P["XALT"] == 3 else (8, 10, 12, 14)
def own0(ph): return ph % 4 >= 2 if P["XALT"] == 3 else ph >= 4
def bop(l, s, c, bt):
    if P['DEEP'] < 2 and l == 0 and c == 0 and s in CAPS[:3]: return x0r(CAPS.index(s), bt)
    return breg(c, bt)

def main_kernel():
    e(f".globl {KN}"); e(".p2align 8"); e(f".type {KN},@function"); e(f"{KN}:")
    e("s_cmp_ge_u32 s2, 256"); e("s_cbranch_scc1 L_end")
    if P["PTOUCH"]:
        e("s_getpc_b64 s[92:93]")
        e("v_lshrrev_b32 v12, 6, v0"); e("s_lshr_b32 s94, s2, 3"); e("v_readfirstlane_b32 s95, v12")
        e("s_and_b32 s94, s94, 15"); e("s_lshl_b32 s94, s94, 2"); e("s_add_u32 s94, s94, s95"); e("s_lshl_b32 s94, s94, 7")
        e("s_add_u32 s92, s92, s94"); e("s_addc_u32 s93, s93, 0")
        e("s_load_dword s98, s[92:93], 0")
    e("s_load_dwordx4 s[4:7], s[0:1], 0")
    e("s_load_dwordx4 s[8:11], s[0:1], 16")
    e("s_load_dwordx4 s[40:43], s[0:1], 32")
    stamp()
    e("v_lshrrev_b32 v12, 6, v0")
    e("v_and_b32 v13, 63, v0")
    e(f"v_readfirstlane_b32 s{sW}, v12")
    e(f"v_lshlrev_b32 v{vL0}, 4, v13")
    for k in range(4): e(f"v_add_u32 v{vK+k}, {k*8192}, v{vL0}")
    e(f"v_lshl_add_u32 v{vW0}, v12, 13, v{vL0}")
    e(f"v_add_u32 v{vW1}, 0x10000, v{vW0}")
    e(f"v_add_u32 v{vLX}, 0x20000, v{vW0}")
    e("v_and_b32 v14, 15, v13"); e("v_lshrrev_b32 v15, 4, v13")
    e(f"v_lshlrev_b32 v{vB}, 4, v15")
    e(f"v_lshl_add_u32 v{vXR}, v14, 11, v{vB}")
    if P["XP"]:
        assert P["OT"] and P["XALT"] == 3
        e("v_mov_b32 v18, 0x78")
        e("v_lshlrev_b32 v16, 1, v15"); e("v_lshrrev_b32 v16, v16, v18"); e("v_xor_b32 v17, v16, v13"); e("v_and_b32 v17, 3, v17"); e("v_lshlrev_b32 v17, 4, v17")
        e("v_lshrrev_b32 v16, 2, v13"); e(f"v_lshl_add_u32 v{vXR}, v16, 11, v17")
        e("v_lshrrev_b32 v16, 1, v14"); e("v_and_b32 v16, 6, v16"); e("v_lshrrev_b32 v16, v16, v18"); e("v_xor_b32 v16, v16, v15"); e("v_and_b32 v16, 3, v16")
        e("v_lshlrev_b32 v16, 4, v16"); e("v_lshl_add_u32 v16, v14, 6, v16")
        for k in range(4): e(f"v_add_u32 v{vK+k}, {k*8192}, v16")
    e("s_and_b32 s3, s2, 7"); e(f"s_lshr_b32 s{sTMP}, s2, 4"); e(f"s_lshl_b32 s{sTMP}, s{sTMP}, 3"); e(f"s_or_b32 s3, s3, s{sTMP}")
    e(f"s_lshr_b32 s{sHF}, s2, 3"); e(f"s_and_b32 s{sHF}, s{sHF}, 1")
    e(f"s_lshl_b32 s{sW2048}, s{sW}, 11"); e(f"s_lshl_b32 s{sW8192}, s{sW}, 13")
    e(f"s_mov_b32 s{sMASK}, 0xffff0000")
    if P["XP"]: e(f"s_add_u32 s101, s{sW8192}, 0x10000")
    if P["XL"]: e("s_getreg_b32 s101, hwreg(HW_REG_XCC_ID, 0, 4)")
    e("s_lshl_b32 s3, s3, 18")
    e(f"s_lshl_b32 s{sTMP2}, s{sHF}, 2"); e(f"s_add_u32 s{sTMP2}, s{sTMP2}, s{sW}")
    e(f"s_lshl_b32 s{sBOFF}, s{sTMP2}, 8")
    e(f"s_lshl_b32 s{sTMP}, s{sW}, 16"); e(f"s_add_u32 s{sTMP}, s{sTMP}, s3")
    e(f"s_lshl_b32 s{sXOWN}, s{sHF}, 10"); e(f"s_xor_b32 s{sXOTH}, s{sXOWN}, 1024")
    e(f"s_add_u32 s{sXOWN}, s{sXOWN}, s{sTMP}"); e(f"s_add_u32 s{sXOTH}, s{sXOTH}, s{sTMP}")
    e(f"s_add_u32 s{sXOWN+1}, s{sXOWN}, 32768"); e(f"s_add_u32 s{sXOTH+1}, s{sXOTH}, 32768")
    e(f"s_mul_i32 s{sWOFF}, s{sTMP2}, {3*8*32768}"); e(f"s_add_u32 s{sWOFF}, s{sWOFF}, {WP_OFF + P['NSELF']*8192}")
    e("s_waitcnt lgkmcnt(0)")
    pstamp()
    for (s, ptr, n) in ((24, 8, 6144), (12, 4, 0x2000000), (20, 42, 0x10000000), (16, 10, 0x2000000), (4, 6, 0x600000)):
        e(f"s_mov_b32 s{s}, s{ptr}"); e(f"s_and_b32 s{s+1}, s{ptr+1}, 0xffff"); e(f"s_mov_b32 s{s+2}, {hex(n)}"); e(f"s_mov_b32 s{s+3}, 0x20000")

    def bias_load(l, j):
        e(f"buffer_load_dwordx4 {rng('v', T+4*j)}, v{vB}, {SBS}, s{sBOFF} offen offset:{(l*2048 + j*64) % 4096}")
        return VM.issue()
    wtag = {}; wslot = {}; wlg = {}
    wok = [0]
    wload_n = [0]
    pool = [(("a", 160 + 4 * i), NM) for i in range(16)]
    if P["DEEP"]:
        for j in ((0, 1, 2) if P["PORD"] else (2, 1, 0)):
            if P["DEEP"] >= 2 and j >= P["DEEP"] - 1: continue
            pool += [(("a", x0r(j, bt)), 32 * RDG[(0, CAPS[j])][0] if P["DEEP"] < 2 else NM) for bt in range(8)]
    def last_use(f): return LU[f]
    def wload():
        f = wload_n[0]
        if f >= wok[0]: return 0
        while pool and pool[0][1] <= last_use(f): pool.pop(0)
        if not pool: return 0
        sl = pool.pop(0)
        wslot[f] = sl
        wload_n[0] += 1
        if P['NOW'] and f >= 16:
            wtag[f] = None; return 0
        k = f % 4
        e(f"buffer_load_dwordx4 {rng(*sl[0])}, v{vL0}, {SWS}, s{sWOFF} offen offset:{k*1024}{' sc1' if P['WSC'] else ''}")
        wtag[f] = VM.issue()
        n = 1
        if k == 3 and f + 1 < 768:
            lin = lambda g: ORDER[g][0] * 64 + ORDER[g][1] * 4 + ORDER[g][2]
            e(f"s_add_u32 s{sWOFF}, s{sWOFF}, {hex(((lin(f // 4 + 1) - lin(f // 4)) * 4096) & 0xffffffff)}"); n += 1
        return n
    def x0_io(ph, ksl):
        if P["XALT"] == 3:
            if own0(ph): return ksl * 256 + ((ph // 4) * 2 + ph % 2) * 64
            return (2 * (ph % 2) + (ksl >> 1)) * 256 + (2 * (ph // 4) + (ksl & 1)) * 64
        if P["XALT"] == 1: return (ph // 2) * 256 + ksl * 64
        if P["XALT"] == 2: return ((ph // 4) * 2 + ph % 2) * 256 + ksl * 64
        return ph * 256 + ksl * 64 if ph < 4 else ksl * 256 + (ph - 4) * 64
    m0own = [None]
    def dma_x0_m0(ph, ksl, i):
        m0own[0] = ("x", ph, ksl, i)
        lo = (ph % 4)*32768 + ksl*8192 + i*1024
        e(f"s_add_u32 m0, s{sW2048}, {lo - x0_io(ph, ksl) if lo >= x0_io(ph, ksl) else lo}")
    def dma_x0_ld(ph, ksl, i):
        assert m0own[0] == ("x", ph, ksl, i)
        so = (sXOWN if own0(ph) else sXOTH) + i
        if P["XALT"] == 1: so = (sXOTH if ph % 2 == 0 else sXOWN) + i
        if P["XALT"] == 2: so = (sXOTH if ph % 4 < 2 else sXOWN) + i
        io = x0_io(ph, ksl)
        if (ph % 4)*32768 + ksl*8192 + i*1024 < io:
            e(f"s_add_u32 s{sS2}, s{so}, {io}"); so = sS2; io = 0
        e(f"buffer_load_dwordx4 v{vXR}, {SX0}, s{so} offen offset:{io} lds")
        return VM.issue()
    blk_tag = {}
    blk_lg = {}
    st_tag = {}

    UB = T + 16
    vSG, vCG, vCT, vFL, vTR, vTR4 = 12, 13, 14, 15, 16, 20
    def code_touch(q):
        if q > 11: return 0
        e(f"s_add_u32 s96, s92, L_q{q}-L_pc"); e("s_addc_u32 s97, s93, 0")
        e("s_load_dword s98, s[96:97], 0")
        return 3
    e(f"s_add_u32 s96, s42, {EPOCH_OFF}"); e("s_addc_u32 s97, s43, 0")
    e(f"s_load_dwordx2 s[{sT}:{sT+1}], s[96:97], 0")
    e("v_mov_b32 v24, v12"); e("v_mov_b32 v25, v13"); e("v_mov_b32 v26, v14"); e("v_mov_b32 v27, v15")
    e("v_lshrrev_b32 v28, 2, v25"); e("v_and_b32 v29, 3, v25")
    e(f"v_lshlrev_b32 v{vCG}, 11, v28"); e(f"v_lshl_add_u32 v{vCG}, v29, 4, v{vCG}")
    e(f"s_lshr_b32 s44, s2, 3"); e("s_and_b32 s45, s2, 7")
    e("s_lshl_b32 s46, s44, 16"); e("s_lshl_b32 s47, s45, 8"); e("s_add_u32 s46, s46, s47")
    e(f"s_lshl_b32 s47, s{sW}, 6"); e("s_add_u32 s100, s46, s47")
    coop_tag = {}
    def coop_dma(l, n):
        m0own[0] = None
        e(f"s_add_u32 m0, s{sW2048}, {(32768 if l == 0 else 131072) + l*8192 + n*1024}")
        e(f"s_add_u32 s{sS2}, s100, {l*0x200000 + n*32768}")
        e(f"buffer_load_dwordx4 v{vCG}, {SWR}, s{sS2} offen lds"); coop_tag[l] = VM.issue()
        return 3
    coop_dma(0, 0); coop_dma(0, 1)
    pstamp()
    e(f"v_lshlrev_b32 v30, 2, v27"); e("v_xor_b32 v30, v30, v26"); e("v_lshlrev_b32 v30, 4, v30")
    e(f"v_lshl_add_u32 v{vSG}, v27, 11, v30")
    e(f"s_xor_b32 s{sSELF}, s{sHF}, 1"); e(f"s_lshl_b32 s{sSELF}, s{sSELF}, 20"); e(f"s_add_u32 s{sSELF}, s{sSELF}, s{sBOFF}")
    REG = {0: 2, 1: 3, 2: 4, 3: 2, 4: 4, 5: 3}
    self_tag = {}; self_lg = {}
    def self_dma1(n, ch):
        m0own[0] = None
        e(f"s_add_u32 m0, s{sW2048}, {REG[n]*32768 + (ch>>1)*8192 + (ch&1)*1024}")
        rb = (n >> 1) * 4 + (n & 1) if P["XALT"] == 3 else n
        e(f"s_add_u32 s{sS2}, s{sSELF}, {rb*65536 + ch*8192}")
        e(f"buffer_load_dwordx4 v{vSG}, {SWR}, s{sS2} offen lds"); self_tag[n] = VM.issue()
        return 3
    def self_dma(n):
        for ch in range(8): self_dma1(n, ch)
    def self_read1(n, a, u):
        j, h = divmod(a, 2)
        f = ((n // 2) * 4 + j) * 4 + 2 * h + n % 2
        w_ = 0
        if a == 0 and u == 0: w_ = wait(vm=self_tag[n])
        if u == 0:
            while pool[0][1] <= last_use(f): pool.pop(0)
            wslot[f] = pool.pop(0)
        k, b = wslot[f][0]
        R = REG[n]
        e(f"ds_read_b64_tr_b16 {rng(k, b+2*u, 2)}, v{(vTR4 if R == 4 else vTR)+j} offset:{(R % 2)*32768 + u*1024 + 8*h}")
        self_lg[n] = wlg[f] = LG.issue(); wtag[f] = None
        return 1 + w_
    half_tag = {}
    def blk_dma(ph, hv):
        for ksl in (2 * hv, 2 * hv + 1):
            for i in range(2):
                dma_x0_m0(ph, ksl, i); e("s_nop 0")
                blk_tag[(0, ph)] = dma_x0_ld(ph, ksl, i)
        if hv == 0: half_tag[ph] = blk_tag[(0, ph)]
    self_dma(0); self_dma(1); blk_dma(0, 0)
    pstamp()
    e("v_bfe_u32 v28, v25, 2, 2")
    e(f"v_lshlrev_b32 v30, 11, v24"); e("v_lshl_add_u32 v30, v29, 4, v30")
    e("v_lshrrev_b32 v31, 1, v27"); e(f"v_lshl_add_u32 v{vCT}, v31, 10, v30")
    e("v_and_b32 v31, 1, v27"); e("v_lshl_add_u32 v31, v31, 3, v28"); e(f"v_lshl_add_u32 v{vCT}, v31, 6, v{vCT}")
    e(f"v_add_u32 v{vCT}, 0x8000, v{vCT}")
    e("v_lshl_add_u32 v30, v27, 13, v30"); e("v_lshl_add_u32 v30, v28, 8, v30"); e("v_add_u32 v30, 0x10000, v30")
    for j in range(4):
        e(f"v_xor_b32 v31, {j}, v28"); e(f"v_lshl_add_u32 v{vTR+j}, v31, 6, v30"); e(f"v_add_u32 v{vTR4+j}, 0x10000, v{vTR+j}")
    e("s_lshr_b32 s40, s44, 2"); e("s_and_b32 s41, s44, 3"); e("s_and_b32 s42, s45, 4")
    e("s_xor_b32 s42, s40, s42")
    e("s_and_b32 s43, s42, 3")
    e("s_and_b32 s46, s45, 3"); e("s_xor_b32 s46, s43, s46")
    e("s_and_b32 s47, s42, 4"); e("s_or_b32 s47, s47, s41")
    def dcalc(d, ph, ka):
        e(f"s_lshl_b32 s{d}, s{ph}, 15")
        e(f"s_lshr_b32 s{sTMP}, s{ka}, 1"); e(f"s_lshl_b32 s{sTMP}, s{sTMP}, 14"); e(f"s_add_u32 s{d}, s{d}, s{sTMP}")
        e(f"s_and_b32 s{sTMP}, s{ka}, 1"); e(f"s_lshl_b32 s{sTMP}, s{sTMP}, 10"); e(f"s_add_u32 s{d}, s{d}, s{sTMP}")
    dcalc(57, 47, 46)
    if P["XALT"] == 3:
        e("s_and_b32 s47, s41, 1"); e("s_and_b32 s40, s43, 1"); e("s_lshl_b32 s40, s40, 1"); e("s_or_b32 s40, s40, s47")
        e("s_or_b32 s47, s47, 2"); e("s_lshr_b32 s43, s43, 1")
        e("s_cmp_lt_u32 s42, 4")
        e("s_cselect_b32 s47, s47, s43"); e("s_cselect_b32 s46, s46, s40")
        e("s_lshr_b32 s40, s41, 1"); e("s_lshl_b32 s40, s40, 2"); e("s_or_b32 s47, s47, s40")
    else:
        e("s_xor_b32 s47, s47, 4")
        e("s_cmp_lt_u32 s42, 4")
        e("s_cselect_b32 s47, s47, s43"); e("s_cselect_b32 s46, s46, s41")
    dcalc(58, 47, 46)
    e(f"s_mul_i32 s40, s45, {3*262144}"); e(f"s_lshl_b32 s41, s{sW}, 12"); e("s_add_u32 s40, s40, s41"); e(f"s_add_u32 s40, s40, {WP_OFF}")
    e("s_add_u32 s57, s40, s57"); e("s_add_u32 s58, s40, s58")
    e("s_add_u32 s57, s57, 262144"); e("s_add_u32 s99, s57, 262144")
    CD = {0: 58, 1: 57, 2: 99}
    e("s_getpc_b64 s[92:93]")
    e("L_pc:")
    e(f"s_lshr_b32 s94, s2, 3"); e(f"s_lshl_b32 s94, s94, 2"); e(f"s_add_u32 s94, s94, s{sW}")
    e(f"s_lshl_b32 s94, s94, 7")
    e("s_add_u32 s92, s92, s94"); e("s_addc_u32 s93, s93, 0")
    for q in range(P["CPF"]): code_touch(q)
    e(f"s_xor_b32 s{sPFLAG}, s2, 8")
    e(f"s_mul_i32 s{sXST}, s2, {P['XSTR']}"); e(f"s_add_u32 s{sXST}, s{sXST}, {X_OFF}")
    e(f"s_mul_i32 s{sXLD}, s{sPFLAG}, {P['XSTR']}"); e(f"s_add_u32 s{sXLD}, s{sXLD}, {X_OFF}")
    e(f"s_add_u32 s{sXLD}, s{sXLD}, s{sW8192}")
    for k in range(1, 4): e(f"s_add_u32 s{sXST+k}, s{sXST}, {(k//2)*32768 + (k%2)*4096}")
    if P["XOUT"]:
        e(f"s_lshr_b32 s{sXST}, s3, 7"); e(f"s_and_b32 s{sXST}, s{sXST}, {P['XMASK'] << 11}")
        e(f"s_lshl_b32 s{sXLD}, s{sW}, 14"); e(f"s_xor_b32 s{sXST}, s{sXST}, s{sXLD}")
        e(f"s_lshl_b32 s{sXLD}, s{sHF}, 10"); e(f"s_or_b32 s{sXST}, s{sXST}, s{sXLD}"); e(f"s_or_b32 s{sXST}, s{sXST}, s3")
        e(f"s_xor_b32 s{sXLD}, s{sXST}, 1024")
    e(f"s_lshl_b32 s{sFLAG}, s2, 7"); e(f"s_add_u32 s{sFLAG}, s{sFLAG}, {FLAG_OFF}")
    e(f"s_xor_b32 s{sPFLAG}, s{sFLAG}, {8*128}")
    e(f"s_lshr_b32 s59, s{sBOFF}, 1"); e(f"s_add_u32 s59, s59, {FLAG_OFF}")
    stamp()
    ct = {}; pack_tag = {}
    def creg(l, h): return ('a', 96 + h * 4) if l == 0 else ('v', 16 + ((l - 1) * 2 + h) * 4)
    def coop_read(l, h, u):
        w_ = wait(vm=coop_tag[l])
        k, b = creg(l, h)
        e(f"ds_read_b64_tr_b16 {rng(k, b + 2*u, 2)}, v{vCT} offset:{l*8192 + u*256 + h*8}")
        ct[(l, h)] = LG.issue(); return 1 + w_
    def coop_store(l, h):
        w_ = wait(lg=ct[(l, h)])
        e(f"buffer_store_dwordx4 {rng(*creg(l, h))}, v{vL0}, {SWS}, s{CD[l]} offen offset:{h*2048} sc1")
        pack_tag[l] = VM.issue(); return 1 + w_
    wait(vm=coop_tag[0])
    pstamp()
    for h in range(2):
        for u in range(2): coop_read(0, h, u)
    for h in range(2): coop_store(0, h)
    e(f"v_add_u32 v{vCT}, 0x18000, v{vCT}")
    blk_dma(0, 1); self_dma(2)
    pstamp()
    wait_lg_all()
    e(f"s_add_u32 s{sT}, s{sT}, 16"); e(f"s_addc_u32 s{sT+1}, s{sT+1}, 0")
    e(f"s_and_b32 s{sT}, s{sT}, -16"); e(f"s_and_b32 s{sT+1}, s{sT+1}, 0x7fffffff")
    e(f"s_add_u32 s{sXO}, s3, s{sBOFF}")
    for bt in range(1, 8): e(f"s_add_u32 s{sXO+bt}, s{sXO}, {bt*32768}")
    pstamp()
    for n in (0, 1):
        for a in range(8):
            for u in range(2): self_read1(n, a, u)
    pstamp()
    wait(vm=half_tag[0] if P["HB"] else blk_tag[(0, 0)])
    if P["FB"] == 0: wait(vm=pack_tag[0])
    e("s_barrier")
    stamp()
    def setflag(val):
        e(f"s_cmp_lg_u32 s{sW}, 0"); e(f"s_cbranch_scc1 L_nf{val}")
        if P["XL"] and val >= 2:
            e("s_cmp_lg_u32 s101, 0"); e(f"s_cbranch_scc1 L_nw{val}")
            e("buffer_wbl2 sc1"); e("s_waitcnt vmcnt(0)")
            e(f"L_nw{val}:")
        e(f"s_add_u32 s{sTMP}, s{sT}, {val}")
        e(f"v_mov_b32 v{vP}, s{sTMP}"); e(f"v_mov_b32 v{vP+1}, s{sT+1}"); e("s_mov_b64 exec, 1")
        e(f"buffer_store_dwordx2 {rng('v', vP, 2)}, off, {SWS}, s{sFLAG} sc1")
        if P["XL"] and val == 0:
            e("s_nop 3")
            e(f"v_add_u32 v{vP}, s101, v{vP}")
            e(f"buffer_store_dwordx2 {rng('v', vP, 2)}, off, {SWS}, s{sFLAG} offset:64 sc1")
        e("s_mov_b64 exec, -1")
        e(f"L_nf{val}:")
        return 2
    if P["FB"] == 0: setflag(0)
    wload_n[0] = 8 * P["NSELF"]
    btag = {}
    kst = {k: (0, 0) for k in range(4)}
    capt = set()
    def bread(l, s, c, bt):
        kap = (s % 2) * 2 + c
        if bop(l, s, c, bt) < 96:
            if (s, bt) in capt: return 0
            capt.add((s, bt))
        n = 1
        want = (0 if (l == 0 and not own0(s // 2)) else 1, (s // 4) % 2)
        if kst[kap] != want and P["XP"] and l == 0:
            assert kst[kap] == (1 - want[0], 1 - want[1])
            e(f"v_xor_b32 v{vK+kap}, s101, v{vK+kap}"); kst[kap] = want; n += 1
        elif kst[kap] != want:
            e(f"v_xor_b32 v{vK+kap}, {hex(kap*8192 + want[1]*65536)}, v{vW0 if want[0] else vL0}"); kst[kap] = want; n += 1
        off = ((s // 2) % 2) * 32768 + bt * 1024
        e(f"ds_read_b128 {rng('a', bop(l, s, c, bt))}, v{vK+kap} offset:{off}")
        btag[(c, bt)] = LG.issue()
        return n
    for bt in range(8):
        for c in range(2): bread(0, 0, c, bt)

    tasks = []
    def add_task(ready, deadline, items): tasks.append([ready, deadline, list(items)])
    pre_ev = {}; post_ev = {}
    def at_pre(m, f): pre_ev.setdefault(m, []).append(f)
    def at_post(m, f): post_ev.setdefault(m, []).append(f)

    def sched_dma(l, ph, m0, spread):
        if P['NODMA']: return
        assert m0 >= free_at(l, ph), (l, ph, m0, free_at(l, ph))
        assert m0 + 7 * spread < 32 * RB(l, ph), (l, ph)
        sys.stderr.write(f"dma ({l},{ph}) {m0 % 2048}..{(m0 + 7 * spread) % 2048} free {free_at(l, ph) % 2048} need {32 * RB(l, ph) % 2048}\n")
        if l == 0:
            seq = [(j, i) for j in range(4) for i in range(2)]
            for n, (j, i) in enumerate(seq):
                m = m0 + n * spread
                at_pre(m, lambda j=j, i=i: (dma_x0_m0(ph, j, i), 1)[1])
                def ld(j=j, i=i):
                    blk_tag[(l, ph)] = dma_x0_ld(ph, j, i)
                    if (j, i) == (1, 1): half_tag[ph] = blk_tag[(l, ph)]
                    return 1
                at_post(m, ld)
        else:
            j = ph % 4
            for n in range(8):
                m = m0 + n * spread
                if P["XOUT"]:
                    def setm1(n=n):
                        m0own[0] = ("e", l, ph, n)
                        e(f"s_add_u32 m0, s{sW8192}, {j*32768 + n*1024}")
                        e(f"s_xor_b32 s{sTMP2}, s{sXLD}, {(j*32 + n)*2048}")
                        return 2
                    at_pre(m, setm1)
                    def ld1(n=n):
                        assert m0own[0] == ("e", l, ph, n)
                        e(f"buffer_load_dwordx4 v{vL0}, {SOUT}, s{sTMP2} offen {P['XSC']} lds")
                        blk_tag[(l, ph)] = VM.issue(); return 1
                    at_post(m, ld1)
                    continue
                if n % 4 == 0:
                    def setm(n=n):
                        m0own[0] = ("e", l, ph, n // 4)
                        e(f"s_add_u32 m0, s{sW8192}, {j*32768 + (n//4)*4096}")
                        if ph >= 8:
                            e(f"s_add_u32 s{sTMP2}, s{sXST}, {(j + 2)*32768 + (n//4)*4096}"); e(f"s_add_u32 s{sTMP2}, s{sTMP2}, s{sW8192}")
                        elif P['XSMALL'] == 2: e(f"s_add_u32 s{sTMP2}, s{sXLD}, {(j%2)*32768 + (n//4)*4096}")
                        else: e(f"s_add_u32 s{sTMP2}, s{sXLD}, {(0 if P['SAMEX'] else (l-1)*256*P['XSTR']) + j*32768 + (n//4)*4096}")
                        return 2
                    at_pre(m, setm)
                def ld(n=n):
                    assert m0own[0] == ("e", l, ph, n // 4)
                    e(f"buffer_load_dwordx4 v{vL0}, {SWS}, s{sTMP2} offen offset:{(n%4)*1024} {P['XSC']} lds")
                    blk_tag[(l, ph)] = VM.issue(); return 1
                at_post(m, ld)
    sched_dma(0, 1, P["B1M"], P["B1S"])
    def sched_sdma(n, prev, m0):
        at_post(m0, lambda: wait(lg=self_lg[prev]))
        for ch in range(8): at_post(m0 + P["UDS"] * ch, lambda ch=ch: self_dma1(n, ch))
    sched_sdma(3, 0, P["U3D"])
    if P["NSELF"] > 4:
        sched_sdma(5, 1, P["U5D"]); sched_sdma(4, 2, P["U4D"])
        assert P["U2M"] + 16 < P["U4D"]
    mc = M(0, P["C12"]) + 10
    at_post(mc, lambda: wait(lg=self_lg[4 if P["NSELF"] > 4 else 2]))
    for i, (l, n) in enumerate([(1, 0), (1, 1), (2, 0), (2, 1)]): at_post(mc + 16 * i, lambda l=l, n=n: coop_dma(l, n))
    for i, (l, h, u) in enumerate([(l, h, u) for l in (1, 2) for h in range(2) for u in range(2)]):
        at_post(mc + 224 + 2 * i, lambda l=l, h=h, u=u: coop_read(l, h, u))
    for i, (l, h) in enumerate([(l, h) for l in (1, 2) for h in range(2)]): at_post(mc + 250 + 16 * i, lambda l=l, h=h: coop_store(l, h))
    PH12 = P["C12"] // 2 + 2
    G12 = RB(0, PH12 + 1)
    assert mc + 250 + 48 + 100 < 32 * G12
    at_post(32 * G12, lambda: setflag(1))
    for ph in range(P["DLEAD"], 8):
        if ph == 2:
            at_pre(P["B2"], lambda: wait(lg=self_lg[3]))
            sched_dma(0, ph, P["B2"], P["B2S"])
        elif ph == 3 and P["NSELF"] > 4:
            at_pre(P["B3"], lambda: wait(lg=self_lg[5]))
            sched_dma(0, ph, P["B3"], P["B3S"])
        elif ph == 4 and P["D4"]: sched_dma(0, ph, P["D4"], (P["D5"] - P["D4"]) // 8)
        elif ph == 5 and P["D5"]: sched_dma(0, ph, P["D5"], P["DSPREAD"])
        else: sched_dma(0, ph, M(0, 2 * (ph - P["DLEAD"])) + P["DOFF"], P["DSPREAD"])
    def sched_self(n, m0):
        for a in range(8):
            for u in range(2): at_post(m0 + 2 * a + u, lambda a=a, u=u: self_read1(n, a, u))
    sched_self(2, P["U2M"]); sched_self(3, P["U3M"])
    if P["NSELF"] > 4:
        sched_self(5, P["U5M"]); sched_self(4, P["U4M"])
        assert P["U5M"] + 16 < P["B3"]
    assert P["U3M"] + 16 < P["B2"]
    if P["FB"]:
        def fbar():
            wait(vm=pack_tag[0]); e("s_barrier"); return 2 + setflag(0)
        at_pre(P["FB"], fbar)
    wp = [None]
    def wpoll0():
        e(f"v_and_b32 v{vP}, 0x1f0, v{vL0}"); e(f"v_lshlrev_b32 v{vP}, 6, v{vP}")
        e(f"buffer_load_dwordx2 {rng('v', vP, 2)}, v{vP}, {SWS}, s59 offen sc1")
    def wpoll():
        wpoll0(); wp[0] = VM.issue(); return 3
    def wflagchk(val, lab):
        e(f"s_add_u32 s{sTMP}, s{sT}, {val}")
        e(f"v_subrev_u32 v{vP}, s{sTMP}, v{vP}"); e(f"v_xor_b32 v{vP+1}, s{sT+1}, v{vP+1}"); e("s_nop 0")
        e(f"v_cmp_gt_u64 vcc, {16-val}, {rng('v', vP, 2)}"); e("s_nop 3")
        e("s_cmp_lg_u64 vcc, -1"); e(f"s_cbranch_scc1 {lab}")
    def wchk(val):
        wait(vm=wp[0])
        wflagchk(val, f"L_wspin{val}")
        e(f"L_wback{val}:")
        wok[0] = 256 if val == 0 else 768
        return 8
    m12 = P["M12"] * 128 + 48
    for val, mm in ((0, P["WCHK"]), (1, m12)):
        at_post(mm - P["WPOLL"], wpoll)
        at_post(mm, lambda val=val: wchk(val))
    x0l_lg = [None]
    for bt in range(8):
        def wr(bt=bt):
            e(f"ds_write_b128 v{vLX}, {rng('a', breg(0, bt))} offset:{bt*1024}")
            x0l_lg[0] = LG.issue(); return 1
        at_post(M(0, 14, 0, bt) + 5, wr)
    ptag = {}
    def flagchk(val, lab):
        e(f"v_readfirstlane_b32 s{sTMP}, v{vP}"); e(f"v_readfirstlane_b32 s{sS2}, v{vP+1}")
        e(f"s_xor_b32 s{sTMP}, s{sTMP}, s{sT}"); e(f"s_sub_u32 s{sTMP}, s{sTMP}, {val}")
        e(f"s_cmp_lg_u32 s{sS2}, s{sT+1}"); e(f"s_cbranch_scc1 {lab}")
        e(f"s_cmp_gt_u32 s{sTMP}, {15-val}"); e(f"s_cbranch_scc1 {lab}")
    spins = []
    FLAGBAR = {}
    busy = []
    def add_poll(val, mchk):
        def poll():
            e(f"buffer_load_dwordx2 {rng('v', vP, 2)}, off, {SWS}, s{sPFLAG} {'offset:64 ' if val == 0 else ''}sc1")
            ptag[val] = VM.issue(); return 1
        busy.append((mchk - P["POLL_M"], mchk))
        at_post(mchk - P["POLL_M"], poll)
        def chk():
            wait(vm=ptag[val])
            flagchk(val, f"L_spin{val}")
            e(f"L_back{val}:")
            if val == 0: e(f"s_cmp_eq_u32 s{sTMP}, s101"); e("s_cselect_b32 s101, 1, 0")
            return 8
        at_post(mchk, chk)
        spins.append(val)
    if P["XL"]:
        assert not P["XP"] and not P["XOUT"] and not P["SAMEX"] and not P["TX"]
        add_poll(0, P["XLM"]); busy.append((32 * G12, 32 * G12)); busy.append((m12 - P["WPOLL"], m12))
    FV = 4 if (P["XOUT"] or P["SAMEX"]) else 2
    gate = {}
    if P["XOUT"] or P["SAMEX"]:
        for l in ((1, 2) if P["XOUT"] else (1,)):
            for hb in range(2):
                val = 4 * l + hb
                gb = RB(l, 5 + 2 * hb)
                at_post(32 * gb, lambda val=val: setflag(val)); busy.append((32 * gb, 32 * gb))
                gate[(l, hb)] = 2048 * l + P[("CA", "CB")[hb] + str(l)]
                add_poll(val, gate[(l, hb)])
    for l in (1, 2):
        sp = P["XDS"] if l == 1 else P["XDL"]
        mm = 2048 * l + P["XD0" if l == 1 else "XD2"]
        for hb in range(2):
            val = FV * (l - 1) + hb + 2
            gb = 64 * l + P["XBA"] if hb == 0 else RB(l, 2)
            FLAGBAR[gb] = (l, 2 * hb + 1)
            mchk = max(mm, free_at(l, 4 + 2 * hb), 4096 + P["XC2"] if (l == 2 and hb == 1) else 0) + 2
            if l == 2 and hb == 0 and P["TX"]: mchk = mm
            if not P["NOSYNC"]:
                at_post(32 * gb, lambda val=val: setflag(val)); busy.append((32 * gb, 32 * gb))
                add_poll(val, mchk)
            mm = mchk + 1
            for jj in (2 * hb, 2 * hb + 1):
                mm = max(mm, free_at(l, 4 + jj) + 1)
                sched_dma(l, 4 + jj, mm, sp)
                mm += 8 * sp
        if l == 2 and P["TX"]:
            assert not P["XOUT"]
            for ph in (8, 9): sched_dma(2, ph, free_at(2, ph) + 3, P["RFS"])
        busy.sort()
        for x, y in zip(busy, busy[1:]): assert x[1] < y[0], (x, y)
        if l == 1 and not P['SAMEX'] and not P['XOUT']:
            def bump():
                for k in range(4): e(f"s_add_u32 s{sXST+k}, s{sXST+k}, {256*P['XSTR']}")
                return 4
            at_post(M(1, 9, 1), bump)
    for l in (0, 1, 2):
        bt_tags = {}
        Tn = P["TT"] if l < 2 else P["TL"]
        for j in range(4):
            sb = (P["BS0"] if l == 0 else P["HH"] - 1) if j < 2 else 15 - Tn
            sn = sb + 1
            if l == 2 and j >= 2 and P["TX"]: sb, sn = 3, 8
            rdy = M(l, sb, j) + 36
            if l > 0 and j < 2: rdy = max(rdy, M(l, 0, 3) + 32 + 100)
            def ld(j=j, l=l):
                if l == 2 and j == 0: e(f"s_add_u32 s{sBOFF}, s{sBOFF}, 4096")
                bt_tags[j] = bias_load(l, j); return 1
            at_post((rdy - 96 if j % 2 == 0 else prev_ld + 4), ld)
            prev_ld = rdy - 96
            items = []
            for h in range(2):
                def first(j=j, h=h): wait(vm=bt_tags[j]); e(f"v_lshlrev_b32 v{UB}, 16, v{T+4*j+2*h}")
                items.append(first)
                items.append(lambda j=j, h=h: e(f"v_and_b32 v{UB+1}, s{sMASK}, v{T+4*j+2*h}"))
                items.append(lambda j=j, h=h: e(f"v_lshlrev_b32 v{UB+2}, 16, v{T+4*j+2*h+1}"))
                items.append(lambda j=j, h=h: e(f"v_and_b32 v{UB+3}, s{sMASK}, v{T+4*j+2*h+1}"))
                for bt in range(8):
                    k, b = acc(2 * j + h, bt)
                    if k == "v":
                        for r in range(4):
                            items.append(lambda b=b, r=r: e(f"v_add_f32 v{b+r}, v{b+r}, v{UB+r}"))
                    else:
                        for r in range(4): items.append(lambda b=b, r=r: e(f"v_accvgpr_read_b32 v{T+r}, a{b+r}"))
                        for r in range(4): items.append(lambda r=r: e(f"v_add_f32 v{T+r}, v{T+r}, v{UB+r}"))
                        for r in range(4): items.append(lambda b=b, r=r: e(f"v_accvgpr_write_b32 a{b+r}, v{T+r}"))
            dlb = M(l, sn, j) - 1
            if j >= 2: dlb = min(dlb, M(l, 15, 0) + 7)
            add_task(rdy, dlb, items)
    xl_tag = {}; pend_st = []; next_st = [0]
    U = T + 12; A = T + 16
    for l in range(3):
        last = l == 2
        seq = [divmod(u, 8) for u in range(32)]
        if last and P["OI"] >= 1: seq[:16] = [(u % 2, u // 2) for u in range(16)]
        if last and P["OI"] >= 2: seq[16:] = [(2 + u % 2, u // 2) for u in range(16)]
        prev_ready = 0
        for u in range(32):
            j, bt = seq[u]
            ot = last and P["OT"]
            ts = T + 4 * (u % (2 if ot else 3))
            items = []
            vWA, vRA, vGA = T + 8, T + 10, T + 11
            if ot:
                assert P["OI"] == 2
                if u == 0:
                    for ins in (f"v_lshrrev_b32 v{U}, 7, v{vL0}", f"v_lshlrev_b32 v{U+1}, 4, v{U}", f"v_xor_b32 v{vRA}, v{U+1}, v{vLX}",
                                f"v_and_b32 v{U+1}, 0x70, v{vL0}", f"v_lshl_add_u32 v{vGA}, v{U}, 11, v{U+1}",
                                f"v_lshrrev_b32 v{U}, 4, v{vL0}", f"v_and_b32 v{U}, 0x30, v{U}", f"v_xor_b32 v{U}, v{U}, v{U+1}",
                                f"v_and_b32 v{U+1}, 0xf0, v{vL0}", f"v_lshl_add_u32 v{U}, v{U+1}, 3, v{U}",
                                f"v_sub_u32 v{U+1}, v{vLX}, v{vL0}", f"v_add_u32 v{vWA}, v{U}, v{U+1}", f"v_xor_b32 v{vWA+1}, 64, v{vWA}"):
                        items.append(lambda ins=ins: e(ins))
                    if P["OX"]:
                        for ins in (f"v_bfe_u32 v{U}, v{vW0}, 13, 1", f"v_lshl_add_u32 v{vGA}, v{U}, 7, v{vGA}", f"v_xor_b32 v{vXR}, 0x80, v{vGA}"):
                            items.append(lambda ins=ins: e(ins))
            xsrc = acc(bt % 4, bt // 4)[1] if (ot and j == 3) else ts
            def xl_prefetch(uu, seq=seq):
                def f():
                    wait(lg=x0l_lg[0])
                    e(f"ds_read_b128 {rng('v', T + 4*(uu % 3))}, v{vLX} offset:{seq[uu][1]*1024}")
                    xl_tag[uu] = LG.issue()
                return f
            if j < 3:
                for d in range(4): items.append(lambda d=d, j=j, bt=bt, ts=ts: e(f"v_accvgpr_read_b32 v{ts+d}, a{x0r(j, bt)+d}"))
            for h in range(2):
                k, b = acc(2 * j + h, bt)
                def first(h=h, ts=xsrc, u=u, j=j, ot=ot, bt=bt):
                    if j == 3: wait(lg=xl_tag[("m", bt) if ot else u])
                    e(f"v_lshlrev_b32 v{U}, 16, v{ts+2*h}")
                items.append(first)
                items.append(lambda h=h, ts=xsrc: e(f"v_and_b32 v{U+1}, s{sMASK}, v{ts+2*h}"))
                items.append(lambda h=h, ts=xsrc: e(f"v_lshlrev_b32 v{U+2}, 16, v{ts+2*h+1}"))
                items.append(lambda h=h, ts=xsrc: e(f"v_and_b32 v{U+3}, s{sMASK}, v{ts+2*h+1}"))
                if h == 0 and u + 2 < 32 and seq[u + 2][0] == 3 and not ot: items.append(xl_prefetch(u + 2))
                for r in range(4):
                    if k == "v":
                        items.append(lambda b=b, r=r: e(f"v_mul_f32 v{U+r}, v{U+r}, v{b+r}"))
                    else:
                        items.append(lambda b=b, r=r: e(f"v_accvgpr_read_b32 v{A+r}, a{b+r}"))
                        items.append(lambda r=r: e(f"v_mul_f32 v{U+r}, v{U+r}, v{A+r}"))
                items.append(lambda h=h, ts=ts: e(f"v_cvt_pk_bf16_f32 v{ts+2*h}, v{U}, v{U+1}"))
                items.append(lambda h=h, ts=ts: e(f"v_cvt_pk_bf16_f32 v{ts+2*h+1}, v{U+2}, v{U+3}"))
            if ot:
                def rbreg(j, bt, k): return ("a", x0r(k, bt)) if j < 2 else acc(4 + k, bt)
                def ost(j, bt, k):
                    def f():
                        wait(lg=xl_tag[("r", j // 2, bt, k)])
                        so = sXO + bt
                        if k: e(f"s_add_u32 s{sXST+2}, s{so}, 16384"); so = sXST + 2
                        e(f"buffer_store_dwordx4 {rng(*rbreg(j, bt, k))}, v{(vXR if j >= 2 else vGA) if P['OX'] else vGA}, {SOUT}, s{so} offen offset:{0 if P['OX'] else (j//2)*128} {P['OSC'] if (j < 2 or not P['OSC2']) else ''}")
                        VM.issue()
                        if P["DEEPT"] and j < 2: pool.append((rbreg(j, bt, k), NM))
                    return f
                if u < 4:
                    for k in range(2):
                        def mv(b2=2 * u + k):
                            e(f"ds_read_b128 {rng(*acc(b2 % 4, b2 // 4))}, v{vLX} offset:{b2*1024}")
                            xl_tag[("m", b2)] = LG.issue()
                        items.append(mv)
                def dwo(j=j, bt=bt, ts=ts):
                    e(f"ds_write_b128 v{vWA + j % 2}, {rng('v', ts)} offset:{(bt % 4)*2048}"); LG.issue()
                    if P["DEEPT"] and j < 2 and bt >= 2: pool.extend([(acc(2 * j, bt), NM), (acc(2 * j + 1, bt), NM)])
                items.append(dwo)
                if j % 2 == 1:
                    for k in range(2):
                        def rb(j=j, bt=bt, k=k):
                            e(f"ds_read_b128 {rng(*rbreg(j, bt, k))}, v{vRA} offset:{(bt % 4)*2048 + k*1024}")
                            xl_tag[("r", j // 2, bt, k)] = LG.issue()
                            if P["SPACE"] and j < 2: pend_st.append((cur_m[0] + 8, ost(j, bt, k)))
                        items.append(rb)
                    if P["SPACE"] and j < 2: pass
                    elif u in (15, 31): items += [lambda: e("s_nop 0")] * (0 if u == 31 else 6) + [ost(j, bt, 0), ost(j, bt, 1)]
                elif u not in (0, 16) and not (P["SPACE"] and j < 2): items += [ost(*seq[u - 1], 0), ost(*seq[u - 1], 1)]
            elif last:
                def st(j=j, bt=bt, ts=ts):
                    if P['NOOUT'] == 1 and not (j == 3 and bt == 7): return
                    if P['NOOUT'] == 2:
                        e(f"buffer_store_dwordx4 {rng('v', ts)}, v{vW0 if j < 2 else vW1}, {SWS}, s{sXST + (j%2)*2 + bt//4} offen offset:{(bt%4)*1024}")
                    else: e(f"buffer_store_dwordx4 {rng('v', ts)}, v{vXR}, {SOUT}, s{sXO+bt} offen offset:{j*64} {P['OSC']}")
                    VM.issue()
                    if P["DEEPT"] and j < 2:
                        pool.extend([(acc(2 * j, bt), NM), (acc(2 * j + 1, bt), NM), (("a", x0r(j, bt)), NM)])
                items.append(st)
            else:
                def dw(j=j, bt=bt, ts=ts, l=l):
                    off = j * 32768 + bt * 1024
                    e(f"ds_write_b128 v{vW0 if off < 65536 else vW1}, {rng('v', ts)} offset:{off % 65536}")
                    blk_lg[(l + 1, j)] = LG.issue()
                items.append(dw)
                def xs(j=j, bt=bt, ts=ts, l=l):
                    if P['NOST']: return
                    if P['XOUT']:
                        e(f"s_xor_b32 s{sXST+1}, s{sXST}, {(j*32 + bt)*2048}")
                        e(f"buffer_store_dwordx4 {rng('v', ts)}, v{vL0}, {SOUT}, s{sXST+1} offen {P['SSC']}")
                        st_tag[(l + 1, j)] = VM.issue()
                        return
                    e(f"buffer_store_dwordx4 {rng('v', ts)}, v{vW0 if j < 2 else vW1}, {SWS}, s{sXST + (j%2)*2 + bt//4} offen offset:{(bt%4)*1024} {P['SSC']}")
                    st_tag[(l + 1, j)] = VM.issue()
                items.append(xs)
            ready = max(M(l, LS(l, j), j, bt) + 8, prev_ready + (P["OPACE"] if (last and j < 2 and u > 0) else 0))
            if (P["XOUT"] and l >= 1) or (P["SAMEX"] and l == 1): ready = max(ready, gate[(l, (bt // 4) if last else (j // 2))] + 1)
            if last: prev_ready = ready
            dl = min(M(l + 1, 0, j, bt), 32 * RB(l + 1, j)) if not last else NM + 1
            if not last: ready = max(ready, free_at(l + 1, j))
            add_task(ready, dl, items)
    tasks.sort(key=lambda t: (t[0], t[1]))

    def run_items(m, n):
        k = 0
        while k < n and tasks and tasks[0][0] <= m:
            t = tasks[0]
            t[2].pop(0)(); k += 1
            if not t[2]: tasks.pop(0)
        return k
    def flush_deadlines(m):
        lastidx = -1
        for i, t in enumerate(tasks):
            if t[1] <= m: lastidx = i
            if t[0] > m: break
        n = 0
        for _ in range(lastidx + 1):
            t = tasks.pop(0)
            assert t[0] <= m, (t[0], m)
            for f in t[2]: f(); n += 1
        return n

    stall = 0
    CT = {1: {417: 2, 801: 3, 1057: 4, 1441: 5, 2593: 6, 2721: 7, 3105: 8, 3489: 9, 4641: 10, 4769: 11},
          2: {417: 2, 801: 3, 1057: 4, 1313: 5, 1441: 6, 2593: 7, 2977: 8, 3233: 9, 3489: 10, 4641: 11}}.get(P["CTM"])
    for m in range(NM):
        g, r = divmod(m, 32); l, s, rp, bt, sub = SEQ[m]; h, c = divmod(sub, 2); wg = GPOS[(l, s, rp)]
        ph = s // 2
        npre = 0
        stall += flush_deadlines(m)
        if m % 512 == 0: e(f"L_q{m//512}:")
        cur_m[0] = m
        if P["CTM"] == 0:
            if P["CPF"] and m % 512 == 33: npre += code_touch(m // 512 + P["CPF"]); touch_m.append(m)
        elif m in CT: npre += code_touch(CT[m]); touch_m.append(m)
        if P["STAMPS"] == 1 and m % 512 == 0: stamp()
        if 2 <= P["STAMPS"] < 9 and m % 128 == 0 and P["SG0"] <= m // 128 < P["SG0"] + 12: stamp()
        if P["STAMPS"] == 10 and r == 0 and P["SG0"] <= m // 32 < P["SG0"] + 12: stamp()
        if P["STAMPS"] == 9 and r == 0 and rp == 0 and l == 0 and 1 <= s < 6: stamp()
        if r == 0 and g in BARS:
            vms = []; lgt = None
            for nl in range(3):
                for nph in range(NPH(nl)):
                    if (nl, nph) != (0, 0) and RB(nl, nph) == g:
                        vms.append(half_tag[nph] if (nl == 0 and nph < P["HB"]) else blk_tag.get((nl, nph)))
                        lgt = blk_lg.get((nl, nph))
            for nph in range(P["HB"]):
                if RDG[(0, 2 * nph + 1)][0] == g: vms.append(blk_tag[(0, nph)])
            if g == G12: vms.append(pack_tag[2])
            if g in FLAGBAR: vms.append(st_tag.get(FLAGBAR[g]))
            vms = [t for t in vms if t is not None]
            wait(vm=max(vms) if vms else None, lg=lgt)
            if not P["NOBAR"]: e("s_barrier")
            npre += 2
        for f in pre_ev.get(m, []): npre += f()
        vmt = wtag[wg * 4 + 3] if FU[wg] == m else None
        lgt = btag[(1, bt)] if sub == 0 else None
        if FU[wg] == m:
            lw = [wlg[f] for f in range(wg * 4, wg * 4 + 4) if f in wlg]
            if lw: lgt = max(lw + ([lgt] if lgt is not None else []))
        npre += wait(vm=vmt, lg=lgt)
        k, b = acc(2 * rp + h, bt)
        d = rng(k, b)
        e(f"v_mfma_f32_16x16x32_bf16 {d}, {rng(*wslot[wg*4 + sub][0])}, {rng('a', bop(l, s, c, bt))}, {'1.0' if (l == 0 and s == 0 and c == 0) else d}")
        npost = 0
        if LU[wg * 4 + sub] == m:
            pool.append(wslot[wg * 4 + sub])
            npost += wload()
        elif m % P["RAMP"] == 1:
            npost += wload()
        if m in BRD and not P['NOJIT']:
            npost += bread(BRD[m][0], BRD[m][1], c, bt)
        for f in post_ev.get(m, []): npost += f()
        if pend_st and m >= next_st[0] and m >= pend_st[0][0]:
            pend_st.pop(0)[1](); npost += 1; next_st[0] = m + P["SPACE"]
        run_items(m, CAP - npost - npre)
    if P["STAMPS"] == 3: stamp()
    e("s_nop 7")
    n = 0
    assert not pend_st
    while tasks: n += run_items(NM + 100, 1000)
    sys.stderr.write(f"forced items {stall}, tail items {n}\n")
    if P["STAMPS"]:
        stamp()
        if P["STAMPS"] == 3: e("s_waitcnt vmcnt(0)"); stamp()
        e("s_waitcnt lgkmcnt(0)")
        ns = nstamp[0]
        assert ns <= 16
        for i in range(ns): e(f"v_mov_b32 v{32+i}, s{sSTAMP+2*i}")
        e(f"s_lshl_b32 s{sTMP}, s2, 8"); e(f"s_lshl_b32 s3, s{sW}, 6"); e(f"s_add_u32 s{sTMP}, s{sTMP}, s3")
        for i in range(0, 16, 4):
            e(f"buffer_store_dwordx4 {rng('v', 32+i)}, off, {SWS}, s{sTMP} offset:{i*4}")
    e("s_cmp_lg_u32 s2, 0"); e("s_cbranch_scc1 L_end")
    e(f"s_cmp_lg_u32 s{sW}, 0"); e("s_cbranch_scc1 L_end")
    e(f"v_mov_b32 v{vP}, s{sT}"); e(f"v_mov_b32 v{vP+1}, s{sT+1}"); e("s_mov_b64 exec, 1")
    e(f"s_mov_b32 s{sTMP}, {EPOCH_OFF}")
    e(f"buffer_store_dwordx2 {rng('v', vP, 2)}, off, {SWS}, s{sTMP}")
    e("L_end:")
    e("s_endpgm")
    for val in spins:
        e(f"L_spin{val}:")
        e(f"s_mov_b32 s{sSPIN}, 0x40000")
        e(f"L_spinl{val}:")
        e("s_sleep 1")
        e(f"buffer_load_dwordx2 {rng('v', vP, 2)}, off, {SWS}, s{sPFLAG} {'offset:64 ' if val == 0 else ''}sc1")
        e(f"s_sub_u32 s{sSPIN}, s{sSPIN}, 1")
        e("s_waitcnt vmcnt(0)")
        e(f"s_cmp_eq_u32 s{sSPIN}, 0"); e(f"s_cbranch_scc1 L_back{val}")
        flagchk(val, f"L_spinl{val}")
        e(f"s_branch L_back{val}")
    for val in (0, 1):
        e(f"L_wspin{val}:")
        e(f"s_mov_b32 s{sSPIN}, 0x40000")
        e(f"L_wspinl{val}:")
        e("s_sleep 2")
        wpoll0()
        e(f"s_sub_u32 s{sSPIN}, s{sSPIN}, 1")
        e("s_waitcnt vmcnt(0)")
        e(f"s_cmp_eq_u32 s{sSPIN}, 0"); e(f"s_cbranch_scc1 L_wback{val}")
        wflagchk(val, f"L_wspinl{val}")
        e(f"s_branch L_wback{val}")

LAUNCH = "; @launch grid=(256,1,1) block=(256,1,1) lds=163840"
hdr = f"""; DCN-v2 cross network, 3 layers, B=16384, D=1024, bf16.  Generated by dev/gen.py (hand-written generator).
{LAUNCH}
.amdgcn_target "amdgcn-amd-amdhsa--gfx950"
.text"""
main_kernel()
if P['CPF']: e('.fill 4096, 4, 0xBF800000')
def kd(name, vg, ao, sg):
    return f""".p2align 6
.amdhsa_kernel {name}
  .amdhsa_next_free_vgpr {vg}
  .amdhsa_next_free_sgpr {sg}
  .amdhsa_accum_offset {ao}
  .amdhsa_group_segment_fixed_size 0
  .amdhsa_kernarg_size 48
  .amdhsa_user_sgpr_count 2
  .amdhsa_user_sgpr_kernarg_segment_ptr 1
  .amdhsa_system_sgpr_workgroup_id_x 1
.end_amdhsa_kernel
"""
tail = '\n.section .rodata,"a"\n' + kd(KN, 512, 256, 102)
open(out, "w").write(hdr + "\n" + "\n".join(L) + tail)
```

```python
import sys
out = sys.argv[1]
P = dict(SNK=0, CAP=2, DLEAD=2, DSPREAD=32, STAMPS=0, XSC="sc1", SSC="sc1", POLL_M=64, BIAS_S=11, NOSYNC=0, XDSPREAD=24,
         DOFF=2, NODMA=0, NOBAR=0, NOW=0, NOJIT=0, NOST=0, DEEP=1, XCHK=192, STOFF=5, STSPREAD=20, RAMP=4, XSMALL=0, NOOUT=0, XSTR=131072+1024, CPF=2, ONLY=0, RT=0, WSC=1, OX=0, XL=0, XLM=1100, TX=0, XD2=550, XC2=0, RFS=16, SPACE=0, SPACE2=0, T3=0, XP=0, OT=0, OSC2=0, XOUT=0, XMASK=31, CA1=1600, CB1=1960, CA2=1470, CB2=1640, SAMEX=0, PORD=0, D4=0, D5=0, CTM=0, XALT=0, OI=0, OPACE=0, DEEPT=0, OSC="", SG0=1, HH=4, TT=4, TL=8, TL2=4, XBA=9, XD0=550, XDS=30, XDL=24, BS0=9,  PTOUCH=0, HB=4, C12=5, B1M=34, B1S=8, UDS=4, U3D=0, U5D=64, U4D=98, B3=262, B3S=24, M12=14,  NSELF=6, FB=0, WCHK=280, WPOLL=64, B2=132, B2S=16, BLK1E=1, U2M=40, U3M=100, U5M=200, U4M=226)
for kv in sys.argv[2:]:
    k, v = kv.split("=")
    P[k] = v.replace("+", " ").replace("none", "") if k in ("XSC", "SSC", "OSC") else int(v)
CAP = P["CAP"]

KN = "standalone__cross_network_dcn__recsys_kernel"
PK = "dcn_pack_kernel"
WP_OFF = 0x100000
FLAG_OFF = 0x800000
X_OFF = P.get("XOFF", 0x1000000)
L = []
def e(s): L.append(s)

class Ctr:
    def __init__(s, name, mx): s.name, s.mx, s.n, s.done = name, mx, 0, 0
    def issue(s):
        s.n += 1
        return s.n - 1
    def need(s, idx):
        if idx is None or idx < s.done: return None
        N = min(s.n - 1 - idx, s.mx)
        s.done = max(s.done, s.n - N)
        return N
cur_m = [0]; touch_m = []
VM = Ctr("vmcnt", 63); LG = Ctr("lgkmcnt", 15)
def wait(vm=None, lg=None):
    a = VM.need(vm); b = LG.need(lg)
    parts = []
    if a is not None: parts.append(f"vmcnt({a})")
    if b is not None:
        parts.append(f"lgkmcnt({b})")
        if touch_m: sys.stderr.write(f"touch at {touch_m[0]}: next lgkm wait after {cur_m[0] - touch_m[0]} (N={b})\n"); touch_m.clear()
    if parts:
        e("s_waitcnt " + " ".join(parts)); return 1
    return 0
def wait_lg_all():
    e("s_waitcnt lgkmcnt(0)"); LG.done = LG.n

vL0, vK, vXR, vW0, vW1, vLX, vB, vP = 0, 1, 5, 6, 7, 8, 9, 10
T = 12
def acc(a, bt):
    if a < 7:
        b = 32 + (a * 8 + bt) * 4
        return ("v", b)
    return ("a", 224 + bt * 4)
def rng(k, b, n=4): return f"{k}[{b}:{b+n-1}]"
def x0r(j, bt): return (j * 8 + bt) * 4
def breg(c, bt): return 96 + (c * 8 + bt) * 4
SX0, SOUT, SWS, SBS, SWR = "s[12:15]", "s[16:19]", "s[20:23]", "s[24:27]", "s[4:7]"
sT, sSELF, sS2 = 8, 10, 11
EPOCH_OFF = 0x810000
sW, sHF, sWOFF, sW2048, sW8192, sMASK, sTMP, sFLAG, sPFLAG, sBOFF, sSPIN, sTMP2 = 28, 29, 30, 31, 32, 33, 34, 35, 36, 37, 38, 39
sXO = 40
sXOWN = 48
sXOTH = 50
sXST = 52
sXLD = 56
sSTAMP = 60
nstamp = [0]
def pstamp():
    if P["STAMPS"] == 9: stamp()
def stamp():
    if P["STAMPS"]:
        e(f"{'s_memrealtime' if P['RT'] else 's_memtime'} s[{sSTAMP+2*nstamp[0]}:{sSTAMP+2*nstamp[0]+1}]"); nstamp[0] += 1
NM = 3 * 2048
ORDER = []
for l in range(3):
    H = P["HH"] if l > 0 else 0
    Tn = P["TT"] if l < 2 else P["TL"]
    T2 = P["TL2"] if l == 2 else 0
    ORDER += [(l, s, rp) for s in range(H) for rp in (0, 1)] + [(l, s, rp) for s in range(H) for rp in (2, 3)]
    if l == 2 and P["TX"]:
        assert H == 4 and T2 == 0
        ORDER += [(l, s, rp) for s in range(4, 16) for rp in (0, 1)]
        ORDER += [(l, s, rp) for s in list(range(8, 16)) + list(range(4, 8)) for rp in (2, 3)]
        continue
    ORDER += [(l, s, rp) for s in range(H, 16 - Tn) for rp in range(4)]
    ORDER += [(l, s, rp) for s in range(16 - Tn, 16) for rp in (0, 1)]
    ORDER += [(l, s, rp) for s in range(16 - Tn, 16 - T2) for rp in (2, 3)]
    ORDER += [(l, s, 2) for s in range(16 - T2, 16)] + [(l, s, 3) for s in range(16 - T2, 16)]
assert len(set(ORDER)) == 192
GPOS = {k: i for i, k in enumerate(ORDER)}
def LS(l, rp): return 7 if (P["TX"] and l == 2 and rp >= 2) else 15
def VS(l, s, rp): return s + 12 if (P["TX"] and l == 2 and 4 <= s < 8 and rp >= 2) else s
NPH = lambda l: 10 if (P["TX"] and l == 2) else 8
def SUBO(bt):
    if P["SNK"] == 1 or P["SNK"] >= 4: return (0, 1, 3, 2) if bt % 2 == 0 else (2, 3, 1, 0)
    if P["SNK"] == 2: return (0, 2, 3, 1) if bt % 2 == 0 else (1, 3, 2, 0)
    if P["SNK"] == 3: return (0, 1, 3, 2)
    return (0, 1, 2, 3)
def GRP(i):
    l, s, rp = ORDER[i]
    ho = P["SNK"] >= 4 and s != 0 and s != LS(l, rp) and (P["SNK"] == 6 or ORDER[i + 1][:2] == (l, s))
    if P["SNK"] == 7: ho = ho and ORDER[i - 1][:2] == (l, s)
    if P["SNK"] == 8:
        if ho and ORDER[i - 1][:2] == (l, s) and ORDER[i - 2][:2] != (l, s):
            return [(l, s, rp, 7 - k, sub) for k in range(8) for sub in SUBO(k)]
        ho = False
    if not ho: return [(l, s, rp, bt, sub) for bt in range(8) for sub in SUBO(bt)]
    o = [(l, s, rp, bt, c) for bt in range(8) for c in ((0, 1) if bt % 2 == 0 else (1, 0))]
    dn = P["SNK"] in (4, 7) or (P["SNK"] == 6 and ORDER[i + 1][:2] == (l, s))
    for k in range(8):
        bt = 7 - k if dn else k
        o += [(l, s, rp, bt, 2 + c) for c in ((0, 1) if k % 2 == 0 else (1, 0))]
    return o
SEQ = [x for i in range(192 - 2 * P["T3"]) for x in GRP(i)]
if P["T3"]:
    assert P["TL2"] == 0 and P["T3"] <= P["TL"]
    SEQ += [(2, s, rp, bt, sub) for hb in range(2) for s in range(LS(2, 3) + 1 - P["T3"], LS(2, 3) + 1) for bt in range(4 * hb, 4 * hb + 4) for rp in (2, 3) for sub in ((0, 1, 3, 2) if P["SNK"] else range(4))]
assert len(set(SEQ)) == NM
POS = {k: i for i, k in enumerate(SEQ)}
M = lambda l, s, rp=0, bt=0: min(POS[(l, s, rp, bt, q)] for q in range(4))
ML = lambda l, s, rp=0, bt=0: max(POS[(l, s, rp, bt, q)] for q in range(4))
acc_init = set()
FU = {}; LU = {}
for m_, (l_, s_, rp_, bt_, sub_) in enumerate(SEQ):
    FU.setdefault(GPOS[(l_, s_, rp_)], m_); LU[GPOS[(l_, s_, rp_)] * 4 + sub_] = m_
BRD = {}; RDG = {}; _last = {}
for m_, (l_, s_, rp_, bt_, sub_) in enumerate(SEQ):
    k_ = (sub_ % 2, bt_); s_ = VS(l_, s_, rp_)
    if k_ in _last and _last[k_][1] != (l_, s_):
        BRD[_last[k_][0]] = (l_, s_)
        if _last[k_][0] // 32 not in RDG.setdefault((l_, s_), []): RDG[(l_, s_)].append(_last[k_][0] // 32)
    _last[k_] = (m_, (l_, s_))
for v_ in RDG.values(): v_.sort()
def RB(l, ph): return min(RDG[(l, 2 * ph)] + RDG[(l, 2 * ph + 1)])
def LRD(l, ph): return max(RDG.get((l, 2 * ph), [-1]) + RDG[(l, 2 * ph + 1)])
BARS = set(RB(l, ph) for l in range(3) for ph in range(NPH(l)) if (l, ph) != (0, 0))
if P["TX"]: BARS |= {LRD(2, 4) + 2, LRD(2, 5) + 2}
BARS |= set(RDG[(0, 2 * ph + 1)][0] for ph in range(P["HB"]))
BARS |= set(64 * l + P["XBA"] for l in (1, 2))
def free_at(l, ph):
    pl, pp = (l, ph - 4) if ph >= 4 else (l - 1, ph + 4)
    if pl < 0: return 0
    return 32 * min(b for b in BARS if b >= LRD(pl, pp) + 2)

CAPS = (4, 6, 12, 14) if P["XALT"] == 3 else (8, 10, 12, 14)
def own0(ph): return ph % 4 >= 2 if P["XALT"] == 3 else ph >= 4
def bop(l, s, c, bt):
    if P['DEEP'] < 2 and l == 0 and c == 0 and s in CAPS[:3]: return x0r(CAPS.index(s), bt)
    return breg(c, bt)

def main_kernel():
    e(f".globl {KN}"); e(".p2align 8"); e(f".type {KN},@function"); e(f"{KN}:")
    e("s_cmp_ge_u32 s2, 256"); e("s_cbranch_scc1 L_end")
    if P["PTOUCH"]:
        e("s_getpc_b64 s[92:93]")
        e("v_lshrrev_b32 v12, 6, v0"); e("s_lshr_b32 s94, s2, 3"); e("v_readfirstlane_b32 s95, v12")
        e("s_and_b32 s94, s94, 15"); e("s_lshl_b32 s94, s94, 2"); e("s_add_u32 s94, s94, s95"); e("s_lshl_b32 s94, s94, 7")
        e("s_add_u32 s92, s92, s94"); e("s_addc_u32 s93, s93, 0")
        e("s_load_dword s98, s[92:93], 0")
    e("s_load_dwordx4 s[4:7], s[0:1], 0")
    e("s_load_dwordx4 s[8:11], s[0:1], 16")
    e("s_load_dwordx4 s[40:43], s[0:1], 32")
    stamp()
    e("v_lshrrev_b32 v12, 6, v0")
    e("v_and_b32 v13, 63, v0")
    e(f"v_readfirstlane_b32 s{sW}, v12")
    e(f"v_lshlrev_b32 v{vL0}, 4, v13")
    for k in range(4): e(f"v_add_u32 v{vK+k}, {k*8192}, v{vL0}")
    e(f"v_lshl_add_u32 v{vW0}, v12, 13, v{vL0}")
    e(f"v_add_u32 v{vW1}, 0x10000, v{vW0}")
    e(f"v_add_u32 v{vLX}, 0x20000, v{vW0}")
    e("v_and_b32 v14, 15, v13"); e("v_lshrrev_b32 v15, 4, v13")
    e(f"v_lshlrev_b32 v{vB}, 4, v15")
    e(f"v_lshl_add_u32 v{vXR}, v14, 11, v{vB}")
    if P["XP"]:
        assert P["OT"] and P["XALT"] == 3
        e("v_mov_b32 v18, 0x78")
        e("v_lshlrev_b32 v16, 1, v15"); e("v_lshrrev_b32 v16, v16, v18"); e("v_xor_b32 v17, v16, v13"); e("v_and_b32 v17, 3, v17"); e("v_lshlrev_b32 v17, 4, v17")
        e("v_lshrrev_b32 v16, 2, v13"); e(f"v_lshl_add_u32 v{vXR}, v16, 11, v17")
        e("v_lshrrev_b32 v16, 1, v14"); e("v_and_b32 v16, 6, v16"); e("v_lshrrev_b32 v16, v16, v18"); e("v_xor_b32 v16, v16, v15"); e("v_and_b32 v16, 3, v16")
        e("v_lshlrev_b32 v16, 4, v16"); e("v_lshl_add_u32 v16, v14, 6, v16")
        for k in range(4): e(f"v_add_u32 v{vK+k}, {k*8192}, v16")
    e("s_and_b32 s3, s2, 7"); e(f"s_lshr_b32 s{sTMP}, s2, 4"); e(f"s_lshl_b32 s{sTMP}, s{sTMP}, 3"); e(f"s_or_b32 s3, s3, s{sTMP}")
    e(f"s_lshr_b32 s{sHF}, s2, 3"); e(f"s_and_b32 s{sHF}, s{sHF}, 1")
    e(f"s_lshl_b32 s{sW2048}, s{sW}, 11"); e(f"s_lshl_b32 s{sW8192}, s{sW}, 13")
    e(f"s_mov_b32 s{sMASK}, 0xffff0000")
    if P["XP"]: e(f"s_add_u32 s101, s{sW8192}, 0x10000")
    if P["XL"]: e("s_getreg_b32 s101, hwreg(HW_REG_XCC_ID, 0, 4)")
    e("s_lshl_b32 s3, s3, 18")
    e(f"s_lshl_b32 s{sTMP2}, s{sHF}, 2"); e(f"s_add_u32 s{sTMP2}, s{sTMP2}, s{sW}")
    e(f"s_lshl_b32 s{sBOFF}, s{sTMP2}, 8")
    e(f"s_lshl_b32 s{sTMP}, s{sW}, 16"); e(f"s_add_u32 s{sTMP}, s{sTMP}, s3")
    e(f"s_lshl_b32 s{sXOWN}, s{sHF}, 10"); e(f"s_xor_b32 s{sXOTH}, s{sXOWN}, 1024")
    e(f"s_add_u32 s{sXOWN}, s{sXOWN}, s{sTMP}"); e(f"s_add_u32 s{sXOTH}, s{sXOTH}, s{sTMP}")
    e(f"s_add_u32 s{sXOWN+1}, s{sXOWN}, 32768"); e(f"s_add_u32 s{sXOTH+1}, s{sXOTH}, 32768")
    e(f"s_mul_i32 s{sWOFF}, s{sTMP2}, {3*8*32768}"); e(f"s_add_u32 s{sWOFF}, s{sWOFF}, {WP_OFF + P['NSELF']*8192}")
    e("s_waitcnt lgkmcnt(0)")
    pstamp()
    for (s, ptr, n) in ((24, 8, 6144), (12, 4, 0x2000000), (20, 42, 0x10000000), (16, 10, 0x2000000), (4, 6, 0x600000)):
        e(f"s_mov_b32 s{s}, s{ptr}"); e(f"s_and_b32 s{s+1}, s{ptr+1}, 0xffff"); e(f"s_mov_b32 s{s+2}, {hex(n)}"); e(f"s_mov_b32 s{s+3}, 0x20000")

    def bias_load(l, j):
        e(f"buffer_load_dwordx4 {rng('v', T+4*j)}, v{vB}, {SBS}, s{sBOFF} offen offset:{(l*2048 + j*64) % 4096}")
        return VM.issue()
    wtag = {}; wslot = {}; wlg = {}
    wok = [0]
    wload_n = [0]
    pool = [(("a", 160 + 4 * i), NM) for i in range(16)]
    if P["DEEP"]:
        for j in ((0, 1, 2) if P["PORD"] else (2, 1, 0)):
            if P["DEEP"] >= 2 and j >= P["DEEP"] - 1: continue
            pool += [(("a", x0r(j, bt)), 32 * RDG[(0, CAPS[j])][0] if P["DEEP"] < 2 else NM) for bt in range(8)]
    def last_use(f): return LU[f]
    def wload():
        f = wload_n[0]
        if f >= wok[0]: return 0
        while pool and pool[0][1] <= last_use(f): pool.pop(0)
        if not pool: return 0
        sl = pool.pop(0)
        wslot[f] = sl
        wload_n[0] += 1
        if P['NOW'] and f >= 16:
            wtag[f] = None; return 0
        k = f % 4
        e(f"buffer_load_dwordx4 {rng(*sl[0])}, v{vL0}, {SWS}, s{sWOFF} offen offset:{k*1024}{' sc1' if P['WSC'] else ''}")
        wtag[f] = VM.issue()
        n = 1
        if k == 3 and f + 1 < 768:
            lin = lambda g: ORDER[g][0] * 64 + ORDER[g][1] * 4 + ORDER[g][2]
            e(f"s_add_u32 s{sWOFF}, s{sWOFF}, {hex(((lin(f // 4 + 1) - lin(f // 4)) * 4096) & 0xffffffff)}"); n += 1
        return n
    def x0_io(ph, ksl):
        if P["XALT"] == 3:
            if own0(ph): return ksl * 256 + ((ph // 4) * 2 + ph % 2) * 64
            return (2 * (ph % 2) + (ksl >> 1)) * 256 + (2 * (ph // 4) + (ksl & 1)) * 64
        if P["XALT"] == 1: return (ph // 2) * 256 + ksl * 64
        if P["XALT"] == 2: return ((ph // 4) * 2 + ph % 2) * 256 + ksl * 64
        return ph * 256 + ksl * 64 if ph < 4 else ksl * 256 + (ph - 4) * 64
    m0own = [None]
    def dma_x0_m0(ph, ksl, i):
        m0own[0] = ("x", ph, ksl, i)
        lo = (ph % 4)*32768 + ksl*8192 + i*1024
        e(f"s_add_u32 m0, s{sW2048}, {lo - x0_io(ph, ksl) if lo >= x0_io(ph, ksl) else lo}")
    def dma_x0_ld(ph, ksl, i):
        assert m0own[0] == ("x", ph, ksl, i)
        so = (sXOWN if own0(ph) else sXOTH) + i
        if P["XALT"] == 1: so = (sXOTH if ph % 2 == 0 else sXOWN) + i
        if P["XALT"] == 2: so = (sXOTH if ph % 4 < 2 else sXOWN) + i
        io = x0_io(ph, ksl)
        if (ph % 4)*32768 + ksl*8192 + i*1024 < io:
            e(f"s_add_u32 s{sS2}, s{so}, {io}"); so = sS2; io = 0
        e(f"buffer_load_dwordx4 v{vXR}, {SX0}, s{so} offen offset:{io} lds")
        return VM.issue()
    blk_tag = {}
    blk_lg = {}
    st_tag = {}

    UB = T + 16
    vSG, vCG, vCT, vFL, vTR, vTR4 = 12, 13, 14, 15, 16, 20
    def code_touch(q):
        if q > 11: return 0
        e(f"s_add_u32 s96, s92, L_q{q}-L_pc"); e("s_addc_u32 s97, s93, 0")
        e("s_load_dword s98, s[96:97], 0")
        return 3
    e(f"s_add_u32 s96, s42, {EPOCH_OFF}"); e("s_addc_u32 s97, s43, 0")
    e(f"s_load_dwordx2 s[{sT}:{sT+1}], s[96:97], 0")
    e("v_mov_b32 v24, v12"); e("v_mov_b32 v25, v13"); e("v_mov_b32 v26, v14"); e("v_mov_b32 v27, v15")
    e("v_lshrrev_b32 v28, 2, v25"); e("v_and_b32 v29, 3, v25")
    e(f"v_lshlrev_b32 v{vCG}, 11, v28"); e(f"v_lshl_add_u32 v{vCG}, v29, 4, v{vCG}")
    e(f"s_lshr_b32 s44, s2, 3"); e("s_and_b32 s45, s2, 7")
    e("s_lshl_b32 s46, s44, 16"); e("s_lshl_b32 s47, s45, 8"); e("s_add_u32 s46, s46, s47")
    e(f"s_lshl_b32 s47, s{sW}, 6"); e("s_add_u32 s100, s46, s47")
    coop_tag = {}
    def coop_dma(l, n):
        m0own[0] = None
        e(f"s_add_u32 m0, s{sW2048}, {(32768 if l == 0 else 131072) + l*8192 + n*1024}")
        e(f"s_add_u32 s{sS2}, s100, {l*0x200000 + n*32768}")
        e(f"buffer_load_dwordx4 v{vCG}, {SWR}, s{sS2} offen lds"); coop_tag[l] = VM.issue()
        return 3
    coop_dma(0, 0); coop_dma(0, 1)
    pstamp()
    e(f"v_lshlrev_b32 v30, 2, v27"); e("v_xor_b32 v30, v30, v26"); e("v_lshlrev_b32 v30, 4, v30")
    e(f"v_lshl_add_u32 v{vSG}, v27, 11, v30")
    e(f"s_xor_b32 s{sSELF}, s{sHF}, 1"); e(f"s_lshl_b32 s{sSELF}, s{sSELF}, 20"); e(f"s_add_u32 s{sSELF}, s{sSELF}, s{sBOFF}")
    REG = {0: 2, 1: 3, 2: 4, 3: 2, 4: 4, 5: 3}
    self_tag = {}; self_lg = {}
    def self_dma1(n, ch):
        m0own[0] = None
        e(f"s_add_u32 m0, s{sW2048}, {REG[n]*32768 + (ch>>1)*8192 + (ch&1)*1024}")
        rb = (n >> 1) * 4 + (n & 1) if P["XALT"] == 3 else n
        e(f"s_add_u32 s{sS2}, s{sSELF}, {rb*65536 + ch*8192}")
        e(f"buffer_load_dwordx4 v{vSG}, {SWR}, s{sS2} offen lds"); self_tag[n] = VM.issue()
        return 3
    def self_dma(n):
        for ch in range(8): self_dma1(n, ch)
    def self_read1(n, a, u):
        j, h = divmod(a, 2)
        f = ((n // 2) * 4 + j) * 4 + 2 * h + n % 2
        w_ = 0
        if a == 0 and u == 0: w_ = wait(vm=self_tag[n])
        if u == 0:
            while pool[0][1] <= last_use(f): pool.pop(0)
            wslot[f] = pool.pop(0)
        k, b = wslot[f][0]
        R = REG[n]
        e(f"ds_read_b64_tr_b16 {rng(k, b+2*u, 2)}, v{(vTR4 if R == 4 else vTR)+j} offset:{(R % 2)*32768 + u*1024 + 8*h}")
        self_lg[n] = wlg[f] = LG.issue(); wtag[f] = None
        return 1 + w_
    half_tag = {}
    def blk_dma(ph, hv):
        for ksl in (2 * hv, 2 * hv + 1):
            for i in range(2):
                dma_x0_m0(ph, ksl, i); e("s_nop 0")
                blk_tag[(0, ph)] = dma_x0_ld(ph, ksl, i)
        if hv == 0: half_tag[ph] = blk_tag[(0, ph)]
    self_dma(0); self_dma(1); blk_dma(0, 0)
    pstamp()
    e("v_bfe_u32 v28, v25, 2, 2")
    e(f"v_lshlrev_b32 v30, 11, v24"); e("v_lshl_add_u32 v30, v29, 4, v30")
    e("v_lshrrev_b32 v31, 1, v27"); e(f"v_lshl_add_u32 v{vCT}, v31, 10, v30")
    e("v_and_b32 v31, 1, v27"); e("v_lshl_add_u32 v31, v31, 3, v28"); e(f"v_lshl_add_u32 v{vCT}, v31, 6, v{vCT}")
    e(f"v_add_u32 v{vCT}, 0x8000, v{vCT}")
    e("v_lshl_add_u32 v30, v27, 13, v30"); e("v_lshl_add_u32 v30, v28, 8, v30"); e("v_add_u32 v30, 0x10000, v30")
    for j in range(4):
        e(f"v_xor_b32 v31, {j}, v28"); e(f"v_lshl_add_u32 v{vTR+j}, v31, 6, v30"); e(f"v_add_u32 v{vTR4+j}, 0x10000, v{vTR+j}")
    e("s_lshr_b32 s40, s44, 2"); e("s_and_b32 s41, s44, 3"); e("s_and_b32 s42, s45, 4")
    e("s_xor_b32 s42, s40, s42")
    e("s_and_b32 s43, s42, 3")
    e("s_and_b32 s46, s45, 3"); e("s_xor_b32 s46, s43, s46")
    e("s_and_b32 s47, s42, 4"); e("s_or_b32 s47, s47, s41")
    def dcalc(d, ph, ka):
        e(f"s_lshl_b32 s{d}, s{ph}, 15")
        e(f"s_lshr_b32 s{sTMP}, s{ka}, 1"); e(f"s_lshl_b32 s{sTMP}, s{sTMP}, 14"); e(f"s_add_u32 s{d}, s{d}, s{sTMP}")
        e(f"s_and_b32 s{sTMP}, s{ka}, 1"); e(f"s_lshl_b32 s{sTMP}, s{sTMP}, 10"); e(f"s_add_u32 s{d}, s{d}, s{sTMP}")
    dcalc(57, 47, 46)
    if P["XALT"] == 3:
        e("s_and_b32 s47, s41, 1"); e("s_and_b32 s40, s43, 1"); e("s_lshl_b32 s40, s40, 1"); e("s_or_b32 s40, s40, s47")
        e("s_or_b32 s47, s47, 2"); e("s_lshr_b32 s43, s43, 1")
        e("s_cmp_lt_u32 s42, 4")
        e("s_cselect_b32 s47, s47, s43"); e("s_cselect_b32 s46, s46, s40")
        e("s_lshr_b32 s40, s41, 1"); e("s_lshl_b32 s40, s40, 2"); e("s_or_b32 s47, s47, s40")
    else:
        e("s_xor_b32 s47, s47, 4")
        e("s_cmp_lt_u32 s42, 4")
        e("s_cselect_b32 s47, s47, s43"); e("s_cselect_b32 s46, s46, s41")
    dcalc(58, 47, 46)
    e(f"s_mul_i32 s40, s45, {3*262144}"); e(f"s_lshl_b32 s41, s{sW}, 12"); e("s_add_u32 s40, s40, s41"); e(f"s_add_u32 s40, s40, {WP_OFF}")
    e("s_add_u32 s57, s40, s57"); e("s_add_u32 s58, s40, s58")
    e("s_add_u32 s57, s57, 262144"); e("s_add_u32 s99, s57, 262144")
    CD = {0: 58, 1: 57, 2: 99}
    e("s_getpc_b64 s[92:93]")
    e("L_pc:")
    e(f"s_lshr_b32 s94, s2, 3"); e(f"s_lshl_b32 s94, s94, 2"); e(f"s_add_u32 s94, s94, s{sW}")
    e(f"s_lshl_b32 s94, s94, 7")
    e("s_add_u32 s92, s92, s94"); e("s_addc_u32 s93, s93, 0")
    for q in range(P["CPF"]): code_touch(q)
    e(f"s_xor_b32 s{sPFLAG}, s2, 8")
    e(f"s_mul_i32 s{sXST}, s2, {P['XSTR']}"); e(f"s_add_u32 s{sXST}, s{sXST}, {X_OFF}")
    e(f"s_mul_i32 s{sXLD}, s{sPFLAG}, {P['XSTR']}"); e(f"s_add_u32 s{sXLD}, s{sXLD}, {X_OFF}")
    e(f"s_add_u32 s{sXLD}, s{sXLD}, s{sW8192}")
    for k in range(1, 4): e(f"s_add_u32 s{sXST+k}, s{sXST}, {(k//2)*32768 + (k%2)*4096}")
    if P["XOUT"]:
        e(f"s_lshr_b32 s{sXST}, s3, 7"); e(f"s_and_b32 s{sXST}, s{sXST}, {P['XMASK'] << 11}")
        e(f"s_lshl_b32 s{sXLD}, s{sW}, 14"); e(f"s_xor_b32 s{sXST}, s{sXST}, s{sXLD}")
        e(f"s_lshl_b32 s{sXLD}, s{sHF}, 10"); e(f"s_or_b32 s{sXST}, s{sXST}, s{sXLD}"); e(f"s_or_b32 s{sXST}, s{sXST}, s3")
        e(f"s_xor_b32 s{sXLD}, s{sXST}, 1024")
    e(f"s_lshl_b32 s{sFLAG}, s2, 7"); e(f"s_add_u32 s{sFLAG}, s{sFLAG}, {FLAG_OFF}")
    e(f"s_xor_b32 s{sPFLAG}, s{sFLAG}, {8*128}")
    e(f"s_lshr_b32 s59, s{sBOFF}, 1"); e(f"s_add_u32 s59, s59, {FLAG_OFF}")
    stamp()
    ct = {}; pack_tag = {}
    def creg(l, h): return ('a', 96 + h * 4) if l == 0 else ('v', 16 + ((l - 1) * 2 + h) * 4)
    def coop_read(l, h, u):
        w_ = wait(vm=coop_tag[l])
        k, b = creg(l, h)
        e(f"ds_read_b64_tr_b16 {rng(k, b + 2*u, 2)}, v{vCT} offset:{l*8192 + u*256 + h*8}")
        ct[(l, h)] = LG.issue(); return 1 + w_
    def coop_store(l, h):
        w_ = wait(lg=ct[(l, h)])
        e(f"buffer_store_dwordx4 {rng(*creg(l, h))}, v{vL0}, {SWS}, s{CD[l]} offen offset:{h*2048} sc1")
        pack_tag[l] = VM.issue(); return 1 + w_
    wait(vm=coop_tag[0])
    pstamp()
    for h in range(2):
        for u in range(2): coop_read(0, h, u)
    for h in range(2): coop_store(0, h)
    e(f"v_add_u32 v{vCT}, 0x18000, v{vCT}")
    blk_dma(0, 1); self_dma(2)
    pstamp()
    wait_lg_all()
    e(f"s_add_u32 s{sT}, s{sT}, 16"); e(f"s_addc_u32 s{sT+1}, s{sT+1}, 0")
    e(f"s_and_b32 s{sT}, s{sT}, -16"); e(f"s_and_b32 s{sT+1}, s{sT+1}, 0x7fffffff")
    e(f"s_add_u32 s{sXO}, s3, s{sBOFF}")
    for bt in range(1, 8): e(f"s_add_u32 s{sXO+bt}, s{sXO}, {bt*32768}")
    pstamp()
    for n in (0, 1):
        for a in range(8):
            for u in range(2): self_read1(n, a, u)
    pstamp()
    wait(vm=half_tag[0] if P["HB"] else blk_tag[(0, 0)])
    if P["FB"] == 0: wait(vm=pack_tag[0])
    e("s_barrier")
    stamp()
    def setflag(val):
        e(f"s_cmp_lg_u32 s{sW}, 0"); e(f"s_cbranch_scc1 L_nf{val}")
        if P["XL"] and val >= 2:
            e("s_cmp_lg_u32 s101, 0"); e(f"s_cbranch_scc1 L_nw{val}")
            e("buffer_wbl2 sc1"); e("s_waitcnt vmcnt(0)")
            e(f"L_nw{val}:")
        e(f"s_add_u32 s{sTMP}, s{sT}, {val}")
        e(f"v_mov_b32 v{vP}, s{sTMP}"); e(f"v_mov_b32 v{vP+1}, s{sT+1}"); e("s_mov_b64 exec, 1")
        e(f"buffer_store_dwordx2 {rng('v', vP, 2)}, off, {SWS}, s{sFLAG} sc1")
        if P["XL"] and val == 0:
            e("s_nop 3")
            e(f"v_add_u32 v{vP}, s101, v{vP}")
            e(f"buffer_store_dwordx2 {rng('v', vP, 2)}, off, {SWS}, s{sFLAG} offset:64 sc1")
        e("s_mov_b64 exec, -1")
        e(f"L_nf{val}:")
        return 2
    if P["FB"] == 0: setflag(0)
    wload_n[0] = 8 * P["NSELF"]
    btag = {}
    kst = {k: (0, 0) for k in range(4)}
    capt = set()
    def bread(l, s, c, bt):
        kap = (s % 2) * 2 + c
        if bop(l, s, c, bt) < 96:
            if (s, bt) in capt: return 0
            capt.add((s, bt))
        n = 1
        want = (0 if (l == 0 and not own0(s // 2)) else 1, (s // 4) % 2)
        if kst[kap] != want and P["XP"] and l == 0:
            assert kst[kap] == (1 - want[0], 1 - want[1])
            e(f"v_xor_b32 v{vK+kap}, s101, v{vK+kap}"); kst[kap] = want; n += 1
        elif kst[kap] != want:
            e(f"v_xor_b32 v{vK+kap}, {hex(kap*8192 + want[1]*65536)}, v{vW0 if want[0] else vL0}"); kst[kap] = want; n += 1
        off = ((s // 2) % 2) * 32768 + bt * 1024
        e(f"ds_read_b128 {rng('a', bop(l, s, c, bt))}, v{vK+kap} offset:{off}")
        btag[(c, bt)] = LG.issue()
        return n
    for bt in range(8):
        for c in range(2): bread(0, 0, c, bt)

    tasks = []
    def add_task(ready, deadline, items): tasks.append([ready, deadline, list(items)])
    pre_ev = {}; post_ev = {}
    def at_pre(m, f): pre_ev.setdefault(m, []).append(f)
    def at_post(m, f): post_ev.setdefault(m, []).append(f)

    def sched_dma(l, ph, m0, spread):
        if P['NODMA']: return
        assert m0 >= free_at(l, ph), (l, ph, m0, free_at(l, ph))
        assert m0 + 7 * spread < 32 * RB(l, ph), (l, ph)
        sys.stderr.write(f"dma ({l},{ph}) {m0 % 2048}..{(m0 + 7 * spread) % 2048} free {free_at(l, ph) % 2048} need {32 * RB(l, ph) % 2048}\n")
        if l == 0:
            seq = [(j, i) for j in range(4) for i in range(2)]
            for n, (j, i) in enumerate(seq):
                m = m0 + n * spread
                at_pre(m, lambda j=j, i=i: (dma_x0_m0(ph, j, i), 1)[1])
                def ld(j=j, i=i):
                    blk_tag[(l, ph)] = dma_x0_ld(ph, j, i)
                    if (j, i) == (1, 1): half_tag[ph] = blk_tag[(l, ph)]
                    return 1
                at_post(m, ld)
        else:
            j = ph % 4
            for n in range(8):
                m = m0 + n * spread
                if P["XOUT"]:
                    def setm1(n=n):
                        m0own[0] = ("e", l, ph, n)
                        e(f"s_add_u32 m0, s{sW8192}, {j*32768 + n*1024}")
                        e(f"s_xor_b32 s{sTMP2}, s{sXLD}, {(j*32 + n)*2048}")
                        return 2
                    at_pre(m, setm1)
                    def ld1(n=n):
                        assert m0own[0] == ("e", l, ph, n)
                        e(f"buffer_load_dwordx4 v{vL0}, {SOUT}, s{sTMP2} offen {P['XSC']} lds")
                        blk_tag[(l, ph)] = VM.issue(); return 1
                    at_post(m, ld1)
                    continue
                if n % 4 == 0:
                    def setm(n=n):
                        m0own[0] = ("e", l, ph, n // 4)
                        e(f"s_add_u32 m0, s{sW8192}, {j*32768 + (n//4)*4096}")
                        if ph >= 8:
                            e(f"s_add_u32 s{sTMP2}, s{sXST}, {(j + 2)*32768 + (n//4)*4096}"); e(f"s_add_u32 s{sTMP2}, s{sTMP2}, s{sW8192}")
                        elif P['XSMALL'] == 2: e(f"s_add_u32 s{sTMP2}, s{sXLD}, {(j%2)*32768 + (n//4)*4096}")
                        else: e(f"s_add_u32 s{sTMP2}, s{sXLD}, {(0 if P['SAMEX'] else (l-1)*256*P['XSTR']) + j*32768 + (n//4)*4096}")
                        return 2
                    at_pre(m, setm)
                def ld(n=n):
                    assert m0own[0] == ("e", l, ph, n // 4)
                    e(f"buffer_load_dwordx4 v{vL0}, {SWS}, s{sTMP2} offen offset:{(n%4)*1024} {P['XSC']} lds")
                    blk_tag[(l, ph)] = VM.issue(); return 1
                at_post(m, ld)
    sched_dma(0, 1, P["B1M"], P["B1S"])
    def sched_sdma(n, prev, m0):
        at_post(m0, lambda: wait(lg=self_lg[prev]))
        for ch in range(8): at_post(m0 + P["UDS"] * ch, lambda ch=ch: self_dma1(n, ch))
    sched_sdma(3, 0, P["U3D"])
    if P["NSELF"] > 4:
        sched_sdma(5, 1, P["U5D"]); sched_sdma(4, 2, P["U4D"])
        assert P["U2M"] + 16 < P["U4D"]
    mc = M(0, P["C12"]) + 10
    at_post(mc, lambda: wait(lg=self_lg[4 if P["NSELF"] > 4 else 2]))
    for i, (l, n) in enumerate([(1, 0), (1, 1), (2, 0), (2, 1)]): at_post(mc + 16 * i, lambda l=l, n=n: coop_dma(l, n))
    for i, (l, h, u) in enumerate([(l, h, u) for l in (1, 2) for h in range(2) for u in range(2)]):
        at_post(mc + 224 + 2 * i, lambda l=l, h=h, u=u: coop_read(l, h, u))
    for i, (l, h) in enumerate([(l, h) for l in (1, 2) for h in range(2)]): at_post(mc + 250 + 16 * i, lambda l=l, h=h: coop_store(l, h))
    PH12 = P["C12"] // 2 + 2
    G12 = RB(0, PH12 + 1)
    assert mc + 250 + 48 + 100 < 32 * G12
    at_post(32 * G12, lambda: setflag(1))
    for ph in range(P["DLEAD"], 8):
        if ph == 2:
            at_pre(P["B2"], lambda: wait(lg=self_lg[3]))
            sched_dma(0, ph, P["B2"], P["B2S"])
        elif ph == 3 and P["NSELF"] > 4:
            at_pre(P["B3"], lambda: wait(lg=self_lg[5]))
            sched_dma(0, ph, P["B3"], P["B3S"])
        elif ph == 4 and P["D4"]: sched_dma(0, ph, P["D4"], (P["D5"] - P["D4"]) // 8)
        elif ph == 5 and P["D5"]: sched_dma(0, ph, P["D5"], P["DSPREAD"])
        else: sched_dma(0, ph, M(0, 2 * (ph - P["DLEAD"])) + P["DOFF"], P["DSPREAD"])
    def sched_self(n, m0):
        for a in range(8):
            for u in range(2): at_post(m0 + 2 * a + u, lambda a=a, u=u: self_read1(n, a, u))
    sched_self(2, P["U2M"]); sched_self(3, P["U3M"])
    if P["NSELF"] > 4:
        sched_self(5, P["U5M"]); sched_self(4, P["U4M"])
        assert P["U5M"] + 16 < P["B3"]
    assert P["U3M"] + 16 < P["B2"]
    if P["FB"]:
        def fbar():
            wait(vm=pack_tag[0]); e("s_barrier"); return 2 + setflag(0)
        at_pre(P["FB"], fbar)
    wp = [None]
    def wpoll0():
        e(f"v_and_b32 v{vP}, 0x1f0, v{vL0}"); e(f"v_lshlrev_b32 v{vP}, 6, v{vP}")
        e(f"buffer_load_dwordx2 {rng('v', vP, 2)}, v{vP}, {SWS}, s59 offen sc1")
    def wpoll():
        wpoll0(); wp[0] = VM.issue(); return 3
    def wflagchk(val, lab):
        e(f"s_add_u32 s{sTMP}, s{sT}, {val}")
        e(f"v_subrev_u32 v{vP}, s{sTMP}, v{vP}"); e(f"v_xor_b32 v{vP+1}, s{sT+1}, v{vP+1}"); e("s_nop 0")
        e(f"v_cmp_gt_u64 vcc, {16-val}, {rng('v', vP, 2)}"); e("s_nop 3")
        e("s_cmp_lg_u64 vcc, -1"); e(f"s_cbranch_scc1 {lab}")
    def wchk(val):
        wait(vm=wp[0])
        wflagchk(val, f"L_wspin{val}")
        e(f"L_wback{val}:")
        wok[0] = 256 if val == 0 else 768
        return 8
    m12 = P["M12"] * 128 + 48
    for val, mm in ((0, P["WCHK"]), (1, m12)):
        at_post(mm - P["WPOLL"], wpoll)
        at_post(mm, lambda val=val: wchk(val))
    x0l_lg = [None]
    for bt in range(8):
        def wr(bt=bt):
            e(f"ds_write_b128 v{vLX}, {rng('a', breg(0, bt))} offset:{bt*1024}")
            x0l_lg[0] = LG.issue(); return 1
        at_post(M(0, 14, 0, bt) + 5, wr)
    ptag = {}
    def flagchk(val, lab):
        e(f"v_readfirstlane_b32 s{sTMP}, v{vP}"); e(f"v_readfirstlane_b32 s{sS2}, v{vP+1}")
        e(f"s_xor_b32 s{sTMP}, s{sTMP}, s{sT}"); e(f"s_sub_u32 s{sTMP}, s{sTMP}, {val}")
        e(f"s_cmp_lg_u32 s{sS2}, s{sT+1}"); e(f"s_cbranch_scc1 {lab}")
        e(f"s_cmp_gt_u32 s{sTMP}, {15-val}"); e(f"s_cbranch_scc1 {lab}")
    spins = []
    FLAGBAR = {}
    busy = []
    def add_poll(val, mchk):
        def poll():
            e(f"buffer_load_dwordx2 {rng('v', vP, 2)}, off, {SWS}, s{sPFLAG} {'offset:64 ' if val == 0 else ''}sc1")
            ptag[val] = VM.issue(); return 1
        busy.append((mchk - P["POLL_M"], mchk))
        at_post(mchk - P["POLL_M"], poll)
        def chk():
            wait(vm=ptag[val])
            flagchk(val, f"L_spin{val}")
            e(f"L_back{val}:")
            if val == 0: e(f"s_cmp_eq_u32 s{sTMP}, s101"); e("s_cselect_b32 s101, 1, 0")
            return 8
        at_post(mchk, chk)
        spins.append(val)
    if P["XL"]:
        assert not P["XP"] and not P["XOUT"] and not P["SAMEX"] and not P["TX"]
        add_poll(0, P["XLM"]); busy.append((32 * G12, 32 * G12)); busy.append((m12 - P["WPOLL"], m12))
    FV = 4 if (P["XOUT"] or P["SAMEX"]) else 2
    gate = {}
    if P["XOUT"] or P["SAMEX"]:
        for l in ((1, 2) if P["XOUT"] else (1,)):
            for hb in range(2):
                val = 4 * l + hb
                gb = RB(l, 5 + 2 * hb)
                at_post(32 * gb, lambda val=val: setflag(val)); busy.append((32 * gb, 32 * gb))
                gate[(l, hb)] = 2048 * l + P[("CA", "CB")[hb] + str(l)]
                add_poll(val, gate[(l, hb)])
    for l in (1, 2):
        sp = P["XDS"] if l == 1 else P["XDL"]
        mm = 2048 * l + P["XD0" if l == 1 else "XD2"]
        for hb in range(2):
            val = FV * (l - 1) + hb + 2
            gb = 64 * l + P["XBA"] if hb == 0 else RB(l, 2)
            FLAGBAR[gb] = (l, 2 * hb + 1)
            mchk = max(mm, free_at(l, 4 + 2 * hb), 4096 + P["XC2"] if (l == 2 and hb == 1) else 0) + 2
            if l == 2 and hb == 0 and P["TX"]: mchk = mm
            if not P["NOSYNC"]:
                at_post(32 * gb, lambda val=val: setflag(val)); busy.append((32 * gb, 32 * gb))
                add_poll(val, mchk)
            mm = mchk + 1
            for jj in (2 * hb, 2 * hb + 1):
                mm = max(mm, free_at(l, 4 + jj) + 1)
                sched_dma(l, 4 + jj, mm, sp)
                mm += 8 * sp
        if l == 2 and P["TX"]:
            assert not P["XOUT"]
            for ph in (8, 9): sched_dma(2, ph, free_at(2, ph) + 3, P["RFS"])
        busy.sort()
        for x, y in zip(busy, busy[1:]): assert x[1] < y[0], (x, y)
        if l == 1 and not P['SAMEX'] and not P['XOUT']:
            def bump():
                for k in range(4): e(f"s_add_u32 s{sXST+k}, s{sXST+k}, {256*P['XSTR']}")
                return 4
            at_post(M(1, 9, 1), bump)
    for l in (0, 1, 2):
        bt_tags = {}
        Tn = P["TT"] if l < 2 else P["TL"]
        for j in range(4):
            sb = (P["BS0"] if l == 0 else P["HH"] - 1) if j < 2 else 15 - Tn
            sn = sb + 1
            if l == 2 and j >= 2 and P["TX"]: sb, sn = 3, 8
            rdy = M(l, sb, j) + 36
            if l > 0 and j < 2: rdy = max(rdy, M(l, 0, 3) + 32 + 100)
            def ld(j=j, l=l):
                if l == 2 and j == 0: e(f"s_add_u32 s{sBOFF}, s{sBOFF}, 4096")
                bt_tags[j] = bias_load(l, j); return 1
            at_post((rdy - 96 if j % 2 == 0 else prev_ld + 4), ld)
            prev_ld = rdy - 96
            items = []
            for h in range(2):
                def first(j=j, h=h): wait(vm=bt_tags[j]); e(f"v_lshlrev_b32 v{UB}, 16, v{T+4*j+2*h}")
                items.append(first)
                items.append(lambda j=j, h=h: e(f"v_and_b32 v{UB+1}, s{sMASK}, v{T+4*j+2*h}"))
                items.append(lambda j=j, h=h: e(f"v_lshlrev_b32 v{UB+2}, 16, v{T+4*j+2*h+1}"))
                items.append(lambda j=j, h=h: e(f"v_and_b32 v{UB+3}, s{sMASK}, v{T+4*j+2*h+1}"))
                for bt in range(8):
                    k, b = acc(2 * j + h, bt)
                    if k == "v":
                        for r in range(4):
                            items.append(lambda b=b, r=r: e(f"v_add_f32 v{b+r}, v{b+r}, v{UB+r}"))
                    else:
                        for r in range(4): items.append(lambda b=b, r=r: e(f"v_accvgpr_read_b32 v{T+r}, a{b+r}"))
                        for r in range(4): items.append(lambda r=r: e(f"v_add_f32 v{T+r}, v{T+r}, v{UB+r}"))
                        for r in range(4): items.append(lambda b=b, r=r: e(f"v_accvgpr_write_b32 a{b+r}, v{T+r}"))
            dlb = M(l, sn, j) - 1
            if j >= 2: dlb = min(dlb, M(l, 15, 0) + 7)
            add_task(rdy, dlb, items)
    xl_tag = {}; pend_st = []; next_st = [0]
    U = T + 12; A = T + 16
    for l in range(3):
        last = l == 2
        seq = [divmod(u, 8) for u in range(32)]
        if last and P["OI"] >= 1: seq[:16] = [(u % 2, u // 2) for u in range(16)]
        if last and P["OI"] >= 2: seq[16:] = [(2 + u % 2, u // 2) for u in range(16)]
        prev_ready = 0
        for u in range(32):
            j, bt = seq[u]
            ot = last and P["OT"]
            ts = T + 4 * (u % (2 if ot else 3))
            items = []
            vWA, vRA, vGA = T + 8, T + 10, T + 11
            if ot:
                assert P["OI"] == 2
                if u == 0:
                    for ins in (f"v_lshrrev_b32 v{U}, 7, v{vL0}", f"v_lshlrev_b32 v{U+1}, 4, v{U}", f"v_xor_b32 v{vRA}, v{U+1}, v{vLX}",
                                f"v_and_b32 v{U+1}, 0x70, v{vL0}", f"v_lshl_add_u32 v{vGA}, v{U}, 11, v{U+1}",
                                f"v_lshrrev_b32 v{U}, 4, v{vL0}", f"v_and_b32 v{U}, 0x30, v{U}", f"v_xor_b32 v{U}, v{U}, v{U+1}",
                                f"v_and_b32 v{U+1}, 0xf0, v{vL0}", f"v_lshl_add_u32 v{U}, v{U+1}, 3, v{U}",
                                f"v_sub_u32 v{U+1}, v{vLX}, v{vL0}", f"v_add_u32 v{vWA}, v{U}, v{U+1}", f"v_xor_b32 v{vWA+1}, 64, v{vWA}"):
                        items.append(lambda ins=ins: e(ins))
                    if P["OX"]:
                        for ins in (f"v_bfe_u32 v{U}, v{vW0}, 13, 1", f"v_lshl_add_u32 v{vGA}, v{U}, 7, v{vGA}", f"v_xor_b32 v{vXR}, 0x80, v{vGA}"):
                            items.append(lambda ins=ins: e(ins))
            xsrc = acc(bt % 4, bt // 4)[1] if (ot and j == 3) else ts
            def xl_prefetch(uu, seq=seq):
                def f():
                    wait(lg=x0l_lg[0])
                    e(f"ds_read_b128 {rng('v', T + 4*(uu % 3))}, v{vLX} offset:{seq[uu][1]*1024}")
                    xl_tag[uu] = LG.issue()
                return f
            if j < 3:
                for d in range(4): items.append(lambda d=d, j=j, bt=bt, ts=ts: e(f"v_accvgpr_read_b32 v{ts+d}, a{x0r(j, bt)+d}"))
            for h in range(2):
                k, b = acc(2 * j + h, bt)
                def first(h=h, ts=xsrc, u=u, j=j, ot=ot, bt=bt):
                    if j == 3: wait(lg=xl_tag[("m", bt) if ot else u])
                    e(f"v_lshlrev_b32 v{U}, 16, v{ts+2*h}")
                items.append(first)
                items.append(lambda h=h, ts=xsrc: e(f"v_and_b32 v{U+1}, s{sMASK}, v{ts+2*h}"))
                items.append(lambda h=h, ts=xsrc: e(f"v_lshlrev_b32 v{U+2}, 16, v{ts+2*h+1}"))
                items.append(lambda h=h, ts=xsrc: e(f"v_and_b32 v{U+3}, s{sMASK}, v{ts+2*h+1}"))
                if h == 0 and u + 2 < 32 and seq[u + 2][0] == 3 and not ot: items.append(xl_prefetch(u + 2))
                for r in range(4):
                    if k == "v":
                        items.append(lambda b=b, r=r: e(f"v_mul_f32 v{U+r}, v{U+r}, v{b+r}"))
                    else:
                        items.append(lambda b=b, r=r: e(f"v_accvgpr_read_b32 v{A+r}, a{b+r}"))
                        items.append(lambda r=r: e(f"v_mul_f32 v{U+r}, v{U+r}, v{A+r}"))
                items.append(lambda h=h, ts=ts: e(f"v_cvt_pk_bf16_f32 v{ts+2*h}, v{U}, v{U+1}"))
                items.append(lambda h=h, ts=ts: e(f"v_cvt_pk_bf16_f32 v{ts+2*h+1}, v{U+2}, v{U+3}"))
            if ot:
                def rbreg(j, bt, k): return ("a", x0r(k, bt)) if j < 2 else acc(4 + k, bt)
                def ost(j, bt, k):
                    def f():
                        wait(lg=xl_tag[("r", j // 2, bt, k)])
                        so = sXO + bt
                        if k: e(f"s_add_u32 s{sXST+2}, s{so}, 16384"); so = sXST + 2
                        e(f"buffer_store_dwordx4 {rng(*rbreg(j, bt, k))}, v{(vXR if j >= 2 else vGA) if P['OX'] else vGA}, {SOUT}, s{so} offen offset:{0 if P['OX'] else (j//2)*128} {P['OSC'] if (j < 2 or not P['OSC2']) else ''}")
                        VM.issue()
                        if P["DEEPT"] and j < 2: pool.append((rbreg(j, bt, k), NM))
                    return f
                if u < 4:
                    for k in range(2):
                        def mv(b2=2 * u + k):
                            e(f"ds_read_b128 {rng(*acc(b2 % 4, b2 // 4))}, v{vLX} offset:{b2*1024}")
                            xl_tag[("m", b2)] = LG.issue()
                        items.append(mv)
                def dwo(j=j, bt=bt, ts=ts):
                    e(f"ds_write_b128 v{vWA + j % 2}, {rng('v', ts)} offset:{(bt % 4)*2048}"); LG.issue()
                    if P["DEEPT"] and j < 2 and bt >= 2: pool.extend([(acc(2 * j, bt), NM), (acc(2 * j + 1, bt), NM)])
                items.append(dwo)
                if j % 2 == 1:
                    for k in range(2):
                        def rb(j=j, bt=bt, k=k):
                            e(f"ds_read_b128 {rng(*rbreg(j, bt, k))}, v{vRA} offset:{(bt % 4)*2048 + k*1024}")
                            xl_tag[("r", j // 2, bt, k)] = LG.issue()
                            if P["SPACE"] and j < 2: pend_st.append((cur_m[0] + 8, ost(j, bt, k)))
                        items.append(rb)
                    if P["SPACE"] and j < 2: pass
                    elif u in (15, 31): items += [lambda: e("s_nop 0")] * (0 if u == 31 else 6) + [ost(j, bt, 0), ost(j, bt, 1)]
                elif u not in (0, 16) and not (P["SPACE"] and j < 2): items += [ost(*seq[u - 1], 0), ost(*seq[u - 1], 1)]
            elif last:
                def st(j=j, bt=bt, ts=ts):
                    if P['NOOUT'] == 1 and not (j == 3 and bt == 7): return
                    if P['NOOUT'] == 2:
                        e(f"buffer_store_dwordx4 {rng('v', ts)}, v{vW0 if j < 2 else vW1}, {SWS}, s{sXST + (j%2)*2 + bt//4} offen offset:{(bt%4)*1024}")
                    else: e(f"buffer_store_dwordx4 {rng('v', ts)}, v{vXR}, {SOUT}, s{sXO+bt} offen offset:{j*64} {P['OSC']}")
                    VM.issue()
                    if P["DEEPT"] and j < 2:
                        pool.extend([(acc(2 * j, bt), NM), (acc(2 * j + 1, bt), NM), (("a", x0r(j, bt)), NM)])
                items.append(st)
            else:
                def dw(j=j, bt=bt, ts=ts, l=l):
                    off = j * 32768 + bt * 1024
                    e(f"ds_write_b128 v{vW0 if off < 65536 else vW1}, {rng('v', ts)} offset:{off % 65536}")
                    blk_lg[(l + 1, j)] = LG.issue()
                items.append(dw)
                def xs(j=j, bt=bt, ts=ts, l=l):
                    if P['NOST']: return
                    if P['XOUT']:
                        e(f"s_xor_b32 s{sXST+1}, s{sXST}, {(j*32 + bt)*2048}")
                        e(f"buffer_store_dwordx4 {rng('v', ts)}, v{vL0}, {SOUT}, s{sXST+1} offen {P['SSC']}")
                        st_tag[(l + 1, j)] = VM.issue()
                        return
                    e(f"buffer_store_dwordx4 {rng('v', ts)}, v{vW0 if j < 2 else vW1}, {SWS}, s{sXST + (j%2)*2 + bt//4} offen offset:{(bt%4)*1024} {P['SSC']}")
                    st_tag[(l + 1, j)] = VM.issue()
                items.append(xs)
            ready = max(ML(l, LS(l, j), j, bt) + 5, prev_ready + (P["OPACE"] if (last and j < 2 and u > 0) else 0))
            if (P["XOUT"] and l >= 1) or (P["SAMEX"] and l == 1): ready = max(ready, gate[(l, (bt // 4) if last else (j // 2))] + 1)
            if last: prev_ready = ready
            dl = min(M(l + 1, 0, j, bt), 32 * RB(l + 1, j)) if not last else NM + 1
            if not last: ready = max(ready, free_at(l + 1, j))
            add_task(ready, dl, items)
    tasks.sort(key=lambda t: (t[0], t[1]))

    def run_items(m, n):
        k = 0
        while k < n and tasks and tasks[0][0] <= m:
            t = tasks[0]
            t[2].pop(0)(); k += 1
            if not t[2]: tasks.pop(0)
        return k
    def flush_deadlines(m):
        lastidx = -1
        for i, t in enumerate(tasks):
            if t[1] <= m: lastidx = i
            if t[0] > m: break
        n = 0
        for _ in range(lastidx + 1):
            t = tasks.pop(0)
            assert t[0] <= m, (t[0], m)
            for f in t[2]: f(); n += 1
        return n

    stall = 0
    CT = {1: {417: 2, 801: 3, 1057: 4, 1441: 5, 2593: 6, 2721: 7, 3105: 8, 3489: 9, 4641: 10, 4769: 11},
          2: {417: 2, 801: 3, 1057: 4, 1313: 5, 1441: 6, 2593: 7, 2977: 8, 3233: 9, 3489: 10, 4641: 11}}.get(P["CTM"])
    for m in range(NM):
        g, r = divmod(m, 32); l, s, rp, bt, sub = SEQ[m]; h, c = divmod(sub, 2); wg = GPOS[(l, s, rp)]
        ph = s // 2
        npre = 0
        stall += flush_deadlines(m)
        if m % 512 == 0: e(f"L_q{m//512}:")
        cur_m[0] = m
        if P["CTM"] == 0:
            if P["CPF"] and m % 512 == 33: npre += code_touch(m // 512 + P["CPF"]); touch_m.append(m)
        elif m in CT: npre += code_touch(CT[m]); touch_m.append(m)
        if P["STAMPS"] == 1 and m % 512 == 0: stamp()
        if 2 <= P["STAMPS"] < 9 and m % 128 == 0 and P["SG0"] <= m // 128 < P["SG0"] + 12: stamp()
        if P["STAMPS"] == 10 and r == 0 and P["SG0"] <= m // 32 < P["SG0"] + 12: stamp()
        if P["STAMPS"] == 9 and r == 0 and rp == 0 and l == 0 and 1 <= s < 6: stamp()
        if r == 0 and g in BARS:
            vms = []; lgt = None
            for nl in range(3):
                for nph in range(NPH(nl)):
                    if (nl, nph) != (0, 0) and RB(nl, nph) == g:
                        vms.append(half_tag[nph] if (nl == 0 and nph < P["HB"]) else blk_tag.get((nl, nph)))
                        lgt = blk_lg.get((nl, nph))
            for nph in range(P["HB"]):
                if RDG[(0, 2 * nph + 1)][0] == g: vms.append(blk_tag[(0, nph)])
            if g == G12: vms.append(pack_tag[2])
            if g in FLAGBAR: vms.append(st_tag.get(FLAGBAR[g]))
            vms = [t for t in vms if t is not None]
            wait(vm=max(vms) if vms else None, lg=lgt)
            if not P["NOBAR"]: e("s_barrier")
            npre += 2
        for f in pre_ev.get(m, []): npre += f()
        vmt = wtag[wg * 4 + 3] if FU[wg] == m else None
        lgt = max(btag[(0, bt)], btag[(1, bt)]) if m == M(l, s, rp, bt) else None
        if FU[wg] == m:
            lw = [wlg[f] for f in range(wg * 4, wg * 4 + 4) if f in wlg]
            if lw: lgt = max(lw + ([lgt] if lgt is not None else []))
        npre += wait(vm=vmt, lg=lgt)
        k, b = acc(2 * rp + h, bt)
        d = rng(k, b)
        e(f"v_mfma_f32_16x16x32_bf16 {d}, {rng(*wslot[wg*4 + sub][0])}, {rng('a', bop(l, s, c, bt))}, {'1.0' if (2 * rp + h, bt) not in acc_init else d}")
        acc_init.add((2 * rp + h, bt))
        npost = 0
        if LU[wg * 4 + sub] == m:
            pool.append(wslot[wg * 4 + sub])
            npost += wload()
        elif m % P["RAMP"] == 1:
            npost += wload()
        if m in BRD and not P['NOJIT']:
            npost += bread(BRD[m][0], BRD[m][1], c, bt)
        for f in post_ev.get(m, []): npost += f()
        if pend_st and m >= next_st[0] and m >= pend_st[0][0]:
            pend_st.pop(0)[1](); npost += 1; next_st[0] = m + P["SPACE"]
        run_items(m, CAP - npost - npre)
    if P["STAMPS"] == 3: stamp()
    e("s_nop 7")
    n = 0
    assert not pend_st
    while tasks: n += run_items(NM + 100, 1000)
    sys.stderr.write(f"forced items {stall}, tail items {n}\n")
    if P["STAMPS"]:
        stamp()
        if P["STAMPS"] == 3: e("s_waitcnt vmcnt(0)"); stamp()
        e("s_waitcnt lgkmcnt(0)")
        ns = nstamp[0]
        assert ns <= 16
        for i in range(ns): e(f"v_mov_b32 v{32+i}, s{sSTAMP+2*i}")
        e(f"s_lshl_b32 s{sTMP}, s2, 8"); e(f"s_lshl_b32 s3, s{sW}, 6"); e(f"s_add_u32 s{sTMP}, s{sTMP}, s3")
        for i in range(0, 16, 4):
            e(f"buffer_store_dwordx4 {rng('v', 32+i)}, off, {SWS}, s{sTMP} offset:{i*4}")
    e("s_cmp_lg_u32 s2, 0"); e("s_cbranch_scc1 L_end")
    e(f"s_cmp_lg_u32 s{sW}, 0"); e("s_cbranch_scc1 L_end")
    e(f"v_mov_b32 v{vP}, s{sT}"); e(f"v_mov_b32 v{vP+1}, s{sT+1}"); e("s_mov_b64 exec, 1")
    e(f"s_mov_b32 s{sTMP}, {EPOCH_OFF}")
    e(f"buffer_store_dwordx2 {rng('v', vP, 2)}, off, {SWS}, s{sTMP}")
    e("L_end:")
    e("s_endpgm")
    for val in spins:
        e(f"L_spin{val}:")
        e(f"s_mov_b32 s{sSPIN}, 0x40000")
        e(f"L_spinl{val}:")
        e("s_sleep 1")
        e(f"buffer_load_dwordx2 {rng('v', vP, 2)}, off, {SWS}, s{sPFLAG} {'offset:64 ' if val == 0 else ''}sc1")
        e(f"s_sub_u32 s{sSPIN}, s{sSPIN}, 1")
        e("s_waitcnt vmcnt(0)")
        e(f"s_cmp_eq_u32 s{sSPIN}, 0"); e(f"s_cbranch_scc1 L_back{val}")
        flagchk(val, f"L_spinl{val}")
        e(f"s_branch L_back{val}")
    for val in (0, 1):
        e(f"L_wspin{val}:")
        e(f"s_mov_b32 s{sSPIN}, 0x40000")
        e(f"L_wspinl{val}:")
        e("s_sleep 2")
        wpoll0()
        e(f"s_sub_u32 s{sSPIN}, s{sSPIN}, 1")
        e("s_waitcnt vmcnt(0)")
        e(f"s_cmp_eq_u32 s{sSPIN}, 0"); e(f"s_cbranch_scc1 L_wback{val}")
        wflagchk(val, f"L_wspinl{val}")
        e(f"s_branch L_wback{val}")

LAUNCH = "; @launch grid=(256,1,1) block=(256,1,1) lds=163840"
hdr = f"""; DCN-v2 cross network, 3 layers, B=16384, D=1024, bf16.  Generated by dev/gen.py (hand-written generator).
{LAUNCH}
.amdgcn_target "amdgcn-amd-amdhsa--gfx950"
.text"""
main_kernel()
if P['CPF']: e('.fill 4096, 4, 0xBF800000')
def kd(name, vg, ao, sg):
    return f""".p2align 6
.amdhsa_kernel {name}
  .amdhsa_next_free_vgpr {vg}
  .amdhsa_next_free_sgpr {sg}
  .amdhsa_accum_offset {ao}
  .amdhsa_group_segment_fixed_size 0
  .amdhsa_kernarg_size 48
  .amdhsa_user_sgpr_count 2
  .amdhsa_user_sgpr_kernarg_segment_ptr 1
  .amdhsa_system_sgpr_workgroup_id_x 1
.end_amdhsa_kernel
"""
tail = '\n.section .rodata,"a"\n' + kd(KN, 512, 256, 102)
open(out, "w").write(hdr + "\n" + "\n".join(L) + tail)
```

```python
import sys
out = sys.argv[1]
P = dict(CAPT=0, CAPN=64, PKA=0, PKM=0, SNK=0, CAP=2, DLEAD=2, DSPREAD=32, STAMPS=0, XSC="sc1", SSC="sc1", POLL_M=64, BIAS_S=11, NOSYNC=0, XDSPREAD=24,
         DOFF=2, NODMA=0, NOBAR=0, NOW=0, NOJIT=0, NOST=0, DEEP=1, XCHK=192, STOFF=5, STSPREAD=20, RAMP=4, XSMALL=0, NOOUT=0, XSTR=131072+1024, CPF=2, ONLY=0, RT=0, WSC=1, OX=0, XL=0, XLM=1100, TX=0, XD2=550, XC2=0, RFS=16, SPACE=0, SPACE2=0, T3=0, XP=0, OT=0, OSC2=0, XOUT=0, XMASK=31, CA1=1600, CB1=1960, CA2=1470, CB2=1640, SAMEX=0, PORD=0, D4=0, D5=0, CTM=0, XALT=0, OI=0, OPACE=0, DEEPT=0, OSC="", SG0=1, HH=4, TT=4, TL=8, TL2=4, XBA=9, XD0=550, XDS=30, XDL=24, BS0=9,  PTOUCH=0, HB=4, C12=5, B1M=34, B1S=8, UDS=4, U3D=0, U5D=64, U4D=98, B3=262, B3S=24, M12=14,  NSELF=6, FB=0, WCHK=280, WPOLL=64, B2=132, B2S=16, BLK1E=1, U2M=40, U3M=100, U5M=200, U4M=226)
for kv in sys.argv[2:]:
    k, v = kv.split("=")
    P[k] = v.replace("+", " ").replace("none", "") if k in ("XSC", "SSC", "OSC") else int(v)
CAP = P["CAP"]

KN = "standalone__cross_network_dcn__recsys_kernel"
PK = "dcn_pack_kernel"
WP_OFF = 0x100000
FLAG_OFF = 0x800000
X_OFF = P.get("XOFF", 0x1000000)
L = []
def e(s): L.append(s)

class Ctr:
    def __init__(s, name, mx): s.name, s.mx, s.n, s.done = name, mx, 0, 0
    def issue(s):
        s.n += 1
        return s.n - 1
    def need(s, idx):
        if idx is None or idx < s.done: return None
        N = min(s.n - 1 - idx, s.mx)
        s.done = max(s.done, s.n - N)
        return N
cur_m = [0]; touch_m = []
VM = Ctr("vmcnt", 63); LG = Ctr("lgkmcnt", 15)
def wait(vm=None, lg=None):
    a = VM.need(vm); b = LG.need(lg)
    parts = []
    if a is not None: parts.append(f"vmcnt({a})")
    if b is not None:
        parts.append(f"lgkmcnt({b})")
        if touch_m: sys.stderr.write(f"touch at {touch_m[0]}: next lgkm wait after {cur_m[0] - touch_m[0]} (N={b})\n"); touch_m.clear()
    if parts:
        e("s_waitcnt " + " ".join(parts)); return 1
    return 0
def wait_lg_all():
    e("s_waitcnt lgkmcnt(0)"); LG.done = LG.n

vL0, vK, vXR, vW0, vW1, vLX, vB, vP = 0, 1, 5, 6, 7, 8, 9, 10
T = 12
def acc(a, bt):
    if a < 7:
        b = 32 + (a * 8 + bt) * 4
        return ("v", b)
    return ("a", 224 + bt * 4)
def rng(k, b, n=4): return f"{k}[{b}:{b+n-1}]"
def x0r(j, bt): return (j * 8 + bt) * 4
def breg(c, bt): return 96 + (c * 8 + bt) * 4
SX0, SOUT, SWS, SBS, SWR = "s[12:15]", "s[16:19]", "s[20:23]", "s[24:27]", "s[4:7]"
sT, sSELF, sS2 = 8, 10, 11
EPOCH_OFF = 0x810000
sW, sHF, sWOFF, sW2048, sW8192, sMASK, sTMP, sFLAG, sPFLAG, sBOFF, sSPIN, sTMP2 = 28, 29, 30, 31, 32, 33, 34, 35, 36, 37, 38, 39
sXO = 40
sXOWN = 48
sXOTH = 50
sXST = 52
sXLD = 56
sSTAMP = 60
nstamp = [0]
def pstamp():
    if P["STAMPS"] == 9: stamp()
def stamp():
    if P["STAMPS"]:
        e(f"{'s_memrealtime' if P['RT'] else 's_memtime'} s[{sSTAMP+2*nstamp[0]}:{sSTAMP+2*nstamp[0]+1}]"); nstamp[0] += 1
NM = 3 * 2048
ORDER = []
for l in range(3):
    H = P["HH"] if l > 0 else 0
    Tn = P["TT"] if l < 2 else P["TL"]
    T2 = P["TL2"] if l == 2 else 0
    ORDER += [(l, s, rp) for s in range(H) for rp in (0, 1)] + [(l, s, rp) for s in range(H) for rp in (2, 3)]
    if l == 2 and P["TX"]:
        assert H == 4 and T2 == 0
        ORDER += [(l, s, rp) for s in range(4, 16) for rp in (0, 1)]
        ORDER += [(l, s, rp) for s in list(range(8, 16)) + list(range(4, 8)) for rp in (2, 3)]
        continue
    ORDER += [(l, s, rp) for s in range(H, 16 - Tn) for rp in range(4)]
    ORDER += [(l, s, rp) for s in range(16 - Tn, 16) for rp in (0, 1)]
    ORDER += [(l, s, rp) for s in range(16 - Tn, 16 - T2) for rp in (2, 3)]
    ORDER += [(l, s, 2) for s in range(16 - T2, 16)] + [(l, s, 3) for s in range(16 - T2, 16)]
assert len(set(ORDER)) == 192
GPOS = {k: i for i, k in enumerate(ORDER)}
def LS(l, rp): return 7 if (P["TX"] and l == 2 and rp >= 2) else 15
def VS(l, s, rp): return s + 12 if (P["TX"] and l == 2 and 4 <= s < 8 and rp >= 2) else s
NPH = lambda l: 10 if (P["TX"] and l == 2) else 8
def SUBO(bt):
    if P["SNK"] == 1 or P["SNK"] >= 4: return (0, 1, 3, 2) if bt % 2 == 0 else (2, 3, 1, 0)
    if P["SNK"] == 2: return (0, 2, 3, 1) if bt % 2 == 0 else (1, 3, 2, 0)
    if P["SNK"] == 3: return (0, 1, 3, 2)
    return (0, 1, 2, 3)
def GRP(i):
    l, s, rp = ORDER[i]
    ho = P["SNK"] >= 4 and s != 0 and s != LS(l, rp) and (P["SNK"] == 6 or ORDER[i + 1][:2] == (l, s))
    if P["SNK"] == 7: ho = ho and ORDER[i - 1][:2] == (l, s)
    if P["SNK"] == 8:
        if ho and ORDER[i - 1][:2] == (l, s) and ORDER[i - 2][:2] != (l, s):
            return [(l, s, rp, 7 - k, sub) for k in range(8) for sub in SUBO(k)]
        ho = False
    if not ho: return [(l, s, rp, bt, sub) for bt in range(8) for sub in SUBO(bt)]
    o = [(l, s, rp, bt, c) for bt in range(8) for c in ((0, 1) if bt % 2 == 0 else (1, 0))]
    dn = P["SNK"] in (4, 7) or (P["SNK"] == 6 and ORDER[i + 1][:2] == (l, s))
    for k in range(8):
        bt = 7 - k if dn else k
        o += [(l, s, rp, bt, 2 + c) for c in ((0, 1) if k % 2 == 0 else (1, 0))]
    return o
SEQ = [x for i in range(192 - 2 * P["T3"]) for x in GRP(i)]
if P["T3"]:
    assert P["TL2"] == 0 and P["T3"] <= P["TL"]
    SEQ += [(2, s, rp, bt, sub) for hb in range(2) for s in range(LS(2, 3) + 1 - P["T3"], LS(2, 3) + 1) for bt in range(4 * hb, 4 * hb + 4) for rp in (2, 3) for sub in ((0, 1, 3, 2) if P["SNK"] else range(4))]
assert len(set(SEQ)) == NM
POS = {k: i for i, k in enumerate(SEQ)}
M = lambda l, s, rp=0, bt=0: min(POS[(l, s, rp, bt, q)] for q in range(4))
ML = lambda l, s, rp=0, bt=0: max(POS[(l, s, rp, bt, q)] for q in range(4))
acc_init = set(); intail = [False]
FU = {}; LU = {}
for m_, (l_, s_, rp_, bt_, sub_) in enumerate(SEQ):
    FU.setdefault(GPOS[(l_, s_, rp_)], m_); LU[GPOS[(l_, s_, rp_)] * 4 + sub_] = m_
BRD = {}; RDG = {}; _last = {}
for m_, (l_, s_, rp_, bt_, sub_) in enumerate(SEQ):
    k_ = (sub_ % 2, bt_); s_ = VS(l_, s_, rp_)
    if k_ in _last and _last[k_][1] != (l_, s_):
        BRD[_last[k_][0]] = (l_, s_)
        if _last[k_][0] // 32 not in RDG.setdefault((l_, s_), []): RDG[(l_, s_)].append(_last[k_][0] // 32)
    _last[k_] = (m_, (l_, s_))
for v_ in RDG.values(): v_.sort()
def RB(l, ph): return min(RDG[(l, 2 * ph)] + RDG[(l, 2 * ph + 1)])
def LRD(l, ph): return max(RDG.get((l, 2 * ph), [-1]) + RDG[(l, 2 * ph + 1)])
BARS = set(RB(l, ph) for l in range(3) for ph in range(NPH(l)) if (l, ph) != (0, 0))
if P["TX"]: BARS |= {LRD(2, 4) + 2, LRD(2, 5) + 2}
BARS |= set(RDG[(0, 2 * ph + 1)][0] for ph in range(P["HB"]))
BARS |= set(64 * l + P["XBA"] for l in (1, 2))
def free_at(l, ph):
    pl, pp = (l, ph - 4) if ph >= 4 else (l - 1, ph + 4)
    if pl < 0: return 0
    return 32 * min(b for b in BARS if b >= LRD(pl, pp) + 2)

CAPS = (4, 6, 12, 14) if P["XALT"] == 3 else (8, 10, 12, 14)
def own0(ph): return ph % 4 >= 2 if P["XALT"] == 3 else ph >= 4
def bop(l, s, c, bt):
    if P['DEEP'] < 2 and l == 0 and c == 0 and s in CAPS[:3]: return x0r(CAPS.index(s), bt)
    return breg(c, bt)

def main_kernel():
    e(f".globl {KN}"); e(".p2align 8"); e(f".type {KN},@function"); e(f"{KN}:")
    e("s_cmp_ge_u32 s2, 256"); e("s_cbranch_scc1 L_end")
    if P["PTOUCH"]:
        e("s_getpc_b64 s[92:93]")
        e("v_lshrrev_b32 v12, 6, v0"); e("s_lshr_b32 s94, s2, 3"); e("v_readfirstlane_b32 s95, v12")
        e("s_and_b32 s94, s94, 15"); e("s_lshl_b32 s94, s94, 2"); e("s_add_u32 s94, s94, s95"); e("s_lshl_b32 s94, s94, 7")
        e("s_add_u32 s92, s92, s94"); e("s_addc_u32 s93, s93, 0")
        e("s_load_dword s98, s[92:93], 0")
    e("s_load_dwordx4 s[4:7], s[0:1], 0")
    e("s_load_dwordx4 s[8:11], s[0:1], 16")
    e("s_load_dwordx4 s[40:43], s[0:1], 32")
    stamp()
    e("v_lshrrev_b32 v12, 6, v0")
    e("v_and_b32 v13, 63, v0")
    e(f"v_readfirstlane_b32 s{sW}, v12")
    e(f"v_lshlrev_b32 v{vL0}, 4, v13")
    for k in range(4): e(f"v_add_u32 v{vK+k}, {k*8192}, v{vL0}")
    e(f"v_lshl_add_u32 v{vW0}, v12, 13, v{vL0}")
    e(f"v_add_u32 v{vW1}, 0x10000, v{vW0}")
    e(f"v_add_u32 v{vLX}, 0x20000, v{vW0}")
    e("v_and_b32 v14, 15, v13"); e("v_lshrrev_b32 v15, 4, v13")
    e(f"v_lshlrev_b32 v{vB}, 4, v15")
    e(f"v_lshl_add_u32 v{vXR}, v14, 11, v{vB}")
    if P["XP"]:
        assert P["OT"] and P["XALT"] == 3
        e("v_mov_b32 v18, 0x78")
        e("v_lshlrev_b32 v16, 1, v15"); e("v_lshrrev_b32 v16, v16, v18"); e("v_xor_b32 v17, v16, v13"); e("v_and_b32 v17, 3, v17"); e("v_lshlrev_b32 v17, 4, v17")
        e("v_lshrrev_b32 v16, 2, v13"); e(f"v_lshl_add_u32 v{vXR}, v16, 11, v17")
        e("v_lshrrev_b32 v16, 1, v14"); e("v_and_b32 v16, 6, v16"); e("v_lshrrev_b32 v16, v16, v18"); e("v_xor_b32 v16, v16, v15"); e("v_and_b32 v16, 3, v16")
        e("v_lshlrev_b32 v16, 4, v16"); e("v_lshl_add_u32 v16, v14, 6, v16")
        for k in range(4): e(f"v_add_u32 v{vK+k}, {k*8192}, v16")
    e("s_and_b32 s3, s2, 7"); e(f"s_lshr_b32 s{sTMP}, s2, 4"); e(f"s_lshl_b32 s{sTMP}, s{sTMP}, 3"); e(f"s_or_b32 s3, s3, s{sTMP}")
    e(f"s_lshr_b32 s{sHF}, s2, 3"); e(f"s_and_b32 s{sHF}, s{sHF}, 1")
    e(f"s_lshl_b32 s{sW2048}, s{sW}, 11"); e(f"s_lshl_b32 s{sW8192}, s{sW}, 13")
    e(f"s_mov_b32 s{sMASK}, 0xffff0000")
    if P["XP"]: e(f"s_add_u32 s101, s{sW8192}, 0x10000")
    if P["XL"]: e("s_getreg_b32 s101, hwreg(HW_REG_XCC_ID, 0, 4)")
    e("s_lshl_b32 s3, s3, 18")
    e(f"s_lshl_b32 s{sTMP2}, s{sHF}, 2"); e(f"s_add_u32 s{sTMP2}, s{sTMP2}, s{sW}")
    e(f"s_lshl_b32 s{sBOFF}, s{sTMP2}, 8")
    e(f"s_lshl_b32 s{sTMP}, s{sW}, 16"); e(f"s_add_u32 s{sTMP}, s{sTMP}, s3")
    e(f"s_lshl_b32 s{sXOWN}, s{sHF}, 10"); e(f"s_xor_b32 s{sXOTH}, s{sXOWN}, 1024")
    e(f"s_add_u32 s{sXOWN}, s{sXOWN}, s{sTMP}"); e(f"s_add_u32 s{sXOTH}, s{sXOTH}, s{sTMP}")
    e(f"s_add_u32 s{sXOWN+1}, s{sXOWN}, 32768"); e(f"s_add_u32 s{sXOTH+1}, s{sXOTH}, 32768")
    e(f"s_mul_i32 s{sWOFF}, s{sTMP2}, {3*8*32768}"); e(f"s_add_u32 s{sWOFF}, s{sWOFF}, {WP_OFF + P['NSELF']*8192}")
    e("s_waitcnt lgkmcnt(0)")
    pstamp()
    for (s, ptr, n) in ((24, 8, 6144), (12, 4, 0x2000000), (20, 42, 0x10000000), (16, 10, 0x2000000), (4, 6, 0x600000)):
        e(f"s_mov_b32 s{s}, s{ptr}"); e(f"s_and_b32 s{s+1}, s{ptr+1}, 0xffff"); e(f"s_mov_b32 s{s+2}, {hex(n)}"); e(f"s_mov_b32 s{s+3}, 0x20000")

    def bias_load(l, j):
        e(f"buffer_load_dwordx4 {rng('v', T+4*j)}, v{vB}, {SBS}, s{sBOFF} offen offset:{(l*2048 + j*64) % 4096}")
        return VM.issue()
    wtag = {}; wslot = {}; wlg = {}
    wok = [0]
    wload_n = [0]
    pool = [(("a", 160 + 4 * i), NM) for i in range(16)]
    if P["DEEP"]:
        for j in ((0, 1, 2) if P["PORD"] else (2, 1, 0)):
            if P["DEEP"] >= 2 and j >= P["DEEP"] - 1: continue
            pool += [(("a", x0r(j, bt)), 32 * RDG[(0, CAPS[j])][0] if P["DEEP"] < 2 else NM) for bt in range(8)]
    def last_use(f): return LU[f]
    def wload():
        f = wload_n[0]
        if f >= wok[0]: return 0
        while pool and pool[0][1] <= last_use(f): pool.pop(0)
        if not pool: return 0
        sl = pool.pop(0)
        wslot[f] = sl
        wload_n[0] += 1
        if P['NOW'] and f >= 16:
            wtag[f] = None; return 0
        k = f % 4
        e(f"buffer_load_dwordx4 {rng(*sl[0])}, v{vL0}, {SWS}, s{sWOFF} offen offset:{k*1024}{' sc1' if P['WSC'] else ''}")
        wtag[f] = VM.issue()
        n = 1
        if k == 3 and f + 1 < 768:
            lin = lambda g: ORDER[g][0] * 64 + ORDER[g][1] * 4 + ORDER[g][2]
            e(f"s_add_u32 s{sWOFF}, s{sWOFF}, {hex(((lin(f // 4 + 1) - lin(f // 4)) * 4096) & 0xffffffff)}"); n += 1
        return n
    def x0_io(ph, ksl):
        if P["XALT"] == 3:
            if own0(ph): return ksl * 256 + ((ph // 4) * 2 + ph % 2) * 64
            return (2 * (ph % 2) + (ksl >> 1)) * 256 + (2 * (ph // 4) + (ksl & 1)) * 64
        if P["XALT"] == 1: return (ph // 2) * 256 + ksl * 64
        if P["XALT"] == 2: return ((ph // 4) * 2 + ph % 2) * 256 + ksl * 64
        return ph * 256 + ksl * 64 if ph < 4 else ksl * 256 + (ph - 4) * 64
    m0own = [None]
    def dma_x0_m0(ph, ksl, i):
        m0own[0] = ("x", ph, ksl, i)
        lo = (ph % 4)*32768 + ksl*8192 + i*1024
        e(f"s_add_u32 m0, s{sW2048}, {lo - x0_io(ph, ksl) if lo >= x0_io(ph, ksl) else lo}")
    def dma_x0_ld(ph, ksl, i):
        assert m0own[0] == ("x", ph, ksl, i)
        so = (sXOWN if own0(ph) else sXOTH) + i
        if P["XALT"] == 1: so = (sXOTH if ph % 2 == 0 else sXOWN) + i
        if P["XALT"] == 2: so = (sXOTH if ph % 4 < 2 else sXOWN) + i
        io = x0_io(ph, ksl)
        if (ph % 4)*32768 + ksl*8192 + i*1024 < io:
            e(f"s_add_u32 s{sS2}, s{so}, {io}"); so = sS2; io = 0
        e(f"buffer_load_dwordx4 v{vXR}, {SX0}, s{so} offen offset:{io} lds")
        return VM.issue()
    blk_tag = {}
    blk_lg = {}
    st_tag = {}

    UB = T + 16
    vSG, vCG, vCT, vFL, vTR, vTR4 = 12, 13, 14, 15, 16, 20
    def code_touch(q):
        if q > 11: return 0
        e(f"s_add_u32 s96, s92, L_q{q}-L_pc"); e("s_addc_u32 s97, s93, 0")
        e("s_load_dword s98, s[96:97], 0")
        return 3
    e(f"s_add_u32 s96, s42, {EPOCH_OFF}"); e("s_addc_u32 s97, s43, 0")
    e(f"s_load_dwordx2 s[{sT}:{sT+1}], s[96:97], 0")
    e("v_mov_b32 v24, v12"); e("v_mov_b32 v25, v13"); e("v_mov_b32 v26, v14"); e("v_mov_b32 v27, v15")
    e("v_lshrrev_b32 v28, 2, v25"); e("v_and_b32 v29, 3, v25")
    e(f"v_lshlrev_b32 v{vCG}, 11, v28"); e(f"v_lshl_add_u32 v{vCG}, v29, 4, v{vCG}")
    e(f"s_lshr_b32 s44, s2, 3"); e("s_and_b32 s45, s2, 7")
    e("s_lshl_b32 s46, s44, 16"); e("s_lshl_b32 s47, s45, 8"); e("s_add_u32 s46, s46, s47")
    e(f"s_lshl_b32 s47, s{sW}, 6"); e("s_add_u32 s100, s46, s47")
    coop_tag = {}
    def coop_dma(l, n):
        m0own[0] = None
        e(f"s_add_u32 m0, s{sW2048}, {(32768 if l == 0 else 131072) + l*8192 + n*1024}")
        e(f"s_add_u32 s{sS2}, s100, {l*0x200000 + n*32768}")
        e(f"buffer_load_dwordx4 v{vCG}, {SWR}, s{sS2} offen lds"); coop_tag[l] = VM.issue()
        return 3
    coop_dma(0, 0); coop_dma(0, 1)
    pstamp()
    e(f"v_lshlrev_b32 v30, 2, v27"); e("v_xor_b32 v30, v30, v26"); e("v_lshlrev_b32 v30, 4, v30")
    e(f"v_lshl_add_u32 v{vSG}, v27, 11, v30")
    e(f"s_xor_b32 s{sSELF}, s{sHF}, 1"); e(f"s_lshl_b32 s{sSELF}, s{sSELF}, 20"); e(f"s_add_u32 s{sSELF}, s{sSELF}, s{sBOFF}")
    REG = {0: 2, 1: 3, 2: 4, 3: 2, 4: 4, 5: 3}
    self_tag = {}; self_lg = {}
    def self_dma1(n, ch):
        m0own[0] = None
        e(f"s_add_u32 m0, s{sW2048}, {REG[n]*32768 + (ch>>1)*8192 + (ch&1)*1024}")
        rb = (n >> 1) * 4 + (n & 1) if P["XALT"] == 3 else n
        e(f"s_add_u32 s{sS2}, s{sSELF}, {rb*65536 + ch*8192}")
        e(f"buffer_load_dwordx4 v{vSG}, {SWR}, s{sS2} offen lds"); self_tag[n] = VM.issue()
        return 3
    def self_dma(n):
        for ch in range(8): self_dma1(n, ch)
    def self_read1(n, a, u):
        j, h = divmod(a, 2)
        f = ((n // 2) * 4 + j) * 4 + 2 * h + n % 2
        w_ = 0
        if a == 0 and u == 0: w_ = wait(vm=self_tag[n])
        if u == 0:
            while pool[0][1] <= last_use(f): pool.pop(0)
            wslot[f] = pool.pop(0)
        k, b = wslot[f][0]
        R = REG[n]
        e(f"ds_read_b64_tr_b16 {rng(k, b+2*u, 2)}, v{(vTR4 if R == 4 else vTR)+j} offset:{(R % 2)*32768 + u*1024 + 8*h}")
        self_lg[n] = wlg[f] = LG.issue(); wtag[f] = None
        return 1 + w_
    half_tag = {}
    def blk_dma(ph, hv):
        for ksl in (2 * hv, 2 * hv + 1):
            for i in range(2):
                dma_x0_m0(ph, ksl, i); e("s_nop 0")
                blk_tag[(0, ph)] = dma_x0_ld(ph, ksl, i)
        if hv == 0: half_tag[ph] = blk_tag[(0, ph)]
    self_dma(0); self_dma(1); blk_dma(0, 0)
    pstamp()
    e("v_bfe_u32 v28, v25, 2, 2")
    e(f"v_lshlrev_b32 v30, 11, v24"); e("v_lshl_add_u32 v30, v29, 4, v30")
    e("v_lshrrev_b32 v31, 1, v27"); e(f"v_lshl_add_u32 v{vCT}, v31, 10, v30")
    e("v_and_b32 v31, 1, v27"); e("v_lshl_add_u32 v31, v31, 3, v28"); e(f"v_lshl_add_u32 v{vCT}, v31, 6, v{vCT}")
    e(f"v_add_u32 v{vCT}, 0x8000, v{vCT}")
    e("v_lshl_add_u32 v30, v27, 13, v30"); e("v_lshl_add_u32 v30, v28, 8, v30"); e("v_add_u32 v30, 0x10000, v30")
    for j in range(4):
        e(f"v_xor_b32 v31, {j}, v28"); e(f"v_lshl_add_u32 v{vTR+j}, v31, 6, v30"); e(f"v_add_u32 v{vTR4+j}, 0x10000, v{vTR+j}")
    e("s_lshr_b32 s40, s44, 2"); e("s_and_b32 s41, s44, 3"); e("s_and_b32 s42, s45, 4")
    e("s_xor_b32 s42, s40, s42")
    e("s_and_b32 s43, s42, 3")
    e("s_and_b32 s46, s45, 3"); e("s_xor_b32 s46, s43, s46")
    e("s_and_b32 s47, s42, 4"); e("s_or_b32 s47, s47, s41")
    def dcalc(d, ph, ka):
        e(f"s_lshl_b32 s{d}, s{ph}, 15")
        e(f"s_lshr_b32 s{sTMP}, s{ka}, 1"); e(f"s_lshl_b32 s{sTMP}, s{sTMP}, 14"); e(f"s_add_u32 s{d}, s{d}, s{sTMP}")
        e(f"s_and_b32 s{sTMP}, s{ka}, 1"); e(f"s_lshl_b32 s{sTMP}, s{sTMP}, 10"); e(f"s_add_u32 s{d}, s{d}, s{sTMP}")
    dcalc(57, 47, 46)
    if P["XALT"] == 3:
        e("s_and_b32 s47, s41, 1"); e("s_and_b32 s40, s43, 1"); e("s_lshl_b32 s40, s40, 1"); e("s_or_b32 s40, s40, s47")
        e("s_or_b32 s47, s47, 2"); e("s_lshr_b32 s43, s43, 1")
        e("s_cmp_lt_u32 s42, 4")
        e("s_cselect_b32 s47, s47, s43"); e("s_cselect_b32 s46, s46, s40")
        e("s_lshr_b32 s40, s41, 1"); e("s_lshl_b32 s40, s40, 2"); e("s_or_b32 s47, s47, s40")
    else:
        e("s_xor_b32 s47, s47, 4")
        e("s_cmp_lt_u32 s42, 4")
        e("s_cselect_b32 s47, s47, s43"); e("s_cselect_b32 s46, s46, s41")
    dcalc(58, 47, 46)
    e(f"s_mul_i32 s40, s45, {3*262144}"); e(f"s_lshl_b32 s41, s{sW}, 12"); e("s_add_u32 s40, s40, s41"); e(f"s_add_u32 s40, s40, {WP_OFF}")
    e("s_add_u32 s57, s40, s57"); e("s_add_u32 s58, s40, s58")
    e("s_add_u32 s57, s57, 262144"); e("s_add_u32 s99, s57, 262144")
    CD = {0: 58, 1: 57, 2: 99}
    e("s_getpc_b64 s[92:93]")
    e("L_pc:")
    e(f"s_lshr_b32 s94, s2, 3"); e(f"s_lshl_b32 s94, s94, 2"); e(f"s_add_u32 s94, s94, s{sW}")
    e(f"s_lshl_b32 s94, s94, 7")
    e("s_add_u32 s92, s92, s94"); e("s_addc_u32 s93, s93, 0")
    for q in range(P["CPF"]): code_touch(q)
    e(f"s_xor_b32 s{sPFLAG}, s2, 8")
    e(f"s_mul_i32 s{sXST}, s2, {P['XSTR']}"); e(f"s_add_u32 s{sXST}, s{sXST}, {X_OFF}")
    e(f"s_mul_i32 s{sXLD}, s{sPFLAG}, {P['XSTR']}"); e(f"s_add_u32 s{sXLD}, s{sXLD}, {X_OFF}")
    e(f"s_add_u32 s{sXLD}, s{sXLD}, s{sW8192}")
    for k in range(1, 4): e(f"s_add_u32 s{sXST+k}, s{sXST}, {(k//2)*32768 + (k%2)*4096}")
    if P["XOUT"]:
        e(f"s_lshr_b32 s{sXST}, s3, 7"); e(f"s_and_b32 s{sXST}, s{sXST}, {P['XMASK'] << 11}")
        e(f"s_lshl_b32 s{sXLD}, s{sW}, 14"); e(f"s_xor_b32 s{sXST}, s{sXST}, s{sXLD}")
        e(f"s_lshl_b32 s{sXLD}, s{sHF}, 10"); e(f"s_or_b32 s{sXST}, s{sXST}, s{sXLD}"); e(f"s_or_b32 s{sXST}, s{sXST}, s3")
        e(f"s_xor_b32 s{sXLD}, s{sXST}, 1024")
    e(f"s_lshl_b32 s{sFLAG}, s2, 7"); e(f"s_add_u32 s{sFLAG}, s{sFLAG}, {FLAG_OFF}")
    e(f"s_xor_b32 s{sPFLAG}, s{sFLAG}, {8*128}")
    e(f"s_lshr_b32 s59, s{sBOFF}, 1"); e(f"s_add_u32 s59, s59, {FLAG_OFF}")
    stamp()
    ct = {}; pack_tag = {}
    def creg(l, h): return ('a', 96 + h * 4) if l == 0 else ('v', 16 + ((l - 1) * 2 + h) * 4)
    def coop_read(l, h, u):
        w_ = wait(vm=coop_tag[l])
        k, b = creg(l, h)
        e(f"ds_read_b64_tr_b16 {rng(k, b + 2*u, 2)}, v{vCT} offset:{l*8192 + u*256 + h*8}")
        ct[(l, h)] = LG.issue(); return 1 + w_
    def coop_store(l, h):
        w_ = wait(lg=ct[(l, h)])
        e(f"buffer_store_dwordx4 {rng(*creg(l, h))}, v{vL0}, {SWS}, s{CD[l]} offen offset:{h*2048} sc1")
        pack_tag[l] = VM.issue(); return 1 + w_
    wait(vm=coop_tag[0])
    pstamp()
    for h in range(2):
        for u in range(2): coop_read(0, h, u)
    for h in range(2): coop_store(0, h)
    e(f"v_add_u32 v{vCT}, 0x18000, v{vCT}")
    blk_dma(0, 1); self_dma(2)
    pstamp()
    wait_lg_all()
    e(f"s_add_u32 s{sT}, s{sT}, 16"); e(f"s_addc_u32 s{sT+1}, s{sT+1}, 0")
    e(f"s_and_b32 s{sT}, s{sT}, -16"); e(f"s_and_b32 s{sT+1}, s{sT+1}, 0x7fffffff")
    e(f"s_add_u32 s{sXO}, s3, s{sBOFF}")
    for bt in range(1, 8): e(f"s_add_u32 s{sXO+bt}, s{sXO}, {bt*32768}")
    pstamp()
    for n in (0, 1):
        for a in range(8):
            for u in range(2): self_read1(n, a, u)
    pstamp()
    wait(vm=half_tag[0] if P["HB"] else blk_tag[(0, 0)])
    if P["FB"] == 0: wait(vm=pack_tag[0])
    e("s_barrier")
    stamp()
    def setflag(val):
        e(f"s_cmp_lg_u32 s{sW}, 0"); e(f"s_cbranch_scc1 L_nf{val}")
        if P["XL"] and val >= 2:
            e("s_cmp_lg_u32 s101, 0"); e(f"s_cbranch_scc1 L_nw{val}")
            e("buffer_wbl2 sc1"); e("s_waitcnt vmcnt(0)")
            e(f"L_nw{val}:")
        e(f"s_add_u32 s{sTMP}, s{sT}, {val}")
        e(f"v_mov_b32 v{vP}, s{sTMP}"); e(f"v_mov_b32 v{vP+1}, s{sT+1}"); e("s_mov_b64 exec, 1")
        e(f"buffer_store_dwordx2 {rng('v', vP, 2)}, off, {SWS}, s{sFLAG} sc1")
        if P["XL"] and val == 0:
            e("s_nop 3")
            e(f"v_add_u32 v{vP}, s101, v{vP}")
            e(f"buffer_store_dwordx2 {rng('v', vP, 2)}, off, {SWS}, s{sFLAG} offset:64 sc1")
        e("s_mov_b64 exec, -1")
        e(f"L_nf{val}:")
        return 2
    if P["FB"] == 0: setflag(0)
    wload_n[0] = 8 * P["NSELF"]
    btag = {}
    kst = {k: (0, 0) for k in range(4)}
    capt = set()
    def bread(l, s, c, bt):
        kap = (s % 2) * 2 + c
        if bop(l, s, c, bt) < 96:
            if (s, bt) in capt: return 0
            capt.add((s, bt))
        n = 1
        want = (0 if (l == 0 and not own0(s // 2)) else 1, (s // 4) % 2)
        if kst[kap] != want and P["XP"] and l == 0:
            assert kst[kap] == (1 - want[0], 1 - want[1])
            e(f"v_xor_b32 v{vK+kap}, s101, v{vK+kap}"); kst[kap] = want; n += 1
        elif kst[kap] != want:
            e(f"v_xor_b32 v{vK+kap}, {hex(kap*8192 + want[1]*65536)}, v{vW0 if want[0] else vL0}"); kst[kap] = want; n += 1
        off = ((s // 2) % 2) * 32768 + bt * 1024
        e(f"ds_read_b128 {rng('a', bop(l, s, c, bt))}, v{vK+kap} offset:{off}")
        btag[(c, bt)] = LG.issue()
        return n
    for bt in range(8):
        for c in range(2): bread(0, 0, c, bt)

    tasks = []
    def add_task(ready, deadline, items): tasks.append([ready, deadline, list(items)])
    pre_ev = {}; post_ev = {}
    def at_pre(m, f): pre_ev.setdefault(m, []).append(f)
    def at_post(m, f): post_ev.setdefault(m, []).append(f)

    def sched_dma(l, ph, m0, spread):
        if P['NODMA']: return
        assert m0 >= free_at(l, ph), (l, ph, m0, free_at(l, ph))
        assert m0 + 7 * spread < 32 * RB(l, ph), (l, ph)
        sys.stderr.write(f"dma ({l},{ph}) {m0 % 2048}..{(m0 + 7 * spread) % 2048} free {free_at(l, ph) % 2048} need {32 * RB(l, ph) % 2048}\n")
        if l == 0:
            seq = [(j, i) for j in range(4) for i in range(2)]
            for n, (j, i) in enumerate(seq):
                m = m0 + n * spread
                at_pre(m, lambda j=j, i=i: (dma_x0_m0(ph, j, i), 1)[1])
                def ld(j=j, i=i):
                    blk_tag[(l, ph)] = dma_x0_ld(ph, j, i)
                    if (j, i) == (1, 1): half_tag[ph] = blk_tag[(l, ph)]
                    return 1
                at_post(m, ld)
        else:
            j = ph % 4
            for n in range(8):
                m = m0 + n * spread
                if P["XOUT"]:
                    def setm1(n=n):
                        m0own[0] = ("e", l, ph, n)
                        e(f"s_add_u32 m0, s{sW8192}, {j*32768 + n*1024}")
                        e(f"s_xor_b32 s{sTMP2}, s{sXLD}, {(j*32 + n)*2048}")
                        return 2
                    at_pre(m, setm1)
                    def ld1(n=n):
                        assert m0own[0] == ("e", l, ph, n)
                        e(f"buffer_load_dwordx4 v{vL0}, {SOUT}, s{sTMP2} offen {P['XSC']} lds")
                        blk_tag[(l, ph)] = VM.issue(); return 1
                    at_post(m, ld1)
                    continue
                if n % 4 == 0:
                    def setm(n=n):
                        m0own[0] = ("e", l, ph, n // 4)
                        e(f"s_add_u32 m0, s{sW8192}, {j*32768 + (n//4)*4096}")
                        if ph >= 8:
                            e(f"s_add_u32 s{sTMP2}, s{sXST}, {(j + 2)*32768 + (n//4)*4096}"); e(f"s_add_u32 s{sTMP2}, s{sTMP2}, s{sW8192}")
                        elif P['XSMALL'] == 2: e(f"s_add_u32 s{sTMP2}, s{sXLD}, {(j%2)*32768 + (n//4)*4096}")
                        else: e(f"s_add_u32 s{sTMP2}, s{sXLD}, {(0 if P['SAMEX'] else (l-1)*256*P['XSTR']) + j*32768 + (n//4)*4096}")
                        return 2
                    at_pre(m, setm)
                def ld(n=n):
                    assert m0own[0] == ("e", l, ph, n // 4)
                    e(f"buffer_load_dwordx4 v{vL0}, {SWS}, s{sTMP2} offen offset:{(n%4)*1024} {P['XSC']} lds")
                    blk_tag[(l, ph)] = VM.issue(); return 1
                at_post(m, ld)
    sched_dma(0, 1, P["B1M"], P["B1S"])
    def sched_sdma(n, prev, m0):
        at_post(m0, lambda: wait(lg=self_lg[prev]))
        for ch in range(8): at_post(m0 + P["UDS"] * ch, lambda ch=ch: self_dma1(n, ch))
    sched_sdma(3, 0, P["U3D"])
    if P["NSELF"] > 4:
        sched_sdma(5, 1, P["U5D"]); sched_sdma(4, 2, P["U4D"])
        assert P["U2M"] + 16 < P["U4D"]
    mc = M(0, P["C12"]) + 10
    at_post(mc, lambda: wait(lg=self_lg[4 if P["NSELF"] > 4 else 2]))
    for i, (l, n) in enumerate([(1, 0), (1, 1), (2, 0), (2, 1)]): at_post(mc + 16 * i, lambda l=l, n=n: coop_dma(l, n))
    for i, (l, h, u) in enumerate([(l, h, u) for l in (1, 2) for h in range(2) for u in range(2)]):
        at_post(mc + 224 + 2 * i, lambda l=l, h=h, u=u: coop_read(l, h, u))
    for i, (l, h) in enumerate([(l, h) for l in (1, 2) for h in range(2)]): at_post(mc + 250 + 16 * i, lambda l=l, h=h: coop_store(l, h))
    PH12 = P["C12"] // 2 + 2
    G12 = RB(0, PH12 + 1)
    assert mc + 250 + 48 + 100 < 32 * G12
    at_post(32 * G12, lambda: setflag(1))
    for ph in range(P["DLEAD"], 8):
        if ph == 2:
            at_pre(P["B2"], lambda: wait(lg=self_lg[3]))
            sched_dma(0, ph, P["B2"], P["B2S"])
        elif ph == 3 and P["NSELF"] > 4:
            at_pre(P["B3"], lambda: wait(lg=self_lg[5]))
            sched_dma(0, ph, P["B3"], P["B3S"])
        elif ph == 4 and P["D4"]: sched_dma(0, ph, P["D4"], (P["D5"] - P["D4"]) // 8)
        elif ph == 5 and P["D5"]: sched_dma(0, ph, P["D5"], P["DSPREAD"])
        else: sched_dma(0, ph, M(0, 2 * (ph - P["DLEAD"])) + P["DOFF"], P["DSPREAD"])
    def sched_self(n, m0):
        for a in range(8):
            for u in range(2): at_post(m0 + 2 * a + u, lambda a=a, u=u: self_read1(n, a, u))
    sched_self(2, P["U2M"]); sched_self(3, P["U3M"])
    if P["NSELF"] > 4:
        sched_self(5, P["U5M"]); sched_self(4, P["U4M"])
        assert P["U5M"] + 16 < P["B3"]
    assert P["U3M"] + 16 < P["B2"]
    if P["FB"]:
        def fbar():
            wait(vm=pack_tag[0]); e("s_barrier"); return 2 + setflag(0)
        at_pre(P["FB"], fbar)
    wp = [None]
    def wpoll0():
        e(f"v_and_b32 v{vP}, 0x1f0, v{vL0}"); e(f"v_lshlrev_b32 v{vP}, 6, v{vP}")
        e(f"buffer_load_dwordx2 {rng('v', vP, 2)}, v{vP}, {SWS}, s59 offen sc1")
    def wpoll():
        wpoll0(); wp[0] = VM.issue(); return 3
    def wflagchk(val, lab):
        e(f"s_add_u32 s{sTMP}, s{sT}, {val}")
        e(f"v_subrev_u32 v{vP}, s{sTMP}, v{vP}"); e(f"v_xor_b32 v{vP+1}, s{sT+1}, v{vP+1}"); e("s_nop 0")
        e(f"v_cmp_gt_u64 vcc, {16-val}, {rng('v', vP, 2)}"); e("s_nop 3")
        e("s_cmp_lg_u64 vcc, -1"); e(f"s_cbranch_scc1 {lab}")
    def wchk(val):
        wait(vm=wp[0])
        wflagchk(val, f"L_wspin{val}")
        e(f"L_wback{val}:")
        wok[0] = 256 if val == 0 else 768
        return 8
    m12 = P["M12"] * 128 + 48
    for val, mm in ((0, P["WCHK"]), (1, m12)):
        at_post(mm - P["WPOLL"], wpoll)
        at_post(mm, lambda val=val: wchk(val))
    x0l_lg = [None]
    for bt in range(8):
        def wr(bt=bt):
            e(f"ds_write_b128 v{vLX}, {rng('a', breg(0, bt))} offset:{bt*1024}")
            x0l_lg[0] = LG.issue(); return 1
        at_post(M(0, 14, 0, bt) + 5, wr)
    ptag = {}
    def flagchk(val, lab):
        e(f"v_readfirstlane_b32 s{sTMP}, v{vP}"); e(f"v_readfirstlane_b32 s{sS2}, v{vP+1}")
        e(f"s_xor_b32 s{sTMP}, s{sTMP}, s{sT}"); e(f"s_sub_u32 s{sTMP}, s{sTMP}, {val}")
        e(f"s_cmp_lg_u32 s{sS2}, s{sT+1}"); e(f"s_cbranch_scc1 {lab}")
        e(f"s_cmp_gt_u32 s{sTMP}, {15-val}"); e(f"s_cbranch_scc1 {lab}")
    spins = []
    FLAGBAR = {}
    busy = []
    def add_poll(val, mchk):
        def poll():
            e(f"buffer_load_dwordx2 {rng('v', vP, 2)}, off, {SWS}, s{sPFLAG} {'offset:64 ' if val == 0 else ''}sc1")
            ptag[val] = VM.issue(); return 1
        busy.append((mchk - P["POLL_M"], mchk))
        at_post(mchk - P["POLL_M"], poll)
        def chk():
            wait(vm=ptag[val])
            flagchk(val, f"L_spin{val}")
            e(f"L_back{val}:")
            if val == 0: e(f"s_cmp_eq_u32 s{sTMP}, s101"); e("s_cselect_b32 s101, 1, 0")
            return 8
        at_post(mchk, chk)
        spins.append(val)
    if P["XL"]:
        assert not P["XP"] and not P["XOUT"] and not P["SAMEX"] and not P["TX"]
        add_poll(0, P["XLM"]); busy.append((32 * G12, 32 * G12)); busy.append((m12 - P["WPOLL"], m12))
    FV = 4 if (P["XOUT"] or P["SAMEX"]) else 2
    gate = {}
    if P["XOUT"] or P["SAMEX"]:
        for l in ((1, 2) if P["XOUT"] else (1,)):
            for hb in range(2):
                val = 4 * l + hb
                gb = RB(l, 5 + 2 * hb)
                at_post(32 * gb, lambda val=val: setflag(val)); busy.append((32 * gb, 32 * gb))
                gate[(l, hb)] = 2048 * l + P[("CA", "CB")[hb] + str(l)]
                add_poll(val, gate[(l, hb)])
    for l in (1, 2):
        sp = P["XDS"] if l == 1 else P["XDL"]
        mm = 2048 * l + P["XD0" if l == 1 else "XD2"]
        for hb in range(2):
            val = FV * (l - 1) + hb + 2
            gb = 64 * l + P["XBA"] if hb == 0 else RB(l, 2)
            FLAGBAR[gb] = (l, 2 * hb + 1)
            mchk = max(mm, free_at(l, 4 + 2 * hb), 4096 + P["XC2"] if (l == 2 and hb == 1) else 0) + 2
            if l == 2 and hb == 0 and P["TX"]: mchk = mm
            if not P["NOSYNC"]:
                at_post(32 * gb, lambda val=val: setflag(val)); busy.append((32 * gb, 32 * gb))
                add_poll(val, mchk)
            mm = mchk + 1
            for jj in (2 * hb, 2 * hb + 1):
                mm = max(mm, free_at(l, 4 + jj) + 1)
                sched_dma(l, 4 + jj, mm, sp)
                mm += 8 * sp
        if l == 2 and P["TX"]:
            assert not P["XOUT"]
            for ph in (8, 9): sched_dma(2, ph, free_at(2, ph) + 3, P["RFS"])
        busy.sort()
        for x, y in zip(busy, busy[1:]): assert x[1] < y[0], (x, y)
        if l == 1 and not P['SAMEX'] and not P['XOUT']:
            def bump():
                for k in range(4): e(f"s_add_u32 s{sXST+k}, s{sXST+k}, {256*P['XSTR']}")
                return 4
            at_post(M(1, 9, 1), bump)
    for l in (0, 1, 2):
        bt_tags = {}
        Tn = P["TT"] if l < 2 else P["TL"]
        for j in range(4):
            sb = (P["BS0"] if l == 0 else P["HH"] - 1) if j < 2 else 15 - Tn
            sn = sb + 1
            if l == 2 and j >= 2 and P["TX"]: sb, sn = 3, 8
            rdy = M(l, sb, j) + 36
            if l > 0 and j < 2: rdy = max(rdy, M(l, 0, 3) + 32 + 100)
            def ld(j=j, l=l):
                if l == 2 and j == 0: e(f"s_add_u32 s{sBOFF}, s{sBOFF}, 4096")
                bt_tags[j] = bias_load(l, j); return 1
            at_post((rdy - 96 if j % 2 == 0 else prev_ld + 4), ld)
            prev_ld = rdy - 96
            items = []
            for h in range(2):
                def first(j=j, h=h): wait(vm=bt_tags[j]); e(f"v_lshlrev_b32 v{UB}, 16, v{T+4*j+2*h}")
                items.append(first)
                items.append(lambda j=j, h=h: e(f"v_and_b32 v{UB+1}, s{sMASK}, v{T+4*j+2*h}"))
                items.append(lambda j=j, h=h: e(f"v_lshlrev_b32 v{UB+2}, 16, v{T+4*j+2*h+1}"))
                items.append(lambda j=j, h=h: e(f"v_and_b32 v{UB+3}, s{sMASK}, v{T+4*j+2*h+1}"))
                for bt in range(8):
                    k, b = acc(2 * j + h, bt)
                    if k == "v" and P["PKA"]:
                        for r in (0, 2):
                            items.append(lambda b=b, r=r: e(f"v_pk_add_f32 v[{b+r}:{b+r+1}], v[{b+r}:{b+r+1}], v[{UB+r}:{UB+r+1}]"))
                    elif k == "v":
                        for r in range(4):
                            items.append(lambda b=b, r=r: e(f"v_add_f32 v{b+r}, v{b+r}, v{UB+r}"))
                    else:
                        for r in range(4): items.append(lambda b=b, r=r: e(f"v_accvgpr_read_b32 v{T+r}, a{b+r}"))
                        if P["PKA"]:
                            for r in (0, 2): items.append(lambda r=r: e(f"v_pk_add_f32 v[{T+r}:{T+r+1}], v[{T+r}:{T+r+1}], v[{UB+r}:{UB+r+1}]"))
                        else:
                            for r in range(4): items.append(lambda r=r: e(f"v_add_f32 v{T+r}, v{T+r}, v{UB+r}"))
                        for r in range(4): items.append(lambda b=b, r=r: e(f"v_accvgpr_write_b32 a{b+r}, v{T+r}"))
            dlb = M(l, sn, j) - 1
            if j >= 2: dlb = min(dlb, M(l, 15, 0) + 7)
            add_task(rdy, dlb, items)
    xl_tag = {}; pend_st = []; next_st = [0]
    U = T + 12; A = T + 16
    for l in range(3):
        last = l == 2
        seq = [divmod(u, 8) for u in range(32)]
        if last and P["OI"] >= 1: seq[:16] = [(u % 2, u // 2) for u in range(16)]
        if last and P["OI"] >= 2: seq[16:] = [(2 + u % 2, u // 2) for u in range(16)]
        prev_ready = 0
        for u in range(32):
            j, bt = seq[u]
            ot = last and P["OT"]
            ts = T + 4 * (u % (2 if ot else 3))
            items = []
            vWA, vRA, vGA = T + 8, T + 10, T + 11
            if ot:
                assert P["OI"] == 2
                if u == 0:
                    for ins in (f"v_lshrrev_b32 v{U}, 7, v{vL0}", f"v_lshlrev_b32 v{U+1}, 4, v{U}", f"v_xor_b32 v{vRA}, v{U+1}, v{vLX}",
                                f"v_and_b32 v{U+1}, 0x70, v{vL0}", f"v_lshl_add_u32 v{vGA}, v{U}, 11, v{U+1}",
                                f"v_lshrrev_b32 v{U}, 4, v{vL0}", f"v_and_b32 v{U}, 0x30, v{U}", f"v_xor_b32 v{U}, v{U}, v{U+1}",
                                f"v_and_b32 v{U+1}, 0xf0, v{vL0}", f"v_lshl_add_u32 v{U}, v{U+1}, 3, v{U}",
                                f"v_sub_u32 v{U+1}, v{vLX}, v{vL0}", f"v_add_u32 v{vWA}, v{U}, v{U+1}", f"v_xor_b32 v{vWA+1}, 64, v{vWA}"):
                        items.append(lambda ins=ins: e(ins))
                    if P["OX"]:
                        for ins in (f"v_bfe_u32 v{U}, v{vW0}, 13, 1", f"v_lshl_add_u32 v{vGA}, v{U}, 7, v{vGA}", f"v_xor_b32 v{vXR}, 0x80, v{vGA}"):
                            items.append(lambda ins=ins: e(ins))
            xsrc = acc(bt % 4, bt // 4)[1] if (ot and j == 3) else ts
            def xl_prefetch(uu, seq=seq):
                def f():
                    wait(lg=x0l_lg[0])
                    e(f"ds_read_b128 {rng('v', T + 4*(uu % 3))}, v{vLX} offset:{seq[uu][1]*1024}")
                    xl_tag[uu] = LG.issue()
                return f
            if j < 3:
                for d in range(4): items.append(lambda d=d, j=j, bt=bt, ts=ts: e(f"v_accvgpr_read_b32 v{ts+d}, a{x0r(j, bt)+d}"))
            for h in range(2):
                k, b = acc(2 * j + h, bt)
                def first(h=h, ts=xsrc, u=u, j=j, ot=ot, bt=bt):
                    if j == 3: wait(lg=xl_tag[("m", bt) if ot else u])
                    e(f"v_lshlrev_b32 v{U}, 16, v{ts+2*h}")
                items.append(first)
                items.append(lambda h=h, ts=xsrc: e(f"v_and_b32 v{U+1}, s{sMASK}, v{ts+2*h}"))
                items.append(lambda h=h, ts=xsrc: e(f"v_lshlrev_b32 v{U+2}, 16, v{ts+2*h+1}"))
                items.append(lambda h=h, ts=xsrc: e(f"v_and_b32 v{U+3}, s{sMASK}, v{ts+2*h+1}"))
                if h == 0 and u + 2 < 32 and seq[u + 2][0] == 3 and not ot: items.append(xl_prefetch(u + 2))
                mk = {}
                def mul2(sr, r, mk=mk):
                    if r % 2 == 0 and intail[0]: mk[r] = 1
                    elif r % 2 == 1 and mk.get(r - 1): e(f"v_pk_mul_f32 v[{U+r-1}:{U+r}], v[{U+r-1}:{U+r}], v[{sr+r-1}:{sr+r}]")
                    else: e(f"v_mul_f32 v{U+r}, v{U+r}, v{sr+r}")
                for r in ((0, 2) if P["PKM"] == 1 else range(4)):
                    if P["PKM"] == 2:
                        if k != "v": items.append(lambda b=b, r=r: e(f"v_accvgpr_read_b32 v{A+r}, a{b+r}"))
                        items.append(lambda sr=(b if k == "v" else A), r=r, f=mul2: f(sr, r))
                    elif P["PKM"]:
                        sr = b
                        if k != "v":
                            sr = A
                            for q in (r, r + 1): items.append(lambda b=b, q=q: e(f"v_accvgpr_read_b32 v{A+q}, a{b+q}"))
                        items.append(lambda sr=sr, r=r: e(f"v_pk_mul_f32 v[{U+r}:{U+r+1}], v[{U+r}:{U+r+1}], v[{sr+r}:{sr+r+1}]"))
                    elif k == "v":
                        items.append(lambda b=b, r=r: e(f"v_mul_f32 v{U+r}, v{U+r}, v{b+r}"))
                    else:
                        items.append(lambda b=b, r=r: e(f"v_accvgpr_read_b32 v{A+r}, a{b+r}"))
                        items.append(lambda r=r: e(f"v_mul_f32 v{U+r}, v{U+r}, v{A+r}"))
                items.append(lambda h=h, ts=ts: e(f"v_cvt_pk_bf16_f32 v{ts+2*h}, v{U}, v{U+1}"))
                items.append(lambda h=h, ts=ts: e(f"v_cvt_pk_bf16_f32 v{ts+2*h+1}, v{U+2}, v{U+3}"))
            if ot:
                def rbreg(j, bt, k): return ("a", x0r(k, bt)) if j < 2 else acc(4 + k, bt)
                def ost(j, bt, k):
                    def f():
                        wait(lg=xl_tag[("r", j // 2, bt, k)])
                        so = sXO + bt
                        if k: e(f"s_add_u32 s{sXST+2}, s{so}, 16384"); so = sXST + 2
                        e(f"buffer_store_dwordx4 {rng(*rbreg(j, bt, k))}, v{(vXR if j >= 2 else vGA) if P['OX'] else vGA}, {SOUT}, s{so} offen offset:{0 if P['OX'] else (j//2)*128} {P['OSC'] if (j < 2 or not P['OSC2']) else ''}")
                        VM.issue()
                        if P["DEEPT"] and j < 2: pool.append((rbreg(j, bt, k), NM))
                    return f
                if u < 4:
                    for k in range(2):
                        def mv(b2=2 * u + k):
                            e(f"ds_read_b128 {rng(*acc(b2 % 4, b2 // 4))}, v{vLX} offset:{b2*1024}")
                            xl_tag[("m", b2)] = LG.issue()
                        items.append(mv)
                def dwo(j=j, bt=bt, ts=ts):
                    e(f"ds_write_b128 v{vWA + j % 2}, {rng('v', ts)} offset:{(bt % 4)*2048}"); LG.issue()
                    if P["DEEPT"] and j < 2 and bt >= 2: pool.extend([(acc(2 * j, bt), NM), (acc(2 * j + 1, bt), NM)])
                items.append(dwo)
                if j % 2 == 1:
                    for k in range(2):
                        def rb(j=j, bt=bt, k=k):
                            e(f"ds_read_b128 {rng(*rbreg(j, bt, k))}, v{vRA} offset:{(bt % 4)*2048 + k*1024}")
                            xl_tag[("r", j // 2, bt, k)] = LG.issue()
                            if P["SPACE"] and j < 2: pend_st.append((cur_m[0] + 8, ost(j, bt, k)))
                        items.append(rb)
                    if P["SPACE"] and j < 2: pass
                    elif u in (15, 31): items += [lambda: e("s_nop 0")] * (0 if u == 31 else 6) + [ost(j, bt, 0), ost(j, bt, 1)]
                elif u not in (0, 16) and not (P["SPACE"] and j < 2): items += [ost(*seq[u - 1], 0), ost(*seq[u - 1], 1)]
            elif last:
                def st(j=j, bt=bt, ts=ts):
                    if P['NOOUT'] == 1 and not (j == 3 and bt == 7): return
                    if P['NOOUT'] == 2:
                        e(f"buffer_store_dwordx4 {rng('v', ts)}, v{vW0 if j < 2 else vW1}, {SWS}, s{sXST + (j%2)*2 + bt//4} offen offset:{(bt%4)*1024}")
                    else: e(f"buffer_store_dwordx4 {rng('v', ts)}, v{vXR}, {SOUT}, s{sXO+bt} offen offset:{j*64} {P['OSC']}")
                    VM.issue()
                    if P["DEEPT"] and j < 2:
                        pool.extend([(acc(2 * j, bt), NM), (acc(2 * j + 1, bt), NM), (("a", x0r(j, bt)), NM)])
                items.append(st)
            else:
                def dw(j=j, bt=bt, ts=ts, l=l):
                    off = j * 32768 + bt * 1024
                    e(f"ds_write_b128 v{vW0 if off < 65536 else vW1}, {rng('v', ts)} offset:{off % 65536}")
                    blk_lg[(l + 1, j)] = LG.issue()
                items.append(dw)
                def xs(j=j, bt=bt, ts=ts, l=l):
                    if P['NOST']: return
                    if P['XOUT']:
                        e(f"s_xor_b32 s{sXST+1}, s{sXST}, {(j*32 + bt)*2048}")
                        e(f"buffer_store_dwordx4 {rng('v', ts)}, v{vL0}, {SOUT}, s{sXST+1} offen {P['SSC']}")
                        st_tag[(l + 1, j)] = VM.issue()
                        return
                    e(f"buffer_store_dwordx4 {rng('v', ts)}, v{vW0 if j < 2 else vW1}, {SWS}, s{sXST + (j%2)*2 + bt//4} offen offset:{(bt%4)*1024} {P['SSC']}")
                    st_tag[(l + 1, j)] = VM.issue()
                items.append(xs)
            ready = max(ML(l, LS(l, j), j, bt) + 5, prev_ready + (P["OPACE"] if (last and j < 2 and u > 0) else 0))
            if (P["XOUT"] and l >= 1) or (P["SAMEX"] and l == 1): ready = max(ready, gate[(l, (bt // 4) if last else (j // 2))] + 1)
            if last: prev_ready = ready
            dl = min(M(l + 1, 0, j, bt), 32 * RB(l + 1, j)) if not last else NM + 1
            if not last: ready = max(ready, free_at(l + 1, j))
            add_task(ready, dl, items)
    tasks.sort(key=lambda t: (t[0], t[1]))

    def run_items(m, n):
        k = 0
        while k < n and tasks and tasks[0][0] <= m:
            t = tasks[0]
            t[2].pop(0)(); k += 1
            if not t[2]: tasks.pop(0)
        return k
    def flush_deadlines(m):
        lastidx = -1
        for i, t in enumerate(tasks):
            if t[1] <= m: lastidx = i
            if t[0] > m: break
        n = 0
        for _ in range(lastidx + 1):
            t = tasks.pop(0)
            assert t[0] <= m, (t[0], m)
            for f in t[2]: f(); n += 1
        return n

    stall = 0
    CT = {1: {417: 2, 801: 3, 1057: 4, 1441: 5, 2593: 6, 2721: 7, 3105: 8, 3489: 9, 4641: 10, 4769: 11},
          2: {417: 2, 801: 3, 1057: 4, 1313: 5, 1441: 6, 2593: 7, 2977: 8, 3233: 9, 3489: 10, 4641: 11}}.get(P["CTM"])
    for m in range(NM):
        g, r = divmod(m, 32); l, s, rp, bt, sub = SEQ[m]; h, c = divmod(sub, 2); wg = GPOS[(l, s, rp)]
        ph = s // 2
        npre = 0
        stall += flush_deadlines(m)
        if m % 512 == 0: e(f"L_q{m//512}:")
        cur_m[0] = m
        if P["CTM"] == 0:
            if P["CPF"] and m % 512 == 33: npre += code_touch(m // 512 + P["CPF"]); touch_m.append(m)
        elif m in CT: npre += code_touch(CT[m]); touch_m.append(m)
        if P["STAMPS"] == 1 and m % 512 == 0: stamp()
        if 2 <= P["STAMPS"] < 9 and m % 128 == 0 and P["SG0"] <= m // 128 < P["SG0"] + 12: stamp()
        if P["STAMPS"] == 10 and r == 0 and P["SG0"] <= m // 32 < P["SG0"] + 12: stamp()
        if P["STAMPS"] == 9 and r == 0 and rp == 0 and l == 0 and 1 <= s < 6: stamp()
        if r == 0 and g in BARS:
            vms = []; lgt = None
            for nl in range(3):
                for nph in range(NPH(nl)):
                    if (nl, nph) != (0, 0) and RB(nl, nph) == g:
                        vms.append(half_tag[nph] if (nl == 0 and nph < P["HB"]) else blk_tag.get((nl, nph)))
                        lgt = blk_lg.get((nl, nph))
            for nph in range(P["HB"]):
                if RDG[(0, 2 * nph + 1)][0] == g: vms.append(blk_tag[(0, nph)])
            if g == G12: vms.append(pack_tag[2])
            if g in FLAGBAR: vms.append(st_tag.get(FLAGBAR[g]))
            vms = [t for t in vms if t is not None]
            wait(vm=max(vms) if vms else None, lg=lgt)
            if not P["NOBAR"]: e("s_barrier")
            npre += 2
        for f in pre_ev.get(m, []): npre += f()
        vmt = wtag[wg * 4 + 3] if FU[wg] == m else None
        lgt = max(btag[(0, bt)], btag[(1, bt)]) if m == M(l, s, rp, bt) else None
        if FU[wg] == m:
            lw = [wlg[f] for f in range(wg * 4, wg * 4 + 4) if f in wlg]
            if lw: lgt = max(lw + ([lgt] if lgt is not None else []))
        npre += wait(vm=vmt, lg=lgt)
        k, b = acc(2 * rp + h, bt)
        d = rng(k, b)
        e(f"v_mfma_f32_16x16x32_bf16 {d}, {rng(*wslot[wg*4 + sub][0])}, {rng('a', bop(l, s, c, bt))}, {'1.0' if (2 * rp + h, bt) not in acc_init else d}")
        acc_init.add((2 * rp + h, bt))
        npost = 0
        if LU[wg * 4 + sub] == m:
            pool.append(wslot[wg * 4 + sub])
            npost += wload()
        elif m % P["RAMP"] == 1:
            npost += wload()
        if m in BRD and not P['NOJIT']:
            npost += bread(BRD[m][0], BRD[m][1], c, bt)
        for f in post_ev.get(m, []): npost += f()
        if pend_st and m >= next_st[0] and m >= pend_st[0][0]:
            pend_st.pop(0)[1](); npost += 1; next_st[0] = m + P["SPACE"]
        run_items(m, (P["CAPT"] if (P["CAPT"] and m >= NM - P["CAPN"]) else CAP) - npost - npre)
    if P["STAMPS"] == 3: stamp()
    e("s_nop 7")
    n = 0
    assert not pend_st
    intail[0] = True
    while tasks: n += run_items(NM + 100, 1000)
    sys.stderr.write(f"forced items {stall}, tail items {n}\n")
    if P["STAMPS"]:
        stamp()
        if P["STAMPS"] == 3: e("s_waitcnt vmcnt(0)"); stamp()
        e("s_waitcnt lgkmcnt(0)")
        ns = nstamp[0]
        assert ns <= 16
        for i in range(ns): e(f"v_mov_b32 v{32+i}, s{sSTAMP+2*i}")
        e(f"s_lshl_b32 s{sTMP}, s2, 8"); e(f"s_lshl_b32 s3, s{sW}, 6"); e(f"s_add_u32 s{sTMP}, s{sTMP}, s3")
        for i in range(0, 16, 4):
            e(f"buffer_store_dwordx4 {rng('v', 32+i)}, off, {SWS}, s{sTMP} offset:{i*4}")
    e("s_cmp_lg_u32 s2, 0"); e("s_cbranch_scc1 L_end")
    e(f"s_cmp_lg_u32 s{sW}, 0"); e("s_cbranch_scc1 L_end")
    e(f"v_mov_b32 v{vP}, s{sT}"); e(f"v_mov_b32 v{vP+1}, s{sT+1}"); e("s_mov_b64 exec, 1")
    e(f"s_mov_b32 s{sTMP}, {EPOCH_OFF}")
    e(f"buffer_store_dwordx2 {rng('v', vP, 2)}, off, {SWS}, s{sTMP}")
    e("L_end:")
    e("s_endpgm")
    for val in spins:
        e(f"L_spin{val}:")
        e(f"s_mov_b32 s{sSPIN}, 0x40000")
        e(f"L_spinl{val}:")
        e("s_sleep 1")
        e(f"buffer_load_dwordx2 {rng('v', vP, 2)}, off, {SWS}, s{sPFLAG} {'offset:64 ' if val == 0 else ''}sc1")
        e(f"s_sub_u32 s{sSPIN}, s{sSPIN}, 1")
        e("s_waitcnt vmcnt(0)")
        e(f"s_cmp_eq_u32 s{sSPIN}, 0"); e(f"s_cbranch_scc1 L_back{val}")
        flagchk(val, f"L_spinl{val}")
        e(f"s_branch L_back{val}")
    for val in (0, 1):
        e(f"L_wspin{val}:")
        e(f"s_mov_b32 s{sSPIN}, 0x40000")
        e(f"L_wspinl{val}:")
        e("s_sleep 2")
        wpoll0()
        e(f"s_sub_u32 s{sSPIN}, s{sSPIN}, 1")
        e("s_waitcnt vmcnt(0)")
        e(f"s_cmp_eq_u32 s{sSPIN}, 0"); e(f"s_cbranch_scc1 L_wback{val}")
        wflagchk(val, f"L_wspinl{val}")
        e(f"s_branch L_wback{val}")

LAUNCH = "; @launch grid=(256,1,1) block=(256,1,1) lds=163840"
hdr = f"""; DCN-v2 cross network, 3 layers, B=16384, D=1024, bf16.  Generated by dev/gen.py (hand-written generator).
{LAUNCH}
.amdgcn_target "amdgcn-amd-amdhsa--gfx950"
.text"""
main_kernel()
if P['CPF']: e('.fill 4096, 4, 0xBF800000')
def kd(name, vg, ao, sg):
    return f""".p2align 6
.amdhsa_kernel {name}
  .amdhsa_next_free_vgpr {vg}
  .amdhsa_next_free_sgpr {sg}
  .amdhsa_accum_offset {ao}
  .amdhsa_group_segment_fixed_size 0
  .amdhsa_kernarg_size 48
  .amdhsa_user_sgpr_count 2
  .amdhsa_user_sgpr_kernarg_segment_ptr 1
  .amdhsa_system_sgpr_workgroup_id_x 1
.end_amdhsa_kernel
"""
tail = '\n.section .rodata,"a"\n' + kd(KN, 512, 256, 102)
open(out, "w").write(hdr + "\n" + "\n".join(L) + tail)
```

```python
import sys
out = sys.argv[1]
P = dict(SNK=0, CAP=2, DLEAD=2, DSPREAD=32, STAMPS=0, XSC="sc1", SSC="sc1", POLL_M=64, BIAS_S=11, NOSYNC=0, XDSPREAD=24,
         DOFF=2, NODMA=0, NOBAR=0, NOW=0, NOJIT=0, NOST=0, DEEP=1, XCHK=192, STOFF=5, STSPREAD=20, RAMP=4, XSMALL=0, NOOUT=0, XSTR=131072+1024, CPF=2, ONLY=0, RT=0, WSC=1, OX=0, XL=0, XLM=1100, TX=0, XD2=550, XC2=0, RFS=16, SPACE=0, SPACE2=0, T3=0, XP=0, OT=0, OSC2=0, XOUT=0, XMASK=31, CA1=1600, CB1=1960, CA2=1470, CB2=1640, SAMEX=0, PORD=0, D4=0, D5=0, CTM=0, XALT=0, OI=0, OPACE=0, DEEPT=0, OSC="", SG0=1, HH=4, TT=4, TL=8, TL2=4, XBA=9, XD0=550, XDS=30, XDL=24, BS0=9,  PTOUCH=0, HB=4, C12=5, B1M=34, B1S=8, UDS=4, U3D=0, U5D=64, U4D=98, B3=262, B3S=24, M12=14,  NSELF=6, FB=0, WCHK=280, WPOLL=64, B2=132, B2S=16, BLK1E=1, U2M=40, U3M=100, U5M=200, U4M=226)
for kv in sys.argv[2:]:
    k, v = kv.split("=")
    P[k] = v.replace("+", " ").replace("none", "") if k in ("XSC", "SSC", "OSC") else int(v)
CAP = P["CAP"]

KN = "standalone__cross_network_dcn__recsys_kernel"
PK = "dcn_pack_kernel"
WP_OFF = 0x100000
FLAG_OFF = 0x800000
X_OFF = P.get("XOFF", 0x1000000)
L = []
def e(s): L.append(s)

class Ctr:
    def __init__(s, name, mx): s.name, s.mx, s.n, s.done = name, mx, 0, 0
    def issue(s):
        s.n += 1
        return s.n - 1
    def need(s, idx):
        if idx is None or idx < s.done: return None
        N = min(s.n - 1 - idx, s.mx)
        s.done = max(s.done, s.n - N)
        return N
cur_m = [0]; touch_m = []
VM = Ctr("vmcnt", 63); LG = Ctr("lgkmcnt", 15)
def wait(vm=None, lg=None):
    a = VM.need(vm); b = LG.need(lg)
    parts = []
    if a is not None: parts.append(f"vmcnt({a})")
    if b is not None:
        parts.append(f"lgkmcnt({b})")
        if touch_m: sys.stderr.write(f"touch at {touch_m[0]}: next lgkm wait after {cur_m[0] - touch_m[0]} (N={b})\n"); touch_m.clear()
    if parts:
        e("s_waitcnt " + " ".join(parts)); return 1
    return 0
def wait_lg_all():
    e("s_waitcnt lgkmcnt(0)"); LG.done = LG.n

vL0, vK, vXR, vW0, vW1, vLX, vB, vP = 0, 1, 5, 6, 7, 8, 9, 10
T = 12
def acc(a, bt):
    if a < 7:
        b = 32 + (a * 8 + bt) * 4
        return ("v", b)
    return ("a", 224 + bt * 4)
def rng(k, b, n=4): return f"{k}[{b}:{b+n-1}]"
def x0r(j, bt): return (j * 8 + bt) * 4
def breg(c, bt): return 96 + (c * 8 + bt) * 4
SX0, SOUT, SWS, SBS, SWR = "s[12:15]", "s[16:19]", "s[20:23]", "s[24:27]", "s[4:7]"
sT, sSELF, sS2 = 8, 10, 11
EPOCH_OFF = 0x810000
sW, sHF, sWOFF, sW2048, sW8192, sMASK, sTMP, sFLAG, sPFLAG, sBOFF, sSPIN, sTMP2 = 28, 29, 30, 31, 32, 33, 34, 35, 36, 37, 38, 39
sXO = 40
sXOWN = 48
sXOTH = 50
sXST = 52
sXLD = 56
sSTAMP = 60
nstamp = [0]
def pstamp():
    if P["STAMPS"] == 9: stamp()
def stamp():
    if P["STAMPS"]:
        e(f"{'s_memrealtime' if P['RT'] else 's_memtime'} s[{sSTAMP+2*nstamp[0]}:{sSTAMP+2*nstamp[0]+1}]"); nstamp[0] += 1
NM = 3 * 2048
ORDER = []
for l in range(3):
    H = P["HH"] if l > 0 else 0
    Tn = P["TT"] if l < 2 else P["TL"]
    T2 = P["TL2"] if l == 2 else 0
    ORDER += [(l, s, rp) for s in range(H) for rp in (0, 1)] + [(l, s, rp) for s in range(H) for rp in (2, 3)]
    if l == 2 and P["TX"]:
        assert H == 4 and T2 == 0
        ORDER += [(l, s, rp) for s in range(4, 16) for rp in (0, 1)]
        ORDER += [(l, s, rp) for s in list(range(8, 16)) + list(range(4, 8)) for rp in (2, 3)]
        continue
    ORDER += [(l, s, rp) for s in range(H, 16 - Tn) for rp in range(4)]
    ORDER += [(l, s, rp) for s in range(16 - Tn, 16) for rp in (0, 1)]
    ORDER += [(l, s, rp) for s in range(16 - Tn, 16 - T2) for rp in (2, 3)]
    ORDER += [(l, s, 2) for s in range(16 - T2, 16)] + [(l, s, 3) for s in range(16 - T2, 16)]
assert len(set(ORDER)) == 192
GPOS = {k: i for i, k in enumerate(ORDER)}
def LS(l, rp): return 7 if (P["TX"] and l == 2 and rp >= 2) else 15
def VS(l, s, rp): return s + 12 if (P["TX"] and l == 2 and 4 <= s < 8 and rp >= 2) else s
NPH = lambda l: 10 if (P["TX"] and l == 2) else 8
def SUBO(bt):
    if P["SNK"] == 1: return (0, 1, 3, 2) if bt % 2 == 0 else (2, 3, 1, 0)
    if P["SNK"] == 2: return (0, 2, 3, 1) if bt % 2 == 0 else (1, 3, 2, 0)
    if P["SNK"] == 3: return (0, 1, 3, 2)
    return (0, 1, 2, 3)
SEQ = [(l, s, rp, bt, sub) for (l, s, rp) in ORDER[:192 - 2 * P["T3"]] for bt in range(8) for sub in SUBO(bt)]
if P["T3"]:
    assert P["TL2"] == 0 and P["T3"] <= P["TL"]
    SEQ += [(2, s, rp, bt, sub) for hb in range(2) for s in range(LS(2, 3) + 1 - P["T3"], LS(2, 3) + 1) for bt in range(4 * hb, 4 * hb + 4) for rp in (2, 3) for sub in ((0, 1, 3, 2) if P["SNK"] else range(4))]
assert len(set(SEQ)) == NM
POS = {k: i for i, k in enumerate(SEQ)}
M = lambda l, s, rp=0, bt=0: min(POS[(l, s, rp, bt, q)] for q in range(4))
acc_init = set()
FU = {}; LU = {}
for m_, (l_, s_, rp_, bt_, sub_) in enumerate(SEQ):
    FU.setdefault(GPOS[(l_, s_, rp_)], m_); LU[GPOS[(l_, s_, rp_)] * 4 + sub_] = m_
BRD = {}; RDG = {}; _last = {}
for m_, (l_, s_, rp_, bt_, sub_) in enumerate(SEQ):
    k_ = (sub_ % 2, bt_); s_ = VS(l_, s_, rp_)
    if k_ in _last and _last[k_][1] != (l_, s_):
        BRD[_last[k_][0]] = (l_, s_)
        if _last[k_][0] // 32 not in RDG.setdefault((l_, s_), []): RDG[(l_, s_)].append(_last[k_][0] // 32)
    _last[k_] = (m_, (l_, s_))
for v_ in RDG.values(): v_.sort()
def RB(l, ph): return min(RDG[(l, 2 * ph)] + RDG[(l, 2 * ph + 1)])
def LRD(l, ph): return max(RDG.get((l, 2 * ph), [-1]) + RDG[(l, 2 * ph + 1)])
BARS = set(RB(l, ph) for l in range(3) for ph in range(NPH(l)) if (l, ph) != (0, 0))
if P["TX"]: BARS |= {LRD(2, 4) + 2, LRD(2, 5) + 2}
BARS |= set(RDG[(0, 2 * ph + 1)][0] for ph in range(P["HB"]))
BARS |= set(64 * l + P["XBA"] for l in (1, 2))
def free_at(l, ph):
    pl, pp = (l, ph - 4) if ph >= 4 else (l - 1, ph + 4)
    if pl < 0: return 0
    return 32 * min(b for b in BARS if b >= LRD(pl, pp) + 2)

CAPS = (4, 6, 12, 14) if P["XALT"] == 3 else (8, 10, 12, 14)
def own0(ph): return ph % 4 >= 2 if P["XALT"] == 3 else ph >= 4
def bop(l, s, c, bt):
    if P['DEEP'] < 2 and l == 0 and c == 0 and s in CAPS[:3]: return x0r(CAPS.index(s), bt)
    return breg(c, bt)

def main_kernel():
    e(f".globl {KN}"); e(".p2align 8"); e(f".type {KN},@function"); e(f"{KN}:")
    e("s_cmp_ge_u32 s2, 256"); e("s_cbranch_scc1 L_end")
    if P["PTOUCH"]:
        e("s_getpc_b64 s[92:93]")
        e("v_lshrrev_b32 v12, 6, v0"); e("s_lshr_b32 s94, s2, 3"); e("v_readfirstlane_b32 s95, v12")
        e("s_and_b32 s94, s94, 15"); e("s_lshl_b32 s94, s94, 2"); e("s_add_u32 s94, s94, s95"); e("s_lshl_b32 s94, s94, 7")
        e("s_add_u32 s92, s92, s94"); e("s_addc_u32 s93, s93, 0")
        e("s_load_dword s98, s[92:93], 0")
    e("s_load_dwordx4 s[4:7], s[0:1], 0")
    e("s_load_dwordx4 s[8:11], s[0:1], 16")
    e("s_load_dwordx4 s[40:43], s[0:1], 32")
    stamp()
    e("v_lshrrev_b32 v12, 6, v0")
    e("v_and_b32 v13, 63, v0")
    e(f"v_readfirstlane_b32 s{sW}, v12")
    e(f"v_lshlrev_b32 v{vL0}, 4, v13")
    for k in range(4): e(f"v_add_u32 v{vK+k}, {k*8192}, v{vL0}")
    e(f"v_lshl_add_u32 v{vW0}, v12, 13, v{vL0}")
    e(f"v_add_u32 v{vW1}, 0x10000, v{vW0}")
    e(f"v_add_u32 v{vLX}, 0x20000, v{vW0}")
    e("v_and_b32 v14, 15, v13"); e("v_lshrrev_b32 v15, 4, v13")
    e(f"v_lshlrev_b32 v{vB}, 4, v15")
    e(f"v_lshl_add_u32 v{vXR}, v14, 11, v{vB}")
    if P["XP"]:
        assert P["OT"] and P["XALT"] == 3
        e("v_mov_b32 v18, 0x78")
        e("v_lshlrev_b32 v16, 1, v15"); e("v_lshrrev_b32 v16, v16, v18"); e("v_xor_b32 v17, v16, v13"); e("v_and_b32 v17, 3, v17"); e("v_lshlrev_b32 v17, 4, v17")
        e("v_lshrrev_b32 v16, 2, v13"); e(f"v_lshl_add_u32 v{vXR}, v16, 11, v17")
        e("v_lshrrev_b32 v16, 1, v14"); e("v_and_b32 v16, 6, v16"); e("v_lshrrev_b32 v16, v16, v18"); e("v_xor_b32 v16, v16, v15"); e("v_and_b32 v16, 3, v16")
        e("v_lshlrev_b32 v16, 4, v16"); e("v_lshl_add_u32 v16, v14, 6, v16")
        for k in range(4): e(f"v_add_u32 v{vK+k}, {k*8192}, v16")
    e("s_and_b32 s3, s2, 7"); e(f"s_lshr_b32 s{sTMP}, s2, 4"); e(f"s_lshl_b32 s{sTMP}, s{sTMP}, 3"); e(f"s_or_b32 s3, s3, s{sTMP}")
    e(f"s_lshr_b32 s{sHF}, s2, 3"); e(f"s_and_b32 s{sHF}, s{sHF}, 1")
    e(f"s_lshl_b32 s{sW2048}, s{sW}, 11"); e(f"s_lshl_b32 s{sW8192}, s{sW}, 13")
    e(f"s_mov_b32 s{sMASK}, 0xffff0000")
    if P["XP"]: e(f"s_add_u32 s101, s{sW8192}, 0x10000")
    if P["XL"]: e("s_getreg_b32 s101, hwreg(HW_REG_XCC_ID, 0, 4)")
    e("s_lshl_b32 s3, s3, 18")
    e(f"s_lshl_b32 s{sTMP2}, s{sHF}, 2"); e(f"s_add_u32 s{sTMP2}, s{sTMP2}, s{sW}")
    e(f"s_lshl_b32 s{sBOFF}, s{sTMP2}, 8")
    e(f"s_lshl_b32 s{sTMP}, s{sW}, 16"); e(f"s_add_u32 s{sTMP}, s{sTMP}, s3")
    e(f"s_lshl_b32 s{sXOWN}, s{sHF}, 10"); e(f"s_xor_b32 s{sXOTH}, s{sXOWN}, 1024")
    e(f"s_add_u32 s{sXOWN}, s{sXOWN}, s{sTMP}"); e(f"s_add_u32 s{sXOTH}, s{sXOTH}, s{sTMP}")
    e(f"s_add_u32 s{sXOWN+1}, s{sXOWN}, 32768"); e(f"s_add_u32 s{sXOTH+1}, s{sXOTH}, 32768")
    e(f"s_mul_i32 s{sWOFF}, s{sTMP2}, {3*8*32768}"); e(f"s_add_u32 s{sWOFF}, s{sWOFF}, {WP_OFF + P['NSELF']*8192}")
    e("s_waitcnt lgkmcnt(0)")
    pstamp()
    for (s, ptr, n) in ((24, 8, 6144), (12, 4, 0x2000000), (20, 42, 0x10000000), (16, 10, 0x2000000), (4, 6, 0x600000)):
        e(f"s_mov_b32 s{s}, s{ptr}"); e(f"s_and_b32 s{s+1}, s{ptr+1}, 0xffff"); e(f"s_mov_b32 s{s+2}, {hex(n)}"); e(f"s_mov_b32 s{s+3}, 0x20000")

    def bias_load(l, j):
        e(f"buffer_load_dwordx4 {rng('v', T+4*j)}, v{vB}, {SBS}, s{sBOFF} offen offset:{(l*2048 + j*64) % 4096}")
        return VM.issue()
    wtag = {}; wslot = {}; wlg = {}
    wok = [0]
    wload_n = [0]
    pool = [(("a", 160 + 4 * i), NM) for i in range(16)]
    if P["DEEP"]:
        for j in ((0, 1, 2) if P["PORD"] else (2, 1, 0)):
            if P["DEEP"] >= 2 and j >= P["DEEP"] - 1: continue
            pool += [(("a", x0r(j, bt)), 32 * RDG[(0, CAPS[j])][0] if P["DEEP"] < 2 else NM) for bt in range(8)]
    def last_use(f): return LU[f]
    def wload():
        f = wload_n[0]
        if f >= wok[0]: return 0
        while pool and pool[0][1] <= last_use(f): pool.pop(0)
        if not pool: return 0
        sl = pool.pop(0)
        wslot[f] = sl
        wload_n[0] += 1
        if P['NOW'] and f >= 16:
            wtag[f] = None; return 0
        k = f % 4
        e(f"buffer_load_dwordx4 {rng(*sl[0])}, v{vL0}, {SWS}, s{sWOFF} offen offset:{k*1024}{' sc1' if P['WSC'] else ''}")
        wtag[f] = VM.issue()
        n = 1
        if k == 3 and f + 1 < 768:
            lin = lambda g: ORDER[g][0] * 64 + ORDER[g][1] * 4 + ORDER[g][2]
            e(f"s_add_u32 s{sWOFF}, s{sWOFF}, {hex(((lin(f // 4 + 1) - lin(f // 4)) * 4096) & 0xffffffff)}"); n += 1
        return n
    def x0_io(ph, ksl):
        if P["XALT"] == 3:
            if own0(ph): return ksl * 256 + ((ph // 4) * 2 + ph % 2) * 64
            return (2 * (ph % 2) + (ksl >> 1)) * 256 + (2 * (ph // 4) + (ksl & 1)) * 64
        if P["XALT"] == 1: return (ph // 2) * 256 + ksl * 64
        if P["XALT"] == 2: return ((ph // 4) * 2 + ph % 2) * 256 + ksl * 64
        return ph * 256 + ksl * 64 if ph < 4 else ksl * 256 + (ph - 4) * 64
    m0own = [None]
    def dma_x0_m0(ph, ksl, i):
        m0own[0] = ("x", ph, ksl, i)
        lo = (ph % 4)*32768 + ksl*8192 + i*1024
        e(f"s_add_u32 m0, s{sW2048}, {lo - x0_io(ph, ksl) if lo >= x0_io(ph, ksl) else lo}")
    def dma_x0_ld(ph, ksl, i):
        assert m0own[0] == ("x", ph, ksl, i)
        so = (sXOWN if own0(ph) else sXOTH) + i
        if P["XALT"] == 1: so = (sXOTH if ph % 2 == 0 else sXOWN) + i
        if P["XALT"] == 2: so = (sXOTH if ph % 4 < 2 else sXOWN) + i
        io = x0_io(ph, ksl)
        if (ph % 4)*32768 + ksl*8192 + i*1024 < io:
            e(f"s_add_u32 s{sS2}, s{so}, {io}"); so = sS2; io = 0
        e(f"buffer_load_dwordx4 v{vXR}, {SX0}, s{so} offen offset:{io} lds")
        return VM.issue()
    blk_tag = {}
    blk_lg = {}
    st_tag = {}

    UB = T + 16
    vSG, vCG, vCT, vFL, vTR, vTR4 = 12, 13, 14, 15, 16, 20
    def code_touch(q):
        if q > 11: return 0
        e(f"s_add_u32 s96, s92, L_q{q}-L_pc"); e("s_addc_u32 s97, s93, 0")
        e("s_load_dword s98, s[96:97], 0")
        return 3
    e(f"s_add_u32 s96, s42, {EPOCH_OFF}"); e("s_addc_u32 s97, s43, 0")
    e(f"s_load_dwordx2 s[{sT}:{sT+1}], s[96:97], 0")
    e("v_mov_b32 v24, v12"); e("v_mov_b32 v25, v13"); e("v_mov_b32 v26, v14"); e("v_mov_b32 v27, v15")
    e("v_lshrrev_b32 v28, 2, v25"); e("v_and_b32 v29, 3, v25")
    e(f"v_lshlrev_b32 v{vCG}, 11, v28"); e(f"v_lshl_add_u32 v{vCG}, v29, 4, v{vCG}")
    e(f"s_lshr_b32 s44, s2, 3"); e("s_and_b32 s45, s2, 7")
    e("s_lshl_b32 s46, s44, 16"); e("s_lshl_b32 s47, s45, 8"); e("s_add_u32 s46, s46, s47")
    e(f"s_lshl_b32 s47, s{sW}, 6"); e("s_add_u32 s100, s46, s47")
    coop_tag = {}
    def coop_dma(l, n):
        m0own[0] = None
        e(f"s_add_u32 m0, s{sW2048}, {(32768 if l == 0 else 131072) + l*8192 + n*1024}")
        e(f"s_add_u32 s{sS2}, s100, {l*0x200000 + n*32768}")
        e(f"buffer_load_dwordx4 v{vCG}, {SWR}, s{sS2} offen lds"); coop_tag[l] = VM.issue()
        return 3
    coop_dma(0, 0); coop_dma(0, 1)
    pstamp()
    e(f"v_lshlrev_b32 v30, 2, v27"); e("v_xor_b32 v30, v30, v26"); e("v_lshlrev_b32 v30, 4, v30")
    e(f"v_lshl_add_u32 v{vSG}, v27, 11, v30")
    e(f"s_xor_b32 s{sSELF}, s{sHF}, 1"); e(f"s_lshl_b32 s{sSELF}, s{sSELF}, 20"); e(f"s_add_u32 s{sSELF}, s{sSELF}, s{sBOFF}")
    REG = {0: 2, 1: 3, 2: 4, 3: 2, 4: 4, 5: 3}
    self_tag = {}; self_lg = {}
    def self_dma1(n, ch):
        m0own[0] = None
        e(f"s_add_u32 m0, s{sW2048}, {REG[n]*32768 + (ch>>1)*8192 + (ch&1)*1024}")
        rb = (n >> 1) * 4 + (n & 1) if P["XALT"] == 3 else n
        e(f"s_add_u32 s{sS2}, s{sSELF}, {rb*65536 + ch*8192}")
        e(f"buffer_load_dwordx4 v{vSG}, {SWR}, s{sS2} offen lds"); self_tag[n] = VM.issue()
        return 3
    def self_dma(n):
        for ch in range(8): self_dma1(n, ch)
    def self_read1(n, a, u):
        j, h = divmod(a, 2)
        f = ((n // 2) * 4 + j) * 4 + 2 * h + n % 2
        w_ = 0
        if a == 0 and u == 0: w_ = wait(vm=self_tag[n])
        if u == 0:
            while pool[0][1] <= last_use(f): pool.pop(0)
            wslot[f] = pool.pop(0)
        k, b = wslot[f][0]
        R = REG[n]
        e(f"ds_read_b64_tr_b16 {rng(k, b+2*u, 2)}, v{(vTR4 if R == 4 else vTR)+j} offset:{(R % 2)*32768 + u*1024 + 8*h}")
        self_lg[n] = wlg[f] = LG.issue(); wtag[f] = None
        return 1 + w_
    half_tag = {}
    def blk_dma(ph, hv):
        for ksl in (2 * hv, 2 * hv + 1):
            for i in range(2):
                dma_x0_m0(ph, ksl, i); e("s_nop 0")
                blk_tag[(0, ph)] = dma_x0_ld(ph, ksl, i)
        if hv == 0: half_tag[ph] = blk_tag[(0, ph)]
    self_dma(0); self_dma(1); blk_dma(0, 0)
    pstamp()
    e("v_bfe_u32 v28, v25, 2, 2")
    e(f"v_lshlrev_b32 v30, 11, v24"); e("v_lshl_add_u32 v30, v29, 4, v30")
    e("v_lshrrev_b32 v31, 1, v27"); e(f"v_lshl_add_u32 v{vCT}, v31, 10, v30")
    e("v_and_b32 v31, 1, v27"); e("v_lshl_add_u32 v31, v31, 3, v28"); e(f"v_lshl_add_u32 v{vCT}, v31, 6, v{vCT}")
    e(f"v_add_u32 v{vCT}, 0x8000, v{vCT}")
    e("v_lshl_add_u32 v30, v27, 13, v30"); e("v_lshl_add_u32 v30, v28, 8, v30"); e("v_add_u32 v30, 0x10000, v30")
    for j in range(4):
        e(f"v_xor_b32 v31, {j}, v28"); e(f"v_lshl_add_u32 v{vTR+j}, v31, 6, v30"); e(f"v_add_u32 v{vTR4+j}, 0x10000, v{vTR+j}")
    e("s_lshr_b32 s40, s44, 2"); e("s_and_b32 s41, s44, 3"); e("s_and_b32 s42, s45, 4")
    e("s_xor_b32 s42, s40, s42")
    e("s_and_b32 s43, s42, 3")
    e("s_and_b32 s46, s45, 3"); e("s_xor_b32 s46, s43, s46")
    e("s_and_b32 s47, s42, 4"); e("s_or_b32 s47, s47, s41")
    def dcalc(d, ph, ka):
        e(f"s_lshl_b32 s{d}, s{ph}, 15")
        e(f"s_lshr_b32 s{sTMP}, s{ka}, 1"); e(f"s_lshl_b32 s{sTMP}, s{sTMP}, 14"); e(f"s_add_u32 s{d}, s{d}, s{sTMP}")
        e(f"s_and_b32 s{sTMP}, s{ka}, 1"); e(f"s_lshl_b32 s{sTMP}, s{sTMP}, 10"); e(f"s_add_u32 s{d}, s{d}, s{sTMP}")
    dcalc(57, 47, 46)
    if P["XALT"] == 3:
        e("s_and_b32 s47, s41, 1"); e("s_and_b32 s40, s43, 1"); e("s_lshl_b32 s40, s40, 1"); e("s_or_b32 s40, s40, s47")
        e("s_or_b32 s47, s47, 2"); e("s_lshr_b32 s43, s43, 1")
        e("s_cmp_lt_u32 s42, 4")
        e("s_cselect_b32 s47, s47, s43"); e("s_cselect_b32 s46, s46, s40")
        e("s_lshr_b32 s40, s41, 1"); e("s_lshl_b32 s40, s40, 2"); e("s_or_b32 s47, s47, s40")
    else:
        e("s_xor_b32 s47, s47, 4")
        e("s_cmp_lt_u32 s42, 4")
        e("s_cselect_b32 s47, s47, s43"); e("s_cselect_b32 s46, s46, s41")
    dcalc(58, 47, 46)
    e(f"s_mul_i32 s40, s45, {3*262144}"); e(f"s_lshl_b32 s41, s{sW}, 12"); e("s_add_u32 s40, s40, s41"); e(f"s_add_u32 s40, s40, {WP_OFF}")
    e("s_add_u32 s57, s40, s57"); e("s_add_u32 s58, s40, s58")
    e("s_add_u32 s57, s57, 262144"); e("s_add_u32 s99, s57, 262144")
    CD = {0: 58, 1: 57, 2: 99}
    e("s_getpc_b64 s[92:93]")
    e("L_pc:")
    e(f"s_lshr_b32 s94, s2, 3"); e(f"s_lshl_b32 s94, s94, 2"); e(f"s_add_u32 s94, s94, s{sW}")
    e(f"s_lshl_b32 s94, s94, 7")
    e("s_add_u32 s92, s92, s94"); e("s_addc_u32 s93, s93, 0")
    for q in range(P["CPF"]): code_touch(q)
    e(f"s_xor_b32 s{sPFLAG}, s2, 8")
    e(f"s_mul_i32 s{sXST}, s2, {P['XSTR']}"); e(f"s_add_u32 s{sXST}, s{sXST}, {X_OFF}")
    e(f"s_mul_i32 s{sXLD}, s{sPFLAG}, {P['XSTR']}"); e(f"s_add_u32 s{sXLD}, s{sXLD}, {X_OFF}")
    e(f"s_add_u32 s{sXLD}, s{sXLD}, s{sW8192}")
    for k in range(1, 4): e(f"s_add_u32 s{sXST+k}, s{sXST}, {(k//2)*32768 + (k%2)*4096}")
    if P["XOUT"]:
        e(f"s_lshr_b32 s{sXST}, s3, 7"); e(f"s_and_b32 s{sXST}, s{sXST}, {P['XMASK'] << 11}")
        e(f"s_lshl_b32 s{sXLD}, s{sW}, 14"); e(f"s_xor_b32 s{sXST}, s{sXST}, s{sXLD}")
        e(f"s_lshl_b32 s{sXLD}, s{sHF}, 10"); e(f"s_or_b32 s{sXST}, s{sXST}, s{sXLD}"); e(f"s_or_b32 s{sXST}, s{sXST}, s3")
        e(f"s_xor_b32 s{sXLD}, s{sXST}, 1024")
    e(f"s_lshl_b32 s{sFLAG}, s2, 7"); e(f"s_add_u32 s{sFLAG}, s{sFLAG}, {FLAG_OFF}")
    e(f"s_xor_b32 s{sPFLAG}, s{sFLAG}, {8*128}")
    e(f"s_lshr_b32 s59, s{sBOFF}, 1"); e(f"s_add_u32 s59, s59, {FLAG_OFF}")
    stamp()
    ct = {}; pack_tag = {}
    def creg(l, h): return ('a', 96 + h * 4) if l == 0 else ('v', 16 + ((l - 1) * 2 + h) * 4)
    def coop_read(l, h, u):
        w_ = wait(vm=coop_tag[l])
        k, b = creg(l, h)
        e(f"ds_read_b64_tr_b16 {rng(k, b + 2*u, 2)}, v{vCT} offset:{l*8192 + u*256 + h*8}")
        ct[(l, h)] = LG.issue(); return 1 + w_
    def coop_store(l, h):
        w_ = wait(lg=ct[(l, h)])
        e(f"buffer_store_dwordx4 {rng(*creg(l, h))}, v{vL0}, {SWS}, s{CD[l]} offen offset:{h*2048} sc1")
        pack_tag[l] = VM.issue(); return 1 + w_
    wait(vm=coop_tag[0])
    pstamp()
    for h in range(2):
        for u in range(2): coop_read(0, h, u)
    for h in range(2): coop_store(0, h)
    e(f"v_add_u32 v{vCT}, 0x18000, v{vCT}")
    blk_dma(0, 1); self_dma(2)
    pstamp()
    wait_lg_all()
    e(f"s_add_u32 s{sT}, s{sT}, 16"); e(f"s_addc_u32 s{sT+1}, s{sT+1}, 0")
    e(f"s_and_b32 s{sT}, s{sT}, -16"); e(f"s_and_b32 s{sT+1}, s{sT+1}, 0x7fffffff")
    e(f"s_add_u32 s{sXO}, s3, s{sBOFF}")
    for bt in range(1, 8): e(f"s_add_u32 s{sXO+bt}, s{sXO}, {bt*32768}")
    pstamp()
    for n in (0, 1):
        for a in range(8):
            for u in range(2): self_read1(n, a, u)
    pstamp()
    wait(vm=half_tag[0] if P["HB"] else blk_tag[(0, 0)])
    if P["FB"] == 0: wait(vm=pack_tag[0])
    e("s_barrier")
    stamp()
    def setflag(val):
        e(f"s_cmp_lg_u32 s{sW}, 0"); e(f"s_cbranch_scc1 L_nf{val}")
        if P["XL"] and val >= 2:
            e("s_cmp_lg_u32 s101, 0"); e(f"s_cbranch_scc1 L_nw{val}")
            e("buffer_wbl2 sc1"); e("s_waitcnt vmcnt(0)")
            e(f"L_nw{val}:")
        e(f"s_add_u32 s{sTMP}, s{sT}, {val}")
        e(f"v_mov_b32 v{vP}, s{sTMP}"); e(f"v_mov_b32 v{vP+1}, s{sT+1}"); e("s_mov_b64 exec, 1")
        e(f"buffer_store_dwordx2 {rng('v', vP, 2)}, off, {SWS}, s{sFLAG} sc1")
        if P["XL"] and val == 0:
            e("s_nop 3")
            e(f"v_add_u32 v{vP}, s101, v{vP}")
            e(f"buffer_store_dwordx2 {rng('v', vP, 2)}, off, {SWS}, s{sFLAG} offset:64 sc1")
        e("s_mov_b64 exec, -1")
        e(f"L_nf{val}:")
        return 2
    if P["FB"] == 0: setflag(0)
    wload_n[0] = 8 * P["NSELF"]
    btag = {}
    kst = {k: (0, 0) for k in range(4)}
    capt = set()
    def bread(l, s, c, bt):
        kap = (s % 2) * 2 + c
        if bop(l, s, c, bt) < 96:
            if (s, bt) in capt: return 0
            capt.add((s, bt))
        n = 1
        want = (0 if (l == 0 and not own0(s // 2)) else 1, (s // 4) % 2)
        if kst[kap] != want and P["XP"] and l == 0:
            assert kst[kap] == (1 - want[0], 1 - want[1])
            e(f"v_xor_b32 v{vK+kap}, s101, v{vK+kap}"); kst[kap] = want; n += 1
        elif kst[kap] != want:
            e(f"v_xor_b32 v{vK+kap}, {hex(kap*8192 + want[1]*65536)}, v{vW0 if want[0] else vL0}"); kst[kap] = want; n += 1
        off = ((s // 2) % 2) * 32768 + bt * 1024
        e(f"ds_read_b128 {rng('a', bop(l, s, c, bt))}, v{vK+kap} offset:{off}")
        btag[(c, bt)] = LG.issue()
        return n
    for bt in range(8):
        for c in range(2): bread(0, 0, c, bt)

    tasks = []
    def add_task(ready, deadline, items): tasks.append([ready, deadline, list(items)])
    pre_ev = {}; post_ev = {}
    def at_pre(m, f): pre_ev.setdefault(m, []).append(f)
    def at_post(m, f): post_ev.setdefault(m, []).append(f)

    def sched_dma(l, ph, m0, spread):
        if P['NODMA']: return
        assert m0 >= free_at(l, ph), (l, ph, m0, free_at(l, ph))
        assert m0 + 7 * spread < 32 * RB(l, ph), (l, ph)
        sys.stderr.write(f"dma ({l},{ph}) {m0 % 2048}..{(m0 + 7 * spread) % 2048} free {free_at(l, ph) % 2048} need {32 * RB(l, ph) % 2048}\n")
        if l == 0:
            seq = [(j, i) for j in range(4) for i in range(2)]
            for n, (j, i) in enumerate(seq):
                m = m0 + n * spread
                at_pre(m, lambda j=j, i=i: (dma_x0_m0(ph, j, i), 1)[1])
                def ld(j=j, i=i):
                    blk_tag[(l, ph)] = dma_x0_ld(ph, j, i)
                    if (j, i) == (1, 1): half_tag[ph] = blk_tag[(l, ph)]
                    return 1
                at_post(m, ld)
        else:
            j = ph % 4
            for n in range(8):
                m = m0 + n * spread
                if P["XOUT"]:
                    def setm1(n=n):
                        m0own[0] = ("e", l, ph, n)
                        e(f"s_add_u32 m0, s{sW8192}, {j*32768 + n*1024}")
                        e(f"s_xor_b32 s{sTMP2}, s{sXLD}, {(j*32 + n)*2048}")
                        return 2
                    at_pre(m, setm1)
                    def ld1(n=n):
                        assert m0own[0] == ("e", l, ph, n)
                        e(f"buffer_load_dwordx4 v{vL0}, {SOUT}, s{sTMP2} offen {P['XSC']} lds")
                        blk_tag[(l, ph)] = VM.issue(); return 1
                    at_post(m, ld1)
                    continue
                if n % 4 == 0:
                    def setm(n=n):
                        m0own[0] = ("e", l, ph, n // 4)
                        e(f"s_add_u32 m0, s{sW8192}, {j*32768 + (n//4)*4096}")
                        if ph >= 8:
                            e(f"s_add_u32 s{sTMP2}, s{sXST}, {(j + 2)*32768 + (n//4)*4096}"); e(f"s_add_u32 s{sTMP2}, s{sTMP2}, s{sW8192}")
                        elif P['XSMALL'] == 2: e(f"s_add_u32 s{sTMP2}, s{sXLD}, {(j%2)*32768 + (n//4)*4096}")
                        else: e(f"s_add_u32 s{sTMP2}, s{sXLD}, {(0 if P['SAMEX'] else (l-1)*256*P['XSTR']) + j*32768 + (n//4)*4096}")
                        return 2
                    at_pre(m, setm)
                def ld(n=n):
                    assert m0own[0] == ("e", l, ph, n // 4)
                    e(f"buffer_load_dwordx4 v{vL0}, {SWS}, s{sTMP2} offen offset:{(n%4)*1024} {P['XSC']} lds")
                    blk_tag[(l, ph)] = VM.issue(); return 1
                at_post(m, ld)
    sched_dma(0, 1, P["B1M"], P["B1S"])
    def sched_sdma(n, prev, m0):
        at_post(m0, lambda: wait(lg=self_lg[prev]))
        for ch in range(8): at_post(m0 + P["UDS"] * ch, lambda ch=ch: self_dma1(n, ch))
    sched_sdma(3, 0, P["U3D"])
    if P["NSELF"] > 4:
        sched_sdma(5, 1, P["U5D"]); sched_sdma(4, 2, P["U4D"])
        assert P["U2M"] + 16 < P["U4D"]
    mc = M(0, P["C12"]) + 10
    at_post(mc, lambda: wait(lg=self_lg[4 if P["NSELF"] > 4 else 2]))
    for i, (l, n) in enumerate([(1, 0), (1, 1), (2, 0), (2, 1)]): at_post(mc + 16 * i, lambda l=l, n=n: coop_dma(l, n))
    for i, (l, h, u) in enumerate([(l, h, u) for l in (1, 2) for h in range(2) for u in range(2)]):
        at_post(mc + 224 + 2 * i, lambda l=l, h=h, u=u: coop_read(l, h, u))
    for i, (l, h) in enumerate([(l, h) for l in (1, 2) for h in range(2)]): at_post(mc + 250 + 16 * i, lambda l=l, h=h: coop_store(l, h))
    PH12 = P["C12"] // 2 + 2
    G12 = RB(0, PH12 + 1)
    assert mc + 250 + 48 + 100 < 32 * G12
    at_post(32 * G12, lambda: setflag(1))
    for ph in range(P["DLEAD"], 8):
        if ph == 2:
            at_pre(P["B2"], lambda: wait(lg=self_lg[3]))
            sched_dma(0, ph, P["B2"], P["B2S"])
        elif ph == 3 and P["NSELF"] > 4:
            at_pre(P["B3"], lambda: wait(lg=self_lg[5]))
            sched_dma(0, ph, P["B3"], P["B3S"])
        elif ph == 4 and P["D4"]: sched_dma(0, ph, P["D4"], (P["D5"] - P["D4"]) // 8)
        elif ph == 5 and P["D5"]: sched_dma(0, ph, P["D5"], P["DSPREAD"])
        else: sched_dma(0, ph, M(0, 2 * (ph - P["DLEAD"])) + P["DOFF"], P["DSPREAD"])
    def sched_self(n, m0):
        for a in range(8):
            for u in range(2): at_post(m0 + 2 * a + u, lambda a=a, u=u: self_read1(n, a, u))
    sched_self(2, P["U2M"]); sched_self(3, P["U3M"])
    if P["NSELF"] > 4:
        sched_self(5, P["U5M"]); sched_self(4, P["U4M"])
        assert P["U5M"] + 16 < P["B3"]
    assert P["U3M"] + 16 < P["B2"]
    if P["FB"]:
        def fbar():
            wait(vm=pack_tag[0]); e("s_barrier"); return 2 + setflag(0)
        at_pre(P["FB"], fbar)
    wp = [None]
    def wpoll0():
        e(f"v_and_b32 v{vP}, 0x1f0, v{vL0}"); e(f"v_lshlrev_b32 v{vP}, 6, v{vP}")
        e(f"buffer_load_dwordx2 {rng('v', vP, 2)}, v{vP}, {SWS}, s59 offen sc1")
    def wpoll():
        wpoll0(); wp[0] = VM.issue(); return 3
    def wflagchk(val, lab):
        e(f"s_add_u32 s{sTMP}, s{sT}, {val}")
        e(f"v_subrev_u32 v{vP}, s{sTMP}, v{vP}"); e(f"v_xor_b32 v{vP+1}, s{sT+1}, v{vP+1}"); e("s_nop 0")
        e(f"v_cmp_gt_u64 vcc, {16-val}, {rng('v', vP, 2)}"); e("s_nop 3")
        e("s_cmp_lg_u64 vcc, -1"); e(f"s_cbranch_scc1 {lab}")
    def wchk(val):
        wait(vm=wp[0])
        wflagchk(val, f"L_wspin{val}")
        e(f"L_wback{val}:")
        wok[0] = 256 if val == 0 else 768
        return 8
    m12 = P["M12"] * 128 + 48
    for val, mm in ((0, P["WCHK"]), (1, m12)):
        at_post(mm - P["WPOLL"], wpoll)
        at_post(mm, lambda val=val: wchk(val))
    x0l_lg = [None]
    for bt in range(8):
        def wr(bt=bt):
            e(f"ds_write_b128 v{vLX}, {rng('a', breg(0, bt))} offset:{bt*1024}")
            x0l_lg[0] = LG.issue(); return 1
        at_post(M(0, 14, 0, bt) + 5, wr)
    ptag = {}
    def flagchk(val, lab):
        e(f"v_readfirstlane_b32 s{sTMP}, v{vP}"); e(f"v_readfirstlane_b32 s{sS2}, v{vP+1}")
        e(f"s_xor_b32 s{sTMP}, s{sTMP}, s{sT}"); e(f"s_sub_u32 s{sTMP}, s{sTMP}, {val}")
        e(f"s_cmp_lg_u32 s{sS2}, s{sT+1}"); e(f"s_cbranch_scc1 {lab}")
        e(f"s_cmp_gt_u32 s{sTMP}, {15-val}"); e(f"s_cbranch_scc1 {lab}")
    spins = []
    FLAGBAR = {}
    busy = []
    def add_poll(val, mchk):
        def poll():
            e(f"buffer_load_dwordx2 {rng('v', vP, 2)}, off, {SWS}, s{sPFLAG} {'offset:64 ' if val == 0 else ''}sc1")
            ptag[val] = VM.issue(); return 1
        busy.append((mchk - P["POLL_M"], mchk))
        at_post(mchk - P["POLL_M"], poll)
        def chk():
            wait(vm=ptag[val])
            flagchk(val, f"L_spin{val}")
            e(f"L_back{val}:")
            if val == 0: e(f"s_cmp_eq_u32 s{sTMP}, s101"); e("s_cselect_b32 s101, 1, 0")
            return 8
        at_post(mchk, chk)
        spins.append(val)
    if P["XL"]:
        assert not P["XP"] and not P["XOUT"] and not P["SAMEX"] and not P["TX"]
        add_poll(0, P["XLM"]); busy.append((32 * G12, 32 * G12)); busy.append((m12 - P["WPOLL"], m12))
    FV = 4 if (P["XOUT"] or P["SAMEX"]) else 2
    gate = {}
    if P["XOUT"] or P["SAMEX"]:
        for l in ((1, 2) if P["XOUT"] else (1,)):
            for hb in range(2):
                val = 4 * l + hb
                gb = RB(l, 5 + 2 * hb)
                at_post(32 * gb, lambda val=val: setflag(val)); busy.append((32 * gb, 32 * gb))
                gate[(l, hb)] = 2048 * l + P[("CA", "CB")[hb] + str(l)]
                add_poll(val, gate[(l, hb)])
    for l in (1, 2):
        sp = P["XDS"] if l == 1 else P["XDL"]
        mm = 2048 * l + P["XD0" if l == 1 else "XD2"]
        for hb in range(2):
            val = FV * (l - 1) + hb + 2
            gb = 64 * l + P["XBA"] if hb == 0 else RB(l, 2)
            FLAGBAR[gb] = (l, 2 * hb + 1)
            mchk = max(mm, free_at(l, 4 + 2 * hb), 4096 + P["XC2"] if (l == 2 and hb == 1) else 0) + 2
            if l == 2 and hb == 0 and P["TX"]: mchk = mm
            if not P["NOSYNC"]:
                at_post(32 * gb, lambda val=val: setflag(val)); busy.append((32 * gb, 32 * gb))
                add_poll(val, mchk)
            mm = mchk + 1
            for jj in (2 * hb, 2 * hb + 1):
                mm = max(mm, free_at(l, 4 + jj) + 1)
                sched_dma(l, 4 + jj, mm, sp)
                mm += 8 * sp
        if l == 2 and P["TX"]:
            assert not P["XOUT"]
            for ph in (8, 9): sched_dma(2, ph, free_at(2, ph) + 3, P["RFS"])
        busy.sort()
        for x, y in zip(busy, busy[1:]): assert x[1] < y[0], (x, y)
        if l == 1 and not P['SAMEX'] and not P['XOUT']:
            def bump():
                for k in range(4): e(f"s_add_u32 s{sXST+k}, s{sXST+k}, {256*P['XSTR']}")
                return 4
            at_post(M(1, 9, 1), bump)
    for l in (0, 1, 2):
        bt_tags = {}
        Tn = P["TT"] if l < 2 else P["TL"]
        for j in range(4):
            sb = (P["BS0"] if l == 0 else P["HH"] - 1) if j < 2 else 15 - Tn
            sn = sb + 1
            if l == 2 and j >= 2 and P["TX"]: sb, sn = 3, 8
            rdy = M(l, sb, j) + 36
            if l > 0 and j < 2: rdy = max(rdy, M(l, 0, 3) + 32 + 100)
            def ld(j=j, l=l):
                if l == 2 and j == 0: e(f"s_add_u32 s{sBOFF}, s{sBOFF}, 4096")
                bt_tags[j] = bias_load(l, j); return 1
            at_post((rdy - 96 if j % 2 == 0 else prev_ld + 4), ld)
            prev_ld = rdy - 96
            items = []
            for h in range(2):
                def first(j=j, h=h): wait(vm=bt_tags[j]); e(f"v_lshlrev_b32 v{UB}, 16, v{T+4*j+2*h}")
                items.append(first)
                items.append(lambda j=j, h=h: e(f"v_and_b32 v{UB+1}, s{sMASK}, v{T+4*j+2*h}"))
                items.append(lambda j=j, h=h: e(f"v_lshlrev_b32 v{UB+2}, 16, v{T+4*j+2*h+1}"))
                items.append(lambda j=j, h=h: e(f"v_and_b32 v{UB+3}, s{sMASK}, v{T+4*j+2*h+1}"))
                for bt in range(8):
                    k, b = acc(2 * j + h, bt)
                    if k == "v":
                        for r in range(4):
                            items.append(lambda b=b, r=r: e(f"v_add_f32 v{b+r}, v{b+r}, v{UB+r}"))
                    else:
                        for r in range(4): items.append(lambda b=b, r=r: e(f"v_accvgpr_read_b32 v{T+r}, a{b+r}"))
                        for r in range(4): items.append(lambda r=r: e(f"v_add_f32 v{T+r}, v{T+r}, v{UB+r}"))
                        for r in range(4): items.append(lambda b=b, r=r: e(f"v_accvgpr_write_b32 a{b+r}, v{T+r}"))
            dlb = M(l, sn, j) - 1
            if j >= 2: dlb = min(dlb, M(l, 15, 0) + 7)
            add_task(rdy, dlb, items)
    xl_tag = {}; pend_st = []; next_st = [0]
    U = T + 12; A = T + 16
    for l in range(3):
        last = l == 2
        seq = [divmod(u, 8) for u in range(32)]
        if last and P["OI"] >= 1: seq[:16] = [(u % 2, u // 2) for u in range(16)]
        if last and P["OI"] >= 2: seq[16:] = [(2 + u % 2, u // 2) for u in range(16)]
        prev_ready = 0
        for u in range(32):
            j, bt = seq[u]
            ot = last and P["OT"]
            ts = T + 4 * (u % (2 if ot else 3))
            items = []
            vWA, vRA, vGA = T + 8, T + 10, T + 11
            if ot:
                assert P["OI"] == 2
                if u == 0:
                    for ins in (f"v_lshrrev_b32 v{U}, 7, v{vL0}", f"v_lshlrev_b32 v{U+1}, 4, v{U}", f"v_xor_b32 v{vRA}, v{U+1}, v{vLX}",
                                f"v_and_b32 v{U+1}, 0x70, v{vL0}", f"v_lshl_add_u32 v{vGA}, v{U}, 11, v{U+1}",
                                f"v_lshrrev_b32 v{U}, 4, v{vL0}", f"v_and_b32 v{U}, 0x30, v{U}", f"v_xor_b32 v{U}, v{U}, v{U+1}",
                                f"v_and_b32 v{U+1}, 0xf0, v{vL0}", f"v_lshl_add_u32 v{U}, v{U+1}, 3, v{U}",
                                f"v_sub_u32 v{U+1}, v{vLX}, v{vL0}", f"v_add_u32 v{vWA}, v{U}, v{U+1}", f"v_xor_b32 v{vWA+1}, 64, v{vWA}"):
                        items.append(lambda ins=ins: e(ins))
                    if P["OX"]:
                        for ins in (f"v_bfe_u32 v{U}, v{vW0}, 13, 1", f"v_lshl_add_u32 v{vGA}, v{U}, 7, v{vGA}", f"v_xor_b32 v{vXR}, 0x80, v{vGA}"):
                            items.append(lambda ins=ins: e(ins))
            xsrc = acc(bt % 4, bt // 4)[1] if (ot and j == 3) else ts
            def xl_prefetch(uu, seq=seq):
                def f():
                    wait(lg=x0l_lg[0])
                    e(f"ds_read_b128 {rng('v', T + 4*(uu % 3))}, v{vLX} offset:{seq[uu][1]*1024}")
                    xl_tag[uu] = LG.issue()
                return f
            if j < 3:
                for d in range(4): items.append(lambda d=d, j=j, bt=bt, ts=ts: e(f"v_accvgpr_read_b32 v{ts+d}, a{x0r(j, bt)+d}"))
            for h in range(2):
                k, b = acc(2 * j + h, bt)
                def first(h=h, ts=xsrc, u=u, j=j, ot=ot, bt=bt):
                    if j == 3: wait(lg=xl_tag[("m", bt) if ot else u])
                    e(f"v_lshlrev_b32 v{U}, 16, v{ts+2*h}")
                items.append(first)
                items.append(lambda h=h, ts=xsrc: e(f"v_and_b32 v{U+1}, s{sMASK}, v{ts+2*h}"))
                items.append(lambda h=h, ts=xsrc: e(f"v_lshlrev_b32 v{U+2}, 16, v{ts+2*h+1}"))
                items.append(lambda h=h, ts=xsrc: e(f"v_and_b32 v{U+3}, s{sMASK}, v{ts+2*h+1}"))
                if h == 0 and u + 2 < 32 and seq[u + 2][0] == 3 and not ot: items.append(xl_prefetch(u + 2))
                for r in range(4):
                    if k == "v":
                        items.append(lambda b=b, r=r: e(f"v_mul_f32 v{U+r}, v{U+r}, v{b+r}"))
                    else:
                        items.append(lambda b=b, r=r: e(f"v_accvgpr_read_b32 v{A+r}, a{b+r}"))
                        items.append(lambda r=r: e(f"v_mul_f32 v{U+r}, v{U+r}, v{A+r}"))
                items.append(lambda h=h, ts=ts: e(f"v_cvt_pk_bf16_f32 v{ts+2*h}, v{U}, v{U+1}"))
                items.append(lambda h=h, ts=ts: e(f"v_cvt_pk_bf16_f32 v{ts+2*h+1}, v{U+2}, v{U+3}"))
            if ot:
                def rbreg(j, bt, k): return ("a", x0r(k, bt)) if j < 2 else acc(4 + k, bt)
                def ost(j, bt, k):
                    def f():
                        wait(lg=xl_tag[("r", j // 2, bt, k)])
                        so = sXO + bt
                        if k: e(f"s_add_u32 s{sXST+2}, s{so}, 16384"); so = sXST + 2
                        e(f"buffer_store_dwordx4 {rng(*rbreg(j, bt, k))}, v{(vXR if j >= 2 else vGA) if P['OX'] else vGA}, {SOUT}, s{so} offen offset:{0 if P['OX'] else (j//2)*128} {P['OSC'] if (j < 2 or not P['OSC2']) else ''}")
                        VM.issue()
                        if P["DEEPT"] and j < 2: pool.append((rbreg(j, bt, k), NM))
                    return f
                if u < 4:
                    for k in range(2):
                        def mv(b2=2 * u + k):
                            e(f"ds_read_b128 {rng(*acc(b2 % 4, b2 // 4))}, v{vLX} offset:{b2*1024}")
                            xl_tag[("m", b2)] = LG.issue()
                        items.append(mv)
                def dwo(j=j, bt=bt, ts=ts):
                    e(f"ds_write_b128 v{vWA + j % 2}, {rng('v', ts)} offset:{(bt % 4)*2048}"); LG.issue()
                    if P["DEEPT"] and j < 2 and bt >= 2: pool.extend([(acc(2 * j, bt), NM), (acc(2 * j + 1, bt), NM)])
                items.append(dwo)
                if j % 2 == 1:
                    for k in range(2):
                        def rb(j=j, bt=bt, k=k):
                            e(f"ds_read_b128 {rng(*rbreg(j, bt, k))}, v{vRA} offset:{(bt % 4)*2048 + k*1024}")
                            xl_tag[("r", j // 2, bt, k)] = LG.issue()
                            if P["SPACE"] and j < 2: pend_st.append((cur_m[0] + 8, ost(j, bt, k)))
                        items.append(rb)
                    if P["SPACE"] and j < 2: pass
                    elif u in (15, 31): items += [lambda: e("s_nop 0")] * (0 if u == 31 else 6) + [ost(j, bt, 0), ost(j, bt, 1)]
                elif u not in (0, 16) and not (P["SPACE"] and j < 2): items += [ost(*seq[u - 1], 0), ost(*seq[u - 1], 1)]
            elif last:
                def st(j=j, bt=bt, ts=ts):
                    if P['NOOUT'] == 1 and not (j == 3 and bt == 7): return
                    if P['NOOUT'] == 2:
                        e(f"buffer_store_dwordx4 {rng('v', ts)}, v{vW0 if j < 2 else vW1}, {SWS}, s{sXST + (j%2)*2 + bt//4} offen offset:{(bt%4)*1024}")
                    else: e(f"buffer_store_dwordx4 {rng('v', ts)}, v{vXR}, {SOUT}, s{sXO+bt} offen offset:{j*64} {P['OSC']}")
                    VM.issue()
                    if P["DEEPT"] and j < 2:
                        pool.extend([(acc(2 * j, bt), NM), (acc(2 * j + 1, bt), NM), (("a", x0r(j, bt)), NM)])
                items.append(st)
            else:
                def dw(j=j, bt=bt, ts=ts, l=l):
                    off = j * 32768 + bt * 1024
                    e(f"ds_write_b128 v{vW0 if off < 65536 else vW1}, {rng('v', ts)} offset:{off % 65536}")
                    blk_lg[(l + 1, j)] = LG.issue()
                items.append(dw)
                def xs(j=j, bt=bt, ts=ts, l=l):
                    if P['NOST']: return
                    if P['XOUT']:
                        e(f"s_xor_b32 s{sXST+1}, s{sXST}, {(j*32 + bt)*2048}")
                        e(f"buffer_store_dwordx4 {rng('v', ts)}, v{vL0}, {SOUT}, s{sXST+1} offen {P['SSC']}")
                        st_tag[(l + 1, j)] = VM.issue()
                        return
                    e(f"buffer_store_dwordx4 {rng('v', ts)}, v{vW0 if j < 2 else vW1}, {SWS}, s{sXST + (j%2)*2 + bt//4} offen offset:{(bt%4)*1024} {P['SSC']}")
                    st_tag[(l + 1, j)] = VM.issue()
                items.append(xs)
            ready = max(M(l, LS(l, j), j, bt) + 8, prev_ready + (P["OPACE"] if (last and j < 2 and u > 0) else 0))
            if (P["XOUT"] and l >= 1) or (P["SAMEX"] and l == 1): ready = max(ready, gate[(l, (bt // 4) if last else (j // 2))] + 1)
            if last: prev_ready = ready
            dl = min(M(l + 1, 0, j, bt), 32 * RB(l + 1, j)) if not last else NM + 1
            if not last: ready = max(ready, free_at(l + 1, j))
            add_task(ready, dl, items)
    tasks.sort(key=lambda t: (t[0], t[1]))

    def run_items(m, n):
        k = 0
        while k < n and tasks and tasks[0][0] <= m:
            t = tasks[0]
            t[2].pop(0)(); k += 1
            if not t[2]: tasks.pop(0)
        return k
    def flush_deadlines(m):
        lastidx = -1
        for i, t in enumerate(tasks):
            if t[1] <= m: lastidx = i
            if t[0] > m: break
        n = 0
        for _ in range(lastidx + 1):
            t = tasks.pop(0)
            assert t[0] <= m, (t[0], m)
            for f in t[2]: f(); n += 1
        return n

    stall = 0
    CT = {1: {417: 2, 801: 3, 1057: 4, 1441: 5, 2593: 6, 2721: 7, 3105: 8, 3489: 9, 4641: 10, 4769: 11},
          2: {417: 2, 801: 3, 1057: 4, 1313: 5, 1441: 6, 2593: 7, 2977: 8, 3233: 9, 3489: 10, 4641: 11}}.get(P["CTM"])
    for m in range(NM):
        g, r = divmod(m, 32); l, s, rp, bt, sub = SEQ[m]; h, c = divmod(sub, 2); wg = GPOS[(l, s, rp)]
        ph = s // 2
        npre = 0
        stall += flush_deadlines(m)
        if m % 512 == 0: e(f"L_q{m//512}:")
        cur_m[0] = m
        if P["CTM"] == 0:
            if P["CPF"] and m % 512 == 33: npre += code_touch(m // 512 + P["CPF"]); touch_m.append(m)
        elif m in CT: npre += code_touch(CT[m]); touch_m.append(m)
        if P["STAMPS"] == 1 and m % 512 == 0: stamp()
        if 2 <= P["STAMPS"] < 9 and m % 128 == 0 and P["SG0"] <= m // 128 < P["SG0"] + 12: stamp()
        if P["STAMPS"] == 10 and r == 0 and P["SG0"] <= m // 32 < P["SG0"] + 12: stamp()
        if P["STAMPS"] == 9 and r == 0 and rp == 0 and l == 0 and 1 <= s < 6: stamp()
        if r == 0 and g in BARS:
            vms = []; lgt = None
            for nl in range(3):
                for nph in range(NPH(nl)):
                    if (nl, nph) != (0, 0) and RB(nl, nph) == g:
                        vms.append(half_tag[nph] if (nl == 0 and nph < P["HB"]) else blk_tag.get((nl, nph)))
                        lgt = blk_lg.get((nl, nph))
            for nph in range(P["HB"]):
                if RDG[(0, 2 * nph + 1)][0] == g: vms.append(blk_tag[(0, nph)])
            if g == G12: vms.append(pack_tag[2])
            if g in FLAGBAR: vms.append(st_tag.get(FLAGBAR[g]))
            vms = [t for t in vms if t is not None]
            wait(vm=max(vms) if vms else None, lg=lgt)
            if not P["NOBAR"]: e("s_barrier")
            npre += 2
        for f in pre_ev.get(m, []): npre += f()
        vmt = wtag[wg * 4 + 3] if FU[wg] == m else None
        lgt = max(btag[(0, bt)], btag[(1, bt)]) if m % 4 == 0 else None
        if FU[wg] == m:
            lw = [wlg[f] for f in range(wg * 4, wg * 4 + 4) if f in wlg]
            if lw: lgt = max(lw + ([lgt] if lgt is not None else []))
        npre += wait(vm=vmt, lg=lgt)
        k, b = acc(2 * rp + h, bt)
        d = rng(k, b)
        e(f"v_mfma_f32_16x16x32_bf16 {d}, {rng(*wslot[wg*4 + sub][0])}, {rng('a', bop(l, s, c, bt))}, {'1.0' if (2 * rp + h, bt) not in acc_init else d}")
        acc_init.add((2 * rp + h, bt))
        npost = 0
        if LU[wg * 4 + sub] == m:
            pool.append(wslot[wg * 4 + sub])
            npost += wload()
        elif m % P["RAMP"] == 1:
            npost += wload()
        if m in BRD and not P['NOJIT']:
            npost += bread(BRD[m][0], BRD[m][1], c, bt)
        for f in post_ev.get(m, []): npost += f()
        if pend_st and m >= next_st[0] and m >= pend_st[0][0]:
            pend_st.pop(0)[1](); npost += 1; next_st[0] = m + P["SPACE"]
        run_items(m, CAP - npost - npre)
    if P["STAMPS"] == 3: stamp()
    e("s_nop 7")
    n = 0
    assert not pend_st
    while tasks: n += run_items(NM + 100, 1000)
    sys.stderr.write(f"forced items {stall}, tail items {n}\n")
    if P["STAMPS"]:
        stamp()
        if P["STAMPS"] == 3: e("s_waitcnt vmcnt(0)"); stamp()
        e("s_waitcnt lgkmcnt(0)")
        ns = nstamp[0]
        assert ns <= 16
        for i in range(ns): e(f"v_mov_b32 v{32+i}, s{sSTAMP+2*i}")
        e(f"s_lshl_b32 s{sTMP}, s2, 8"); e(f"s_lshl_b32 s3, s{sW}, 6"); e(f"s_add_u32 s{sTMP}, s{sTMP}, s3")
        for i in range(0, 16, 4):
            e(f"buffer_store_dwordx4 {rng('v', 32+i)}, off, {SWS}, s{sTMP} offset:{i*4}")
    e("s_cmp_lg_u32 s2, 0"); e("s_cbranch_scc1 L_end")
    e(f"s_cmp_lg_u32 s{sW}, 0"); e("s_cbranch_scc1 L_end")
    e(f"v_mov_b32 v{vP}, s{sT}"); e(f"v_mov_b32 v{vP+1}, s{sT+1}"); e("s_mov_b64 exec, 1")
    e(f"s_mov_b32 s{sTMP}, {EPOCH_OFF}")
    e(f"buffer_store_dwordx2 {rng('v', vP, 2)}, off, {SWS}, s{sTMP}")
    e("L_end:")
    e("s_endpgm")
    for val in spins:
        e(f"L_spin{val}:")
        e(f"s_mov_b32 s{sSPIN}, 0x40000")
        e(f"L_spinl{val}:")
        e("s_sleep 1")
        e(f"buffer_load_dwordx2 {rng('v', vP, 2)}, off, {SWS}, s{sPFLAG} {'offset:64 ' if val == 0 else ''}sc1")
        e(f"s_sub_u32 s{sSPIN}, s{sSPIN}, 1")
        e("s_waitcnt vmcnt(0)")
        e(f"s_cmp_eq_u32 s{sSPIN}, 0"); e(f"s_cbranch_scc1 L_back{val}")
        flagchk(val, f"L_spinl{val}")
        e(f"s_branch L_back{val}")
    for val in (0, 1):
        e(f"L_wspin{val}:")
        e(f"s_mov_b32 s{sSPIN}, 0x40000")
        e(f"L_wspinl{val}:")
        e("s_sleep 2")
        wpoll0()
        e(f"s_sub_u32 s{sSPIN}, s{sSPIN}, 1")
        e("s_waitcnt vmcnt(0)")
        e(f"s_cmp_eq_u32 s{sSPIN}, 0"); e(f"s_cbranch_scc1 L_wback{val}")
        wflagchk(val, f"L_wspinl{val}")
        e(f"s_branch L_wback{val}")

LAUNCH = "; @launch grid=(256,1,1) block=(256,1,1) lds=163840"
hdr = f"""; DCN-v2 cross network, 3 layers, B=16384, D=1024, bf16.  Generated by dev/gen.py (hand-written generator).
{LAUNCH}
.amdgcn_target "amdgcn-amd-amdhsa--gfx950"
.text"""
main_kernel()
if P['CPF']: e('.fill 4096, 4, 0xBF800000')
def kd(name, vg, ao, sg):
    return f""".p2align 6
.amdhsa_kernel {name}
  .amdhsa_next_free_vgpr {vg}
  .amdhsa_next_free_sgpr {sg}
  .amdhsa_accum_offset {ao}
  .amdhsa_group_segment_fixed_size 0
  .amdhsa_kernarg_size 48
  .amdhsa_user_sgpr_count 2
  .amdhsa_user_sgpr_kernarg_segment_ptr 1
  .amdhsa_system_sgpr_workgroup_id_x 1
.end_amdhsa_kernel
"""
tail = '\n.section .rodata,"a"\n' + kd(KN, 512, 256, 102)
open(out, "w").write(hdr + "\n" + "\n".join(L) + tail)
```
